```python
import torch

def _softmax(x, axis=-1):
    return torch.softmax(x, dim=axis)
def _gelu(x):
    return torch.nn.functional.gelu(x, approximate="tanh")
def _silu(x):
    return torch.nn.functional.silu(x)
def _sigmoid(x):
    return torch.sigmoid(x)
def _layernorm(x, axis=-1, eps=1e-5):
    m = x.mean(dim=axis, keepdim=True)
    v = x.var(dim=axis, keepdim=True, unbiased=False)
    return (x - m) / torch.sqrt(v + eps)
def _scatter_add(tgt, idx, src, axis=0):
    return tgt.clone().index_add_(axis, idx, src)
def _segment_sum(src, seg, n):
    out = torch.zeros((n,) + src.shape[1:], dtype=src.dtype)
    return out.index_add_(0, seg, src)
def _pad(x, pw):
    flat = tuple(v for pair in reversed(pw) for v in pair)
    return torch.nn.functional.pad(x, flat)

kernel_name = 'sequential_preLN__sliding_block__dense_activation_squared_relu__prompt'

def setup_inputs():

    _w = (lambda a: (lambda t: t.to(torch.bfloat16) if t.is_floating_point() else t)(torch.as_tensor(a)))
    def _A_setup():
        B, S, D = 1, 2048, 512
        return {
            "x": _w((lambda *s: torch.randn(*s, dtype=torch.bfloat16) * 0.05)(B, S, D)),
            "wqkv": _w((lambda *s: torch.randn(*s, dtype=torch.bfloat16) * 0.05)(D, 3 * D)),
            "wo": _w((lambda *s: torch.randn(*s, dtype=torch.bfloat16) * 0.05)(D, D)),
        }
    _A_in = _A_setup()

    def _B_setup():
        B, S, D, F = 1, 2048, 512, 1376
        return {
            "x": _w((lambda *s: torch.randn(*s, dtype=torch.bfloat16) * 0.05)(B, S, D)),
            "w1": _w((lambda *s: torch.randn(*s, dtype=torch.bfloat16) * 0.05)(D, F)),
            "b1": _w((lambda *s: torch.randn(*s, dtype=torch.bfloat16) * 0.4)(F)),
            "w2": _w((lambda *s: torch.randn(*s, dtype=torch.bfloat16) * 0.05)(F, D)),
            "b2": _w((lambda *s: torch.randn(*s, dtype=torch.bfloat16) * 1.6)(D)),
        }
    _B_in = _B_setup()

    return {
        "A_x": _A_in["x"],
        "A_wqkv": _A_in["wqkv"],
        "A_wo": _A_in["wo"],
        "B_x": _B_in["x"],
        "B_w1": _B_in["w1"],
        "B_b1": _B_in["b1"],
        "B_w2": _B_in["w2"],
        "B_b2": _B_in["b2"],
    }

def reference(A_x, A_wqkv, A_wo, B_x, B_w1, B_b1, B_w2, B_b2):
    def _A_ref(x, wqkv, wo):
        B, S, D = x.shape
        H = 32; Dh = D // H; W = 256
        qkv = (lambda x, *d: x.permute(*d))((x @ wqkv).reshape(B, S, 3, H, Dh), 2, 0, 3, 1, 4)
        q, k, v = qkv[0], qkv[1], qkv[2]
        scores = torch.einsum("bhqd,bhkd->bhqk", q, k) * (Dh ** -0.5)
        idx = torch.arange(S)
        mask = (idx[:, None] - idx[None, :] >= 0) & (idx[:, None] - idx[None, :] < W)
        scores = torch.where(mask[None, None], scores, -1e9)
        p = _softmax(scores, axis=-1)
        o = torch.einsum("bhqk,bhkd->bhqd", p, v)
        return (lambda x, *d: x.permute(*d))(o, 0, 2, 1, 3).reshape(B, S, D) @ wo

    def _B_ref(x, w1, b1, w2, b2):
        h = torch.einsum("bsd,df->bsf", x, w1) + b1
        zero = torch.zeros_like(h)
        r = torch.where(h > zero, h, zero)
        h = r * r
        out = torch.einsum("bsf,fd->bsd", h, w2) + b2
        return out

    x = A_x
    h = x + _A_ref(_layernorm(x, axis=-1), A_wqkv, A_wo)
    h2 = h + _B_ref(_layernorm(h, axis=-1), B_w1, B_b1, B_w2, B_b2)
    return h2
```

```python
import re

def _regs(tok):
    tok = tok.strip()
    neg = tok.lstrip('-')
    m = re.fullmatch(r'(?:abs\()?\|?([vsa])(\d+)\|?\)?', neg)
    if m: return {m.group(1) + m.group(2)}
    m = re.fullmatch(r'([vsa])\[(\d+):(\d+)\]', neg)
    if m: return {m.group(1) + str(i) for i in range(int(m.group(2)), int(m.group(3)) + 1)}
    if neg in ('vcc',): return {'vcc_lo', 'vcc_hi'}
    if neg in ('exec',): return {'exec_lo', 'exec_hi'}
    if neg in ('vcc_lo', 'vcc_hi', 'exec_lo', 'exec_hi', 'm0'): return {neg}
    return set()

TRANS = ('v_exp_f32', 'v_log_f32', 'v_rcp_f32', 'v_rsq_f32', 'v_sqrt_f32', 'v_sin_f32', 'v_cos_f32')

class Ins:
    def __init__(self, text):
        self.text = text
        t = text.split(';')[0].strip()
        self.label = None
        self.op = None
        self.w = set(); self.r = set(); self.srcC = set(); self.ab = set(); self.data = set()
        self.kind = 'other'
        if t.endswith(':'):
            self.label = t[:-1]; self.kind = 'label'; return
        if t.startswith('.') or not t:
            self.kind = 'dir'; return
        parts = t.split(None, 1)
        op = self.op = parts[0]
        rest = parts[1] if len(parts) > 1 else ''
        ops = [o.strip() for o in rest.split(',')] if rest else []
        mods = ''
        txt = rest
        txt = re.sub(r'\b(op_sel|op_sel_hi|neg_lo|neg_hi|quad_perm):\[[^\]]*\]', lambda m: m.group(0).replace(',', '|'), txt)
        ops = [o.strip() for o in txt.split(',')] if txt else []
        if ops:
            last = ops[-1].split(None, 1)
            ops[-1] = last[0]
            mods = last[1] if len(last) > 1 else ''
        self.ops = ops; self.mods = mods
        R = _regs
        if op.startswith('v_mfma'):
            self.kind = 'mfma'
            self.w = R(ops[0]); self.ab = R(ops[1]) | R(ops[2]); self.srcC = R(ops[3])
            self.r = self.ab | self.srcC
            self.passes = 8 if '32x32x16' in op else (4 if '16x16x32' in op else 2)
        elif op.startswith('v_cmp'):
            self.kind = 'valu'; self.w = R(ops[0]); self.r = set().union(*[R(o) for o in ops[1:]])
            if op.startswith('v_cmpx'): self.w |= {'exec_lo', 'exec_hi'}
        elif op.startswith('v_readfirstlane') or op.startswith('v_readlane'):
            self.kind = 'valu'; self.w = R(ops[0]); self.r = set().union(*[R(o) for o in ops[1:]])
        elif op.startswith('v_permlane'):
            self.kind = 'valu'; self.w = R(ops[0]) | R(ops[1]); self.r = set(self.w)
        elif op.startswith('v_add_co') or op.startswith('v_addc_co') or op.startswith('v_sub_co'):
            self.kind = 'valu'; self.w = R(ops[0]) | R(ops[1]); self.r = set().union(*[R(o) for o in ops[2:]])
        elif op.startswith('v_'):
            self.kind = 'valu'; self.w = R(ops[0]); self.r = set().union(set(), *[R(o) for o in ops[1:]])
            if op.startswith(('v_fmac', 'v_dot2c', 'v_writelane')): self.r |= self.w
            if op.startswith('v_cndmask') and len(ops) == 3: self.r |= {'vcc_lo', 'vcc_hi'}
            if op == 'v_nop': self.w = set()
        elif op.startswith('ds_read') or op.startswith('ds_bperm') or op.startswith('ds_swizzle'):
            self.kind = 'ds'; self.w = R(ops[0]); self.r = set().union(*[R(o) for o in ops[1:]])
        elif op.startswith('ds_'):
            self.kind = 'ds'; self.r = set().union(*[R(o) for o in ops])
        elif op.startswith('buffer_load') or op.startswith('global_load'):
            self.kind = 'vmem'
            if ' lds' in (' ' + mods) or 'load_lds' in op:
                self.r = set().union(*[R(o) for o in ops]) | {'m0'}; self.ldsdma = True
            else:
                self.w = R(ops[0]); self.r = set().union(*[R(o) for o in ops[1:]])
        elif op.startswith('buffer_store') or op.startswith('buffer_atomic'):
            self.kind = 'vmem'; self.r = set().union(*[R(o) for o in ops]); self.data = R(ops[0])
        elif op.startswith('global_store') or op.startswith('global_atomic'):
            self.kind = 'vmem'; self.r = set().union(*[R(o) for o in ops]); self.data = R(ops[1])
        elif op in ('buffer_wbl2', 'buffer_inv'):
            self.kind = 'vmem'
        elif op.startswith('s_'):
            self.kind = 'salu'
            if op.startswith(('s_cmp', 's_cbranch', 's_branch', 's_waitcnt', 's_barrier', 's_nop', 's_endpgm', 's_sleep', 's_setprio')):
                self.r = set().union(set(), *[R(o) for o in ops])
                if 'vcc' in op: self.r |= {'vcc_lo', 'vcc_hi'}
                if 'exec' in op: self.r |= {'exec_lo', 'exec_hi'}
            else:
                self.w = R(ops[0]); self.r = set().union(set(), *[R(o) for o in ops[1:]])
                if 'saveexec' in op: self.w |= {'exec_lo', 'exec_hi'}
        else:
            raise ValueError('unknown instruction ' + text)
    def states(self):
        if self.kind in ('label', 'dir'): return 0
        if self.op == 's_nop': return int(self.ops[0], 0) + 1
        return 1
    def is_trans(self): return self.op is not None and self.op.split('_e')[0] in TRANS
    def is_dot(self): return self.op is not None and self.op.startswith('v_dot')

def isv(rs): return {x for x in rs if x[0] in 'va' and x[1:].isdigit()}
def iss(rs): return {x for x in rs if (x[0] == 's' and x[1:].isdigit()) or x.startswith('vcc')}

def need(p, c):
    n = 0
    if p.kind == 'valu':
        pw_v = isv(p.w); pw_s = iss(p.w)
        if c.kind == 'mfma' and pw_v & c.r: n = max(n, 2)
        if c.kind == 'mfma' and ({'exec_lo', 'exec_hi'} & p.w): n = max(n, 4)
        if c.kind == 'vmem' and pw_s & c.r: n = max(n, 5)
        if c.kind == 'valu':
            if pw_s & c.r: n = max(n, 4 if c.op.startswith(('v_readlane', 'v_writelane')) else 2)
            if c.op.startswith(('v_readfirstlane', 'v_readlane')) and pw_v & c.r: n = max(n, 1)
            if c.op.startswith('v_permlane') and pw_v & c.r: n = max(n, 2)
            if 'dpp' in c.op or 'row_' in c.mods or 'quad_perm' in c.mods:
                if pw_v & c.r: n = max(n, 2)
            if p.is_trans() and pw_v & c.r: n = max(n, 1)
            if p.is_dot() and (pw_v & (c.r | c.w)):
                same_acc = c.op == p.op and not (pw_v & (_regs(c.ops[1]) | _regs(c.ops[2])))
                if not same_acc: n = max(n, 3)
            if ('op_sel' in p.mods and not p.op.startswith('v_pk')) or 'sdwa' in p.op or 'dst_sel' in p.mods:
                if pw_v & (c.r | c.w): n = max(n, 1)
        if p.is_dot() and c.kind in ('ds', 'vmem', 'mfma') and pw_v & c.r: n = max(n, 3)
        if p.is_trans() and c.kind in ('ds', 'vmem', 'mfma') and pw_v & c.r: n = max(n, 2)
        if c.kind == 'salu' and pw_s & c.r: n = max(n, 1)
    if p.kind == 'mfma':
        P = p.passes
        tab_rd = {2: 5, 4: 8, 8: 12}[P]
        if c.kind == 'mfma':
            if p.w & c.ab: n = max(n, tab_rd)
            if p.w & c.srcC:
                if c.srcC == p.w and c.passes == P: n = max(n, 2 if P == 2 else 0)
                else: n = max(n, {2: 4, 4: 6, 8: 10}[P])
            if (p.w & c.w) and not (p.w & c.srcC): n = max(n, tab_rd)
        elif c.kind in ('valu', 'ds', 'vmem'):
            if p.w & (c.r | c.w): n = max(n, tab_rd)
            if c.kind == 'valu' and (p.srcC & c.w): n = max(n, {2: 1, 4: 3, 8: 7}[P])
            if c.kind in ('ds', 'vmem') and (p.srcC & c.w): n = max(n, {2: 1, 4: 3, 8: 7}[P])
    if p.kind == 'vmem' and len(p.data) >= 3:
        if c.w & p.data: n = max(n, 2 if c.kind == 'valu' else 1)
    if p.kind == 'salu' and 'm0' in p.w and c.kind == 'vmem' and getattr(c, 'ldsdma', False): n = max(n, 1)
    if p.kind == 'salu' and ({'exec_lo', 'exec_hi'} & p.w) and c.kind == 'valu' and c.op.startswith('v_permlane'): n = max(n, 1)
    return n

class Asm:
    def __init__(self): self.ins = []
    def __call__(self, text):
        for line in text.split('\n'):
            line = line.strip()
            if line and not line.startswith(';'): self.ins.append(Ins(line))
    def label(self, l): self.ins.append(Ins(l + ':'))
    def fix_hazards(self, maxd=20):
        changed = True; total = 0
        while changed:
            changed = False
            ins = self.ins
            labels = {x.label: i for i, x in enumerate(ins) if x.label}
            preds = [[] for _ in ins]
            for i, x in enumerate(ins):
                if i + 1 < len(ins) and not (x.op in ('s_branch', 's_endpgm')): preds[i + 1].append(i)
                if x.op and (x.op.startswith('s_cbranch') or x.op == 's_branch'):
                    preds[labels[x.ops[0]]].append(i)
            for i, c in enumerate(ins):
                if c.kind in ('label', 'dir'): continue
                short = 0
                stack = [(p, 0) for p in preds[i]]; seen = {}
                while stack:
                    j, d = stack.pop()
                    if d >= maxd or seen.get(j, 99) <= d: continue
                    seen[j] = d
                    p = ins[j]
                    if p.kind not in ('label', 'dir'):
                        nn = need(p, c)
                        if nn > d: short = max(short, nn - d)
                    for q in preds[j]: stack.append((q, d + p.states()))
                if short:
                    k = short
                    new = []
                    while k > 0:
                        t = min(k, 16); new.append(Ins(f's_nop {t-1}')); k -= t
                    self.ins[i:i] = new; total += short
                    changed = True
                    break
        return total
    def text(self):
        out = []
        for x in self.ins:
            out.append(x.text if x.kind == 'label' else '    ' + x.text)
        return '\n'.join(out) + '\n'
```

```python
import sys, math
from emit import Asm
NAME = "sequential_preLN__sliding_block__dense_activation_squared_relu__prompt"
OPT = dict(stamps=False)
for a in sys.argv[2:]:
    k, v = a.split('='); OPT[k] = int(v)

WS_KV, WS_O, WS_H, WS_ST, WS_H1, WS_FL = 0x0, 0x400000, 0x600000, 0x800000, 0x900000, 0x1000000
WS_STAMP = 0x2000000
F1, F2, F3, F4 = 0, 64*16, 64*48, 64*64
SLOT = 32768
RB, RA = 0, 98304
L_ST, L_CS, L_CV, L_PR, L_Q, L_KV, TS = 0, 1024, 2048, 3072, 5120, 13312, 8256
A_PART, A_CSF, A_B1F, A_W2, A_SCR3 = RA, RA + 1536, RA + 2048, RA + 4096, RA + 4096
TIMEOUT = 400000
CSC = 0.25 * math.log2(math.e)
import struct
def f2u(x): return struct.unpack('<I', struct.pack('<f', x))[0]

sW, sT, sSub, sG, sM = 's3', 's4', 's5', 's6', 's7'
SX, SWQ, SWO, SW1, SB1, SW2, SB2, SOUT, SWS, SDBG = [f's[{b}:{b+3}]' for b in range(40, 80, 4)]
sA, sB = 's80', 's81'
def v(a, n=1): return f'v{a}' if n == 1 else f'v[{a}:{a+n-1}]'

A = Asm()
uid = [0]
def L(p='L'):
    uid[0] += 1; return f'{p}{uid[0]}'
stamp_n = [0]
def stamp(name):
    if not OPT['stamps']: return
    i = stamp_n[0]; stamp_n[0] += 1
    STAMPS.append(name)
    A(f's_memtime s[98:99]\ns_waitcnt lgkmcnt(0)\nv_mov_b32 v247, s98\nv_mov_b32 v246, s97\ns_mov_b64 s[94:95], exec\ns_mov_b64 exec, 1')
    A(f'buffer_store_dword v247, v246, {SWS}, 0 offen offset:{4*STAMP_IDS[name]}\ns_mov_b64 exec, s[94:95]')
STAMPS = []
STAMP_NAMES = ['start', 's1_c0', 's1_loop_end', 's1_bs1', 's1_stored', 's1_flag', 'kv_ready', 'att_p1', 'att_end', 'o_flag',
               's3_polled', 's3_mfma', 's3_flag', 's4_polled', 's4_phA', 's4_phB', 's4_flag', 's5_polled', 's5_mfma', 'end', 'ld_a', 'ld_b', 'ld_c', 'ld_d']
STAMP_IDS = {n: i for i, n in enumerate(STAMP_NAMES)}

def poll(vaddr, vtmp, nlanes, srd=SWS, want_ge=None):
    lp, dn = L('Lpoll'), L('Lpd')
    A(f's_mov_b32 exec_lo, {hex((1 << nlanes) - 1)}\ns_mov_b32 exec_hi, 0\ns_mov_b32 s8, 0')
    A.label(lp)
    A(f'buffer_load_dword {vtmp}, {vaddr}, {srd}, 0 offen sc1\ns_add_u32 s8, s8, 1\ns_waitcnt vmcnt(0)')
    if want_ge is None: A(f'v_cmp_eq_u32 vcc, 0, {vtmp}')
    else: A(f'v_cmp_gt_u32 vcc, {want_ge}, {vtmp}')
    A(f's_cmp_gt_u32 s8, {TIMEOUT}\ns_cbranch_scc1 {dn}\ns_cbranch_vccnz {lp}')
    A.label(dn)
    A('s_mov_b64 exec, -1')

def set_flag(sidx, vt0, vt1):
    A(f's_lshl_b32 s9, {sidx}, 7\ns_add_u32 s9, s9, {WS_FL}\nv_mov_b32 {vt0}, s9\nv_mov_b32 {vt1}, 1\ns_mov_b64 exec, 1')
    A(f'buffer_store_dword {vt1}, {vt0}, {SWS}, 0 offen sc1\ns_mov_b64 exec, -1')

def tr_lane_addr(dst, rowstride, hrows, tmp, swz=True, flip=None):
    A(f'v_lshrrev_b32 {dst}, 5, v0')
    A(f'v_mul_u32_u24 {dst}, {hrows}, {dst}')
    A(f'v_bfe_u32 {tmp}, v0, 2, 2')
    A(f'v_add_u32 {dst}, {dst}, {tmp}')
    A(f'v_mul_u32_u24 {dst}, {rowstride}, {dst}')
    if swz:
        A(f'v_bfe_u32 {tmp}, v0, 3, 1')
        if flip: A(f'v_xor_b32 {tmp}, {flip}, {tmp}')
        A(f'v_lshl_add_u32 {dst}, {tmp}, 6, {dst}')
    A(f'v_bfe_u32 {tmp}, v0, 4, 1\nv_lshl_add_u32 {dst}, {tmp}, 5, {dst}')
    A(f'v_and_b32 {tmp}, 3, v0\nv_lshl_add_u32 {dst}, {tmp}, 3, {dst}')

MF = 'v_mfma_f32_32x32x16_bf16'
def mfma(d, a, b, c=None):
    cs = v(d, 16) if c is None else (c if isinstance(c, str) else v(c, 16))
    A(f'{MF} {v(d,16)}, {v(a,4)}, {v(b,4)}, {cs}')
def trd(d, addr, off): A(f'ds_read_b64_tr_b16 {v(d,2)}, {addr} offset:{off}')
def dma(voff, srd, soff, sc=''): A(f'buffer_load_dwordx4 {voff}, {srd}, {soff} offen{sc} lds')
def half_sum2(a, b):
    A(f'v_permlane32_swap_b32 {a}, {b}\nv_add_f32 {a}, {a}, {b}')
def att_masks():
    A('v_and_b32 v232, 31, v0\nv_lshrrev_b32 v233, 5, v0\nv_lshlrev_b32 v233, 2, v233\nv_sub_u32 v232, v232, v233')
    A('v_mov_b32 v234, 0xff800000\nv_mov_b32 v235, 0')
    for r in range(16):
        key = (r & 3) + 8 * (r >> 2)
        A(f'v_cmp_le_i32 vcc, {key}, v232')
        A(f'v_cndmask_b32 v{56+r}, v234, v235, vcc')
        A(f'v_cndmask_b32 v{72+r}, v235, v234, vcc')

A(f's_cmp_ge_u32 s2, 256\ns_cbranch_scc1 Lexit')
A('s_load_dwordx16 s[16:31], s[0:1], 0\ns_load_dwordx4 s[32:35], s[0:1], 64\ns_load_dwordx2 s[36:37], s[0:1], 80')
A(f'v_lshrrev_b32 v1, 6, v0\nv_and_b32 v0, 63, v0\nv_readfirstlane_b32 {sW}, v1')
A(f's_and_b32 s8, s2, 7\ns_lshr_b32 s9, s2, 3\ns_and_b32 {sM}, s9, 15\ns_lshr_b32 s9, s9, 4\ns_lshl_b32 {sG}, s8, 1\ns_add_u32 {sG}, {sG}, s9')
A(f's_lshr_b32 s9, {sM}, 3\ns_lshl_b32 {sT}, {sG}, 1\ns_add_u32 {sT}, {sT}, s9\ns_and_b32 {sSub}, {sM}, 7')
A(f's_and_b32 {sA}, {sW}, 1\ns_bfe_u32 {sB}, {sW}, 0x10001')
A('s_waitcnt lgkmcnt(0)')
for (b, p, sz) in ((40, 16, 2097152), (44, 18, 1572864), (48, 20, 524288), (52, 24, 1409024), (56, 26, 2752), (60, 28, 1409024),
                   (64, 30, 1024), (68, 32, 2097152), (72, 36, 268435456), (76, 34, 256)):
    A(f's_mov_b32 s{b}, s{p}\ns_and_b32 s{b+1}, s{p+1}, 0xffff\ns_mov_b32 s{b+2}, {sz}\ns_mov_b32 s{b+3}, 0x20000')
if OPT['stamps']:
    A(f's_lshl_b32 s97, s2, 3\ns_add_u32 s97, s97, {sW}\ns_lshl_b32 s97, s97, 7\ns_add_u32 s97, s97, {WS_STAMP}')
A(f's_cmp_ge_u32 {sW}, 4\ns_cbranch_scc1 Lloader')

stamp('start')
aQ, aK_, aV = 16, 32, 48
XF = lambda p: 64 + 4 * p
WF = lambda p, b: 80 + 12 * p + 4 * b
SUM, SQ, CQ, CK, CV_ = 128, 130, 132, 134, 136
ONES = 'v138'
AX = lambda p: f'v{140+p}'
AW = lambda q: f'v{144+q}'
lz, lpf, lgo = L(), L(), L()
A(f's_cmp_lg_u32 {sW}, 0\ns_cbranch_scc1 {lpf}')
A(f's_mul_i32 s8, s2, 20\nv_add_u32 v2, s8, v0\nv_lshlrev_b32 v2, 7, v2\nv_add_u32 v2, {WS_FL}, v2\nv_mov_b32 v3, 0')
A(f's_mov_b32 exec_lo, 0xfffff\ns_mov_b32 exec_hi, 0\nbuffer_store_dword v3, v2, {SWS}, 0 offen sc1\ns_waitcnt vmcnt(0)')
A(f's_mov_b64 exec, 1\nv_mov_b32 v2, 1\nbuffer_atomic_add v2, v3, {SDBG}, 0 offen sc1\ns_mov_b64 exec, -1\ns_branch {lgo}')
A.label(lpf)
A(f's_cmp_eq_u32 {sW}, 3\ns_cbranch_scc1 {lgo}')
A('s_getpc_b64 s[10:11]')
A.label('Lpc')
A(f's_lshr_b32 s8, s2, 3\ns_lshl_b32 s9, {sW}, 4\ns_add_u32 s8, s8, s9\ns_and_b32 s8, s8, 31\ns_lshl_b32 s8, s8, 10')
A(f's_min_u32 s8, s8, Lcodeend-Lpc-1024\ns_add_u32 s10, s10, s8\ns_addc_u32 s11, s11, 0\ns_and_b32 s10, s10, -16\nv_lshlrev_b32 v2, 4, v0')
A('global_load_dwordx4 v[4:7], v2, s[10:11]')
A.label(lgo)
for r in list(range(16, 64)) + list(range(XF(2), XF(4))) + list(range(WF(2, 0), WF(4, 0))) + list(range(128, 138)):
    A(f'v_mov_b32 v{r}, 0')
A(f'v_mov_b32 {ONES}, 0x3f803f80')
A(f's_xor_b32 s12, {sA}, {sB}\ns_lshl_b32 s12, s12, 1')
A(f'v_and_b32 v2, 31, v0\nv_bfe_u32 v3, v0, 1, 3\nv_lshrrev_b32 v4, 5, v0\nv_xor_b32 v3, v3, v4')
A(f's_lshl_b32 s13, {sA}, 12\nv_lshlrev_b32 v2, 7, v2\nv_add_u32 v2, s13, v2')
for p in range(4):
    A(f's_xor_b32 s13, s12, {p}\ns_lshl_b32 s13, s13, 1\nv_xor_b32 v4, s13, v3\nv_lshl_add_u32 {AX(p)}, v4, 4, v2')
tr_lane_addr(AW(0), 128, 8, 'v2', True, sB)
A(f's_lshl_b32 s13, s12, 11\ns_add_u32 s13, s13, 8192\ns_xor_b32 s14, s12, 2\ns_lshl_b32 s14, s14, 11\ns_add_u32 s14, s14, 8192')
A(f'v_add_u32 {AW(1)}, s14, {AW(0)}\nv_add_u32 {AW(0)}, s13, {AW(0)}')
A('s_mov_b32 s15, 0')
def s1_reads(p):
    out = [f'ds_read_b128 {v(XF(p),4)}, {AX(p)}']
    for b in range(3):
        for i in range(2):
            out.append(f'ds_read_b64_tr_b16 {v(WF(p,b)+2*i,2)}, {AW(p>>1)} offset:{(p&1)*2048 + i*512 + b*8192}')
    return out
def s1_mf(p):
    return [f'{MF} {v(aK_,16)}, {v(WF(p,1),4)}, {v(XF(p),4)}, {v(aK_,16)}',
            f'{MF} {v(aV,16)}, {v(XF(p),4)}, {v(WF(p,2),4)}, {v(aV,16)}',
            f'{MF} {v(aQ,16)}, {v(WF(p,0),4)}, {v(XF(p),4)}, {v(aQ,16)}']
def s1_dots():
    for p in (2, 3):
        for j in range(4):
            A(f'v_dot2c_f32_bf16 v{SUM+(j&1)}, v{XF(p)+j}, {ONES}')
            A(f'v_dot2c_f32_bf16 v{SQ+(j&1)}, v{XF(p)+j}, v{XF(p)+j}')
            A(f'v_dot2c_f32_bf16 v{CQ+(j&1)}, v{WF(p,0)+j}, {ONES}')
            A(f'v_dot2c_f32_bf16 v{CK+(j&1)}, v{WF(p,1)+j}, {ONES}')
            A(f'v_dot2c_f32_bf16 v{CV_+(j&1)}, v{WF(p,2)+j}, {ONES}')
A.label('Ls1')
A('s_barrier')
for x in s1_reads(0) + s1_reads(1): A(x)
s1_dots()
A('s_waitcnt lgkmcnt(0)')
rd = s1_reads(2) + s1_reads(3)
mm = s1_mf(0) + s1_mf(1)
k = 0
for i, m in enumerate(mm):
    A(m)
    n = (3, 3, 2, 2, 2, 2)[i]
    for x in rd[k:k+n]: A(x)
    k += n
A('s_mov_b32 s13, 32768\ns_cmp_eq_u32 s15, 4\ns_cselect_b32 s13, -131072, s13\ns_add_u32 s15, s15, 1')
A('s_waitcnt lgkmcnt(7)')
m2 = s1_mf(2)
A(m2[0]); A(f'v_add_u32 {AX(0)}, s13, {AX(0)}\nv_add_u32 {AX(1)}, s13, {AX(1)}')
A(m2[1]); A(f'v_add_u32 {AX(2)}, s13, {AX(2)}\nv_add_u32 {AX(3)}, s13, {AX(3)}')
A(m2[2]); A(f'v_add_u32 {AW(0)}, s13, {AW(0)}\nv_add_u32 {AW(1)}, s13, {AW(1)}')
A('s_waitcnt lgkmcnt(0)')
for m in s1_mf(3): A(m)
A('s_cmp_lt_u32 s15, 8\ns_cbranch_scc1 Ls1')
stamp('s1_loop_end')
s1_dots()
for r in (SUM, SQ, CQ, CK, CV_): A(f'v_add_f32 v{r}, v{r}, v{r+1}')
A(f'v_mov_b32 v{CV_+1}, v{CV_}')
half_sum2(f'v{SUM}', f'v{SQ}'); half_sum2(f'v{CQ}', f'v{CK}'); half_sum2(f'v{CV_}', f'v{CV_+1}')
A(f'v_and_b32 v2, 31, v0\nv_lshlrev_b32 v2, 4, v2\ns_lshl_b32 s13, {sA}, 9\nv_add_u32 v2, s13, v2')
A(f'v_lshrrev_b32 v3, 5, v0\nv_lshl_add_u32 v3, v3, 2, v2\ns_lshl_b32 s13, {sB}, 3\nv_add_u32 v3, s13, v3')
A(f's_lshl_b32 s13, {sB}, 9\ns_lshl_b32 s14, {sA}, 8\ns_add_u32 s14, s14, s13\nv_lshlrev_b32 v4, 2, v0\nv_add_u32 v5, s14, v4')
A(f'ds_write_b32 v3, v{SUM} offset:{L_ST}\nds_write_b32 v5, v{CQ} offset:{L_CS}\nds_write_b32 v5, v{CV_} offset:{L_CV}')
A('v_xor_b32 v5, 256, v5')
A(f's_lshl_b32 s13, {sW}, 9\ns_add_u32 s13, s13, {L_PR}\nv_add_u32 v6, s13, v4')
A(f'v_lshrrev_b32 v7, 5, v0\nv_lshlrev_b32 v7, 4, v7\nv_add_u32 v7, s13, v7')
A('s_waitcnt lgkmcnt(0)\ns_barrier')
stamp('s1_bs1')
A(f'ds_read_b128 v[8:11], v2 offset:{L_ST}\nds_read_b32 v12, v5 offset:{L_CS}\nds_read_b32 v13, v5 offset:{L_CV}')
A(f's_lshl_b32 s13, {sT}, 1\ns_add_u32 s13, s13, {sA}\ns_lshl_b32 s16, s13, 3\ns_add_u32 s16, s16, {sSub}\ns_lshl_b32 s16, s16, 13')
A(f's_lshl_b32 s14, {sB}, 11\ns_add_u32 s16, s16, s14\ns_add_u32 s17, s16, 4096')
A(f's_lshl_b32 s18, s13, 4\ns_lshl_b32 s14, {sSub}, 1\ns_add_u32 s18, s18, s14\ns_add_u32 s18, s18, {sB}')
A(f'v_lshlrev_b32 v14, 4, v0')
A(f's_mul_i32 s13, {sA}, {TS}\ns_add_u32 s13, s13, {L_KV + 8*TS}\ns_lshl_b32 s14, {sB}, 11\ns_add_u32 s14, s14, s13\nv_add_u32 v15, s14, v14')
A(f's_mul_i32 s14, {sB}, 2080\ns_add_u32 s14, s14, s13\ns_add_u32 s14, s14, 4096\nv_add_u32 v146, s14, v14')
A(f's_lshl_b32 s13, {sA}, 12\ns_lshl_b32 s14, {sB}, 11\ns_add_u32 s13, s13, s14\ns_add_u32 s13, s13, {L_Q}\nv_add_u32 v147, s13, v14')
A('s_waitcnt lgkmcnt(0)')
RS, MRS, CSV = 148, 150, 152
A(f'v_add_f32 v8, v8, v10\nv_add_f32 v9, v9, v11\nv_mul_f32 v8, {hex(f2u(1/512))}, v8\nv_mul_f32 v9, {hex(f2u(1/512))}, v9')
A(f'v_fma_f32 v9, -v8, v8, v9\nv_max_f32 v9, 0, v9\nv_add_f32 v9, {hex(f2u(1e-5))}, v9\nv_rsq_f32 v{RS}, v9')
A(f'v_add_f32 v{CQ}, v{CQ}, v12\nv_add_f32 v{CSV}, v{CV_}, v13\nv_mul_f32 v{MRS}, v8, v{RS}')
A(f'v_cmp_gt_u32 vcc, 32, v0\nv_cndmask_b32 v8, v{MRS}, v{RS}, vcc')
A(f'ds_write_b32 v6, v8\nds_write_b32 v6, v{CQ} offset:256')
tK, tRS, tMRS, tQ = 64, 80, 96, 112
A('s_waitcnt lgkmcnt(0)')
for q in range(4): A(f'ds_read_b128 {v(tK+4*q,4)}, v7 offset:{384+32*q}')
for q in range(4): A(f'ds_read_b128 {v(tMRS+4*q,4)}, v7 offset:{128+32*q}')
for q in range(4): A(f'ds_read_b128 {v(tRS+4*q,4)}, v7 offset:{32*q}')
for q in range(4): A(f'ds_read_b128 {v(tQ+4*q,4)}, v7 offset:{256+32*q}')
KF, VF, QF = 156, 164, 172
def pk_epi(acc, t, mul_b, rs_b, out, t_is_scale=None):
    pass
A('s_waitcnt lgkmcnt(12)')
for j in range(8): A(f'v_pk_mul_f32 {v(tK+2*j,2)}, {v(tK+2*j,2)}, {v(MRS,2)} op_sel_hi:[1,0]')
for j in range(8): A(f'v_pk_fma_f32 {v(tK+2*j,2)}, {v(aK_+2*j,2)}, {v(RS,2)}, {v(tK+2*j,2)} op_sel_hi:[1,0,1] neg_lo:[0,0,1] neg_hi:[0,0,1]')
for j in range(8): A(f'v_cvt_pk_bf16_f32 v{KF+j}, v{tK+2*j}, v{tK+2*j+1}')
A(f'buffer_store_dwordx4 {v(KF,4)}, v14, {SWS}, s16 offen sc1\nbuffer_store_dwordx4 {v(KF+4,4)}, v14, {SWS}, s16 offen offset:1024 sc1')
A('s_waitcnt lgkmcnt(4)')
for j in range(8): A(f'v_pk_mul_f32 {v(tMRS+2*j,2)}, {v(tMRS+2*j,2)}, {v(CSV,2)} op_sel_hi:[1,0]')
for j in range(8): A(f'v_pk_fma_f32 {v(tMRS+2*j,2)}, {v(aV+2*j,2)}, {v(tRS+2*j,2)}, {v(tMRS+2*j,2)} neg_lo:[0,0,1] neg_hi:[0,0,1]')
for j in range(8): A(f'v_cvt_pk_bf16_f32 v{VF+j}, v{tMRS+2*j}, v{tMRS+2*j+1}')
A(f'buffer_store_dwordx4 {v(VF,4)}, v14, {SWS}, s17 offen sc1\nbuffer_store_dwordx4 {v(VF+4,4)}, v14, {SWS}, s17 offen offset:1024 sc1')
stamp('s1_stored')
A(f'ds_write_b128 v15, {v(KF,4)}\nds_write_b128 v15, {v(KF+4,4)} offset:1024\nds_write_b128 v146, {v(VF,4)}\nds_write_b128 v146, {v(VF+4,4)} offset:1040')
A(f'v_mul_f32 v{RS}, {hex(f2u(CSC))}, v{RS}\nv_mul_f32 v{MRS}, {hex(f2u(CSC))}, v{MRS}')
A('s_waitcnt lgkmcnt(4)')
for j in range(8): A(f'v_pk_mul_f32 {v(tQ+2*j,2)}, {v(tQ+2*j,2)}, {v(MRS,2)} op_sel_hi:[1,0]')
for j in range(8): A(f'v_pk_fma_f32 {v(tQ+2*j,2)}, {v(aQ+2*j,2)}, {v(RS,2)}, {v(tQ+2*j,2)} op_sel_hi:[1,0,1] neg_lo:[0,0,1] neg_hi:[0,0,1]')
for j in range(8): A(f'v_cvt_pk_bf16_f32 v{QF+j}, v{tQ+2*j}, v{tQ+2*j+1}')
A(f'ds_write_b128 v147, {v(QF,4)}\nds_write_b128 v147, {v(QF+4,4)} offset:1024')
att_masks()
A('s_waitcnt vmcnt(0)')
set_flag('s18', 'v2', 'v3')
stamp('s1_flag')
A('s_waitcnt lgkmcnt(0)\ns_branch Latt')

A.label('Lloader')
sI = 's82'
A(f's_and_b32 {sI}, {sW}, 3')
VX0, VX1, VWQ, VWO = 'v240', 'v241', 'v242', 'v243'
A(f'v_lshrrev_b32 v2, 3, v0\nv_and_b32 v3, 7, v0\nv_lshrrev_b32 v4, 4, v0\nv_xor_b32 v4, v4, v3')
A(f's_lshl_b32 s13, {sI}, 14\nv_lshlrev_b32 v5, 10, v2\nv_add_u32 v5, s13, v5\nv_lshl_add_u32 {VX0}, v4, 4, v5')
A(f'v_xor_b32 v4, 4, v4\nv_add_u32 v5, 8192, v5\nv_lshl_add_u32 {VX1}, v4, 4, v5')
A(f'v_bfe_u32 v4, v0, 4, 1\nv_lshlrev_b32 v4, 2, v4\nv_xor_b32 v4, v4, v3\nv_lshlrev_b32 v4, 4, v4')
A(f'v_lshl_add_u32 {VWO}, v2, 10, v4')
A(f's_mul_i32 s13, {sI}, {16*3072}\nv_mul_u32_u24 v5, 3072, v2\nv_add3_u32 {VWQ}, v5, v4, s13')
A(f's_lshl_b32 s16, {sT}, 16\ns_lshl_b32 s17, {sSub}, 7\ns_lshl_b32 s18, {sI}, 11\ns_mov_b32 s19, 0')
def issue_chunk():
    A(f's_mov_b32 m0, s18'); dma(VX0, SX, 's16')
    A(f's_add_u32 m0, s18, 1024'); dma(VX1, SX, 's16')
    for b in (1, 2, 0):
        for e in range(2):
            A(f's_add_u32 s13, s17, {b*1024 + e*24576}\ns_add_u32 m0, s18, {8192 + b*8192 + e*1024}'); dma(VWQ, SWQ, 's13')
    A(f's_add_u32 s16, s16, 128\ns_add_u32 s17, s17, {64*3072}\ns_add_u32 s18, s18, {SLOT}\ns_add_u32 s19, s19, 1')
A.label('Lld0')
issue_chunk()
A('s_cmp_lt_u32 s19, 5\ns_cbranch_scc1 Lld0')
A(f's_sub_u32 s18, s18, {5*SLOT}')
A('s_waitcnt vmcnt(32)\ns_barrier')
A.label('Lld1')
A('s_waitcnt vmcnt(24)\ns_barrier')
issue_chunk()
A('s_cmp_lt_u32 s19, 8\ns_cbranch_scc1 Lld1')
def issue_wo(part):
    A(f's_lshl_b32 s16, {sI}, 16\ns_lshl_b32 s13, {sSub}, 7\ns_add_u32 s16, s16, s13\ns_add_u32 s16, s16, {part*256*1024}')
    A(f's_lshl_b32 s18, {sI}, 13\ns_add_u32 s18, s18, {RA + part*SLOT}')
    for e in range(8):
        A(f's_add_u32 s13, s16, {e*8192}\ns_add_u32 m0, s18, {e*1024}'); dma(VWO, SWO, 's13')
A('s_waitcnt vmcnt(24)\ns_barrier')
issue_wo(0)
A('s_waitcnt vmcnt(24)\ns_barrier')
issue_wo(1)
A('s_waitcnt vmcnt(24)\ns_barrier')
A('s_waitcnt vmcnt(16)\ns_barrier')
stamp('ld_a')
A('v_mov_b32 v2, 0')
poll('v2', 'v3', 1, SDBG, want_ge=256)
att_masks()
A('s_barrier')
A(f'v_lshrrev_b32 v2, 2, v0\nv_mul_u32_u24 v2, {TS}, v2\nv_and_b32 v3, 3, v0\nv_mul_u32_u24 v3, 1040, v3\nv_add3_u32 v2, v2, v3, 0')
for r in range(4, 8): A(f'v_mov_b32 v{r}, 0x3f803f80')
A(f's_mov_b32 exec_lo, -1\ns_mov_b32 exec_hi, 0xff\nds_write_b128 v2, v[4:7] offset:{L_KV + 4096 + 1024}\ns_mov_b64 exec, -1')
lnh = L()
A(f's_add_u32 s13, {sT}, {sI}\ns_cmp_lt_u32 s13, 4\ns_cbranch_scc1 {lnh}')
A(f's_sub_u32 s13, s13, 4\ns_lshl_b32 s13, s13, 1')
A(f's_lshl_b32 s14, s13, 4\ns_lshl_b32 s15, {sSub}, 1\ns_add_u32 s14, s14, s15')
A(f'v_lshrrev_b32 v2, 1, v0\nv_lshlrev_b32 v2, 4, v2\nv_and_b32 v3, 1, v0\nv_add3_u32 v2, v2, v3, s14\nv_lshlrev_b32 v2, 7, v2\nv_add_u32 v2, {WS_FL + F1*128}, v2')
A(f's_lshl_b32 s16, s13, 3\ns_add_u32 s16, s16, {sSub}\ns_lshl_b32 s16, s16, 13')
A(f's_mul_i32 s18, {sI}, {2*TS}\ns_add_u32 s18, s18, {L_KV}\nv_lshlrev_b32 v4, 4, v0')
poll('v2', 'v3', 4)
stamp('ld_b')
for t in range(2):
    for i in range(8):
        lo = t * TS + (i * 1024 if i < 4 else 4096 + (i - 4) * 1040)
        A(f's_add_u32 s13, s16, {t*65536 + i*1024}\ns_add_u32 m0, s18, {lo}'); dma('v4', SWS, 's13', ' sc1')
A.label(lnh)
A('s_waitcnt vmcnt(0) lgkmcnt(0)')

A.label('Latt')
KFa = lambda t: 16 + 4 * t
QFa, CL, CF = 52, 56, 72
S1 = lambda t: 88 + 16 * t
sTau = 's20'
A(f's_lshr_b32 s13, {sW}, 2\ns_and_b32 s14, {sW}, 3\ns_lshl_b32 s21, {sT}, 1\ns_add_u32 s21, s21, s13')
A(f's_sub_u32 {sTau}, 8, s21\ns_max_i32 {sTau}, {sTau}, 0')
A(f's_mul_i32 s15, s13, {TS}\ns_add_u32 s15, s15, {L_KV}\ns_lshl_b32 s16, s14, 10\ns_add_u32 s16, s16, s15')
A(f'v_lshlrev_b32 v232, 4, v0\nv_add_u32 v233, s16, v232\nv_add_u32 v234, {8*TS}, v233')
A(f's_lshl_b32 s16, {sW}, 10\ns_add_u32 s16, s16, {L_Q}\nv_add_u32 v235, s16, v232')
A(f's_lshr_b32 s16, s14, 1\ns_mul_i32 s16, s16, 2080\ns_add_u32 s16, s16, s15\ns_add_u32 s16, s16, 4096')
A(f's_lshl_b32 s17, {sA}, 8\nv_or_b32 v236, s17, v232\nv_mov_b32 v237, 1024\nv_and_b32 v238, 16, v0\nv_cmp_eq_u32 vcc, 0, v238\nv_cndmask_b32 v236, v237, v236, vcc')
A(f'v_add_u32 v236, s16, v236\nv_add_u32 v237, {8*TS}, v236')
A(f's_lshl_b32 s22, s21, 5\ns_lshl_b32 s13, {sSub}, 2\ns_add_u32 s22, s22, s13\ns_add_u32 s22, s22, s14')
A('s_barrier')
stamp('kv_ready')
A(f'ds_read_b128 {v(QFa,4)}, v235\nds_read_b128 {v(KFa(8),4)}, v234')
for t in range(7, -1, -1): A(f'ds_read_b128 {v(KFa(t),4)}, v233 offset:{t*TS}')
def smf(t, dst, cmid):
    c = CL if t == 8 else (CF if t == 0 else cmid)
    mfma(dst, KFa(t), QFa, c)
M0_, M1_ = 'v238', 'v239'
A(f'v_mov_b32 {M0_}, 0xff800000\nv_mov_b32 {M1_}, 0xff800000')
def maxgrp(t):
    sk = L()
    if t < 8: A(f's_cmp_gt_u32 {sTau}, {t}\ns_cbranch_scc1 {sk}')
    for j in range(8):
        m = M0_ if j % 2 == 0 else M1_
        A(f'v_max3_f32 {m}, v{S1(t)+2*j}, v{S1(t)+2*j+1}, {m}')
    if t < 8: A.label(sk)
order = list(range(8, -1, -1))
for i, t in enumerate(order):
    A(f's_waitcnt lgkmcnt({8-i})')
    smf(t, S1(t), '0')
    if i >= 2: maxgrp(order[i-2])
VB = lambda t: 184 + 8 * (t % 3)
def vread(t):
    a = ('v237', 0) if t == 8 else ('v236', t * TS)
    A(f'ds_read_b128 {v(VB(t),4)}, {a[0]} offset:{a[1]}\nds_read_b128 {v(VB(t)+4,4)}, {a[0]} offset:{a[1]+1040}')
maxgrp(1); maxgrp(0)
A(f'v_max_f32 {M0_}, {M0_}, {M1_}\nv_mov_b32 {M1_}, {M0_}\nv_permlane32_swap_b32 {M0_}, {M1_}\nv_max_f32 {M0_}, {M0_}, {M1_}')
stamp('att_p1')
NM, OA = 136, 152
SB_ = lambda t: 88 + 16 * (t % 3)
PB = lambda t: 168 + 8 * (t % 2)
for r in range(16): A(f'v_sub_f32 v{CL+r}, v{CL+r}, {M0_}')
smf(8, SB_(8), NM)
for r in range(16): A(f'v_sub_f32 v{NM+r}, 0, {M0_}')
vread(8); vread(7)
smf(7, SB_(7), NM)
for r in range(16): A(f'v_sub_f32 v{CF+r}, v{CF+r}, {M0_}')
def pv(t, a, first):
    mfma(OA, VB(t) + 4 * a, PB(t) + 4 * a, '0' if first else None)
tails = {}
for t in order:
    if t < 8:
        tails[t] = L('Ltail')
        A(f's_cmp_gt_u32 {sTau}, {t}\ns_cbranch_scc1 {tails[t]}')
    ex = [f'v_exp_f32 v{SB_(t)+r}, v{SB_(t)+r}' for r in range(16)]
    cv = [f'v_cvt_pk_bf16_f32 v{PB(t)+j}, v{SB_(t)+2*j}, v{SB_(t)+2*j+1}' for j in range(8)]
    seq = ex[0:4] + ['PV0'] + ex[4:6] + cv[0:2] + ex[6:8] + ['PV1'] + ex[8:10] + cv[2:4] + ex[10:12] + ['SM'] + ex[12:16] + cv[4:8]
    for x in seq:
        if x == 'PV0':
            if t < 8:
                A('s_waitcnt lgkmcnt(2)' if t >= 1 else 's_waitcnt lgkmcnt(2)')
                pv(t + 1, 0, t + 1 == 8)
        elif x == 'PV1':
            if t < 8: pv(t + 1, 1, False)
            if t < 8 and t - 1 >= 0: vread(t - 1)
        elif x == 'SM':
            if t - 2 >= 0: smf(t - 2, SB_(t - 2), NM)
        else: A(x)
ldone = L('Lattdone')
A('s_waitcnt lgkmcnt(0)')
pv(0, 0, False); pv(0, 1, False)
for t in range(7, -1, -1):
    A(f's_branch {ldone}')
    A.label(tails[t])
    A('s_waitcnt lgkmcnt(0)')
    pv(t + 1, 0, t + 1 == 8); pv(t + 1, 1, False)
A.label(ldone)
A(f's_lshl_b32 s13, s22, 10\ns_add_u32 s13, s13, {WS_O}\ns_add_u32 s22, s22, {F2}')
A(f'v_rcp_f32 v238, v{OA+8}')
for j in range(4): A(f'v_pk_mul_f32 {v(OA+2*j,2)}, {v(OA+2*j,2)}, v[238:239] op_sel_hi:[1,0]')
for j in range(4): A(f'v_cvt_pk_bf16_f32 v{168+j}, v{OA+2*j}, v{OA+2*j+1}')
A(f'buffer_store_dwordx4 v[168:171], v232, {SWS}, s13 offen sc1')
stamp('att_end')
A('s_barrier')
A(f's_cmp_ge_u32 {sW}, 4\ns_cbranch_scc1 Lloader2')

sTile = 's23'
A(f's_lshl_b32 {sTile}, {sT}, 1\ns_add_u32 {sTile}, {sTile}, {sA}')
accK, accS = 0, 0
AK, AS = 16, 32
OF = lambda i: 48 + 4 * i
WOF = lambda i, c: 112 + 8 * i + 4 * c
HRES = 248
tr_lane_addr('v2', 128, 4, 'v4', True, sB)
A(f's_lshl_b32 s13, {sB}, 15\ns_add_u32 s13, s13, {RA}\nv_add_u32 v2, s13, v2\nv_xor_b32 v3, 64, v2')
A(f'v_and_b32 v4, 31, v0\nv_lshlrev_b32 v4, 10, v4\nv_lshrrev_b32 v5, 5, v0\nv_lshl_add_u32 v4, v5, 3, v4')
A(f's_lshl_b32 s24, {sTile}, 15\ns_lshl_b32 s13, {sSub}, 7\ns_add_u32 s24, s24, s13\ns_lshl_b32 s13, {sB}, 6\ns_add_u32 s24, s24, s13')
for q in range(4): A(f'buffer_load_dwordx2 {v(8+2*q,2)}, v4, {SX}, s24 offen offset:{16*q}')
A('s_waitcnt vmcnt(4)')
set_flag('s22', 'v6', 'v7')
stamp('o_flag')
for i in range(16):
    for c in range(2):
        for ii in range(2): trd(WOF(i, c) + 2 * ii, 'v2' if c == 0 else 'v3', i * 2048 + ii * 1024)
A(f's_lshl_b32 s13, {sTile}, 5\ns_lshl_b32 s14, {sB}, 4\ns_add_u32 s13, s13, s14\nv_add_u32 v5, s13, v0\nv_lshlrev_b32 v5, 7, v5\nv_add_u32 v5, {WS_FL + F2*128}, v5')
A(f's_lshl_b32 s16, s13, 10\ns_add_u32 s16, s16, {WS_O}\nv_lshlrev_b32 v244, 4, v0')
A('s_waitcnt vmcnt(1)')
for q in range(4):
    for j in range(2):
        A(f'v_lshlrev_b32 v{AK+4*q+2*j}, 16, v{8+2*q+j}\nv_and_b32 v{AK+4*q+2*j+1}, 0xffff0000, v{8+2*q+j}')
A('s_waitcnt lgkmcnt(0)\ns_barrier')
poll('v5', 'v6', 16)
stamp('s3_polled')
for i in range(16):
    if i % 4 == 0 and i: A('s_add_u32 s16, s16, 4096')
    A(f'buffer_load_dwordx4 {v(OF(i),4)}, v244, {SWS}, s16 offen offset:{(i%4)*1024} sc1')
A(f's_lshl_b32 s13, {sW}, 12\ns_add_u32 s13, s13, {A_SCR3}\nv_add_u32 v2, s13, v244\ns_xor_b32 s13, {sW}, 2\ns_lshl_b32 s13, s13, 12\ns_add_u32 s13, s13, {A_SCR3}\nv_add_u32 v3, s13, v244')
A(f's_lshl_b32 s13, {sSub}, 1\ns_add_u32 s13, s13, {sB}')
A(f's_lshl_b32 s14, {sTile}, 4\ns_add_u32 s14, s14, s13')
A(f's_lshl_b32 s16, s14, 11\ns_add_u32 s16, s16, {WS_H}\ns_lshl_b32 s17, s14, 8\ns_add_u32 s17, s17, {WS_ST}\ns_add_u32 s18, s14, {F3}\nv_lshlrev_b32 v5, 2, v0')
A(f'v_mov_b32 v6, 0x3f803f80\nv_mov_b32 v8, 0\nv_mov_b32 v9, 0\nv_mov_b32 v10, 0\nv_mov_b32 v11, 0')
for i in range(16):
    A(f's_waitcnt vmcnt({15-i})')
    mfma(AS, WOF(i, 1), OF(i), '0' if i == 0 else None)
    mfma(AK, WOF(i, 0), OF(i))
stamp('s3_mfma')
for q in range(4): A(f'ds_write_b128 v2, {v(AS+4*q,4)} offset:{q*1024}')
A('s_waitcnt lgkmcnt(0)\ns_barrier')
for q in range(4): A(f'ds_read_b128 {v(AS+4*q,4)}, v3 offset:{q*1024}')
for q in range(4):
    A(f's_waitcnt lgkmcnt({3-q})')
    for j in range(2): A(f'v_pk_add_f32 {v(AK+4*q+2*j,2)}, {v(AK+4*q+2*j,2)}, {v(AS+4*q+2*j,2)}')
    for j in range(2): A(f'v_cvt_pk_bf16_f32 v{HRES+2*q+j}, v{AK+4*q+2*j}, v{AK+4*q+2*j+1}')
    if q % 2: A(f'buffer_store_dwordx4 {v(HRES+2*q-2,4)}, v244, {SWS}, s16 offen offset:{(q//2)*1024} sc1')
for j in range(8):
    A(f'v_dot2c_f32_bf16 v{8+(j&1)}, v{HRES+j}, v6\nv_dot2c_f32_bf16 v{10+(j&1)}, v{HRES+j}, v{HRES+j}')
A('v_add_f32 v8, v8, v9\nv_add_f32 v10, v10, v11')
half_sum2('v8', 'v10')
A(f'buffer_store_dword v8, v5, {SWS}, s17 offen sc1')
A('s_waitcnt vmcnt(0)')
set_flag('s18', 'v6', 'v7')
stamp('s3_flag')
A('s_barrier')
A(f's_cmp_eq_u32 {sM}, 15\ns_cbranch_scc1 Ls4skip')
AC = lambda b: 16 + 16 * b
HF = lambda k: 64 + 4 * k
BF = lambda s, b: 192 + 8 * (s % 3) + 4 * b
B1T = HF(20)
STT = 216
sT4 = 's25'
A(f's_lshl_b32 {sT4}, {sG}, 2\ns_add_u32 {sT4}, {sT4}, {sW}')
tr_lane_addr('v2', 192, 4, 'v4', False)
A(f'v_add_u32 v3, 49152, v2')
A(f'v_lshrrev_b32 v4, 5, v0\nv_lshlrev_b32 v4, 4, v4\nv_add_u32 v4, {RA}, v4')
for b in range(3):
    for q in range(4):
        A(f'ds_read_b128 {v(AC(b)+4*q,4)}, v4 offset:{A_CSF-RA + b*128 + 32*q}')
        A(f'ds_read_b128 {v(B1T+16*b+4*q,4)}, v4 offset:{A_B1F-RA + b*128 + 32*q}')
def w1rd(ks, b, dst):
    a = 'v2' if ks < 16 else 'v3'
    for ii in range(2): trd(dst + 2 * ii, a, (ks % 16) * 3072 + ii * 1536 + b * 64)
for s in range(2):
    for b in range(2): w1rd(s, b, BF(s, b))
A(f's_lshl_b32 s13, {sT4}, 4\nv_add_u32 v5, s13, v0\nv_lshlrev_b32 v5, 7, v5\nv_add_u32 v5, {WS_FL + F3*128}, v5')
A(f's_lshl_b32 s16, {sT4}, 15\ns_add_u32 s16, s16, {WS_H}\ns_lshl_b32 s17, {sT4}, 12\ns_add_u32 s17, s17, {WS_ST}\nv_lshlrev_b32 v7, 2, v0')
poll('v5', 'v6', 16)
stamp('s4_polled')
for i in range(16): A(f'buffer_load_dword v{STT+i}, v7, {SWS}, s17 offen offset:{i*256} sc1')
def hload(k):
    if k % 4 == 0 and k: A('s_add_u32 s16, s16, 4096')
    A(f'buffer_load_dwordx4 {v(HF(k),4)}, v244, {SWS}, s16 offen offset:{(k%4)*1024} sc1')
for k in range(20): hload(k)
A(f's_mul_i32 s17, {sT4}, 86\ns_mul_i32 s13, {sM}, 6\ns_add_u32 s17, s17, s13\ns_lshl_b32 s17, s17, 10\ns_add_u32 s17, s17, {WS_H1}')
A(f's_lshl_b32 s18, {sT4}, 4\ns_add_u32 s18, s18, {sM}\ns_add_u32 s18, s18, {F4}')
A('s_waitcnt vmcnt(20) lgkmcnt(0)')
for st in (8, 4, 2, 1):
    for i in range(st): A(f'v_add_f32 v{STT+i}, v{STT+i}, v{STT+i+st}')
MEAN, STD, RS4 = 232, 234, 236
A(f'v_mov_b32 v{STT+1}, v{STT}\nv_permlane32_swap_b32 v{STT}, v{STT+1}')
A(f'v_mul_f32 v{MEAN}, {hex(f2u(1/512))}, v{STT}\nv_mul_f32 v{STT+1}, {hex(f2u(1/512))}, v{STT+1}')
A(f'v_fma_f32 v{STT+1}, -v{MEAN}, v{MEAN}, v{STT+1}\nv_max_f32 v{STT+1}, 0, v{STT+1}\nv_add_f32 v{STT+1}, {hex(f2u(1e-5))}, v{STT+1}')
A(f'v_rsq_f32 v{RS4}, v{STT+1}\nv_sqrt_f32 v{STD}, v{STT+1}')
for b in range(3):
    for j in range(8): A(f'v_pk_mul_f32 {v(AC(b)+2*j,2)}, {v(AC(b)+2*j,2)}, {v(MEAN,2)} op_sel_hi:[1,0]')
    for j in range(8): A(f'v_pk_fma_f32 {v(AC(b)+2*j,2)}, {v(B1T+16*b+2*j,2)}, {v(STD,2)}, {v(AC(b)+2*j,2)} op_sel_hi:[1,0,1] neg_lo:[0,0,1] neg_hi:[0,0,1]')
for k in range(20, 32): hload(k)
for ks in range(32):
    A(f's_waitcnt vmcnt({31-ks}) lgkmcnt({4 if ks > 0 else 0})' if ks < 31 else 's_waitcnt vmcnt(0) lgkmcnt(4)')
    mfma(AC(0), BF(ks, 0), HF(ks))
    if ks + 2 < 32: w1rd(ks + 2, 0, BF(ks + 2, 0))
    else: w1rd(2 * (ks - 30), 2, 216 + 8 * (ks - 30))
    mfma(AC(1), BF(ks, 1), HF(ks))
    if ks + 2 < 32: w1rd(ks + 2, 1, BF(ks + 2, 1))
    else: w1rd(2 * (ks - 30) + 1, 2, 220 + 8 * (ks - 30))
stamp('s4_phA')
BF2 = lambda s: 216 + 4 * (s % 4)
def epi_ops(b, dst):
    ops = []
    for j in range(8):
        r0, r1 = AC(b) + 2 * j, AC(b) + 2 * j + 1
        ops += [f'v_max_f32 v{r0}, 0, v{r0}', f'v_max_f32 v{r1}, 0, v{r1}', f'v_mul_f32 v{r0}, v{RS4}, v{r0}', f'v_mul_f32 v{r1}, v{RS4}, v{r1}',
                f'v_mul_f32 v{r0}, v{r0}, v{r0}', f'v_mul_f32 v{r1}, v{r1}, v{r1}', f'v_cvt_pk_bf16_f32 v{dst+j}, v{r0}, v{r1}']
        if j == 3: ops.append(('st', b, 0, dst))
        if j == 7: ops.append(('st', b, 1, dst + 4))
    return ops
def h1store(b, hf, src):
    sk = None
    if b > 0:
        sk = L(); A(f's_cmp_eq_u32 {sM}, 14\ns_cbranch_scc1 {sk}')
    off = (2 * b + hf) * 1024
    if off < 4096: A(f'buffer_store_dwordx4 {v(src,4)}, v244, {SWS}, s17 offen offset:{off} sc1')
    else: A(f's_add_u32 s13, s17, 4096\nbuffer_store_dwordx4 {v(src,4)}, v244, {SWS}, s13 offen offset:{off-4096} sc1')
    if sk: A.label(sk)
ep = epi_ops(0, 192) + epi_ops(1, 200)
pos = 0
for ks in range(32):
    A(f's_waitcnt lgkmcnt({min(6, 2*(31-ks))})')
    mfma(AC(2), BF2(ks), HF(ks))
    if ks + 4 < 32: w1rd(ks + 4, 2, BF2(ks + 4))
    if ks >= 1:
        n = 4
        for x in ep[pos:pos+n]:
            if isinstance(x, tuple): h1store(x[1], x[2], x[3])
            else: A(x)
        pos += n
assert pos >= len(ep)
stamp('s4_phB')
A('s_barrier')
for j in range(16): A(f'v_max_f32 v{AC(2)+j}, 0, v{AC(2)+j}')
for j in range(8): A(f'v_pk_mul_f32 {v(AC(2)+2*j,2)}, {v(AC(2)+2*j,2)}, {v(RS4,2)} op_sel_hi:[1,0]')
for j in range(8): A(f'v_pk_mul_f32 {v(AC(2)+2*j,2)}, {v(AC(2)+2*j,2)}, {v(AC(2)+2*j,2)}')
for j in range(8): A(f'v_cvt_pk_bf16_f32 v{208+j}, v{AC(2)+2*j}, v{AC(2)+2*j+1}')
h1store(2, 0, 208); h1store(2, 1, 212)
A('s_waitcnt vmcnt(0)')
set_flag('s18', 'v6', 'v7')
stamp('s4_flag')
A('s_branch Ls5')
A.label('Ls4skip')
A('s_barrier')
A.label('Ls5')
NW = 40
GF = lambda s: 48 + 4 * (s % NW)
B5 = lambda s, c: 208 + 8 * (s % 3) + 4 * c
A(f'v_lshrrev_b32 v4, 5, v0\nv_lshlrev_b32 v4, 3, v4\ns_lshl_b32 s13, {sSub}, 7\ns_lshl_b32 s14, {sB}, 6\ns_add_u32 s13, s13, s14')
for q in range(4): A(f'buffer_load_dwordx2 {v(8+2*q,2)}, v4, {SB2}, s13 offen offset:{16*q}')
tr_lane_addr('v2', 128, 4, 'v4', True, sB)
A(f's_mul_i32 s13, {sB}, 49152\ns_add_u32 s13, s13, {RB}\nv_add_u32 v234, s13, v2\nv_xor_b32 v235, 64, v234')
A(f's_mul_i32 s13, {sB}, 30720\ns_add_u32 s13, s13, {A_W2}\nv_add_u32 v232, s13, v2\nv_xor_b32 v233, 64, v232')
A(f's_lshl_b32 s14, {sA}, 12\ns_add_u32 s13, s13, s14\ns_add_u32 s13, s13, 8192\nv_add_u32 v236, s13, v244')
A(f's_xor_b32 s15, {sB}, 1\ns_mul_i32 s13, s15, 30720\ns_add_u32 s13, s13, s14\ns_add_u32 s13, s13, {A_W2 + 8192}\nv_add_u32 v237, s13, v244')
def w2rd(s):
    for c in range(2):
        if s < 15: a, off = ('v232', 'v233')[c], s * 2048
        elif s < 39: a, off = ('v234', 'v235')[c], (s - 15) * 2048
        else: a, off = ('v232', 'v233')[c], (s - 39) * 2048
        for ii in range(2): trd(B5(s, c) + 2 * ii, a, off + ii * 1024)
w2rd(0); w2rd(1)
A(f's_lshl_b32 s13, {sTile}, 4\ns_mul_i32 s14, {sB}, 7\ns_add_u32 s13, s13, s14\nv_add_u32 v5, s13, v0\nv_lshlrev_b32 v5, 7, v5\nv_add_u32 v5, {WS_FL + F4*128}, v5')
A(f's_mul_i32 s16, {sTile}, 86\ns_mul_i32 s13, {sB}, 43\ns_add_u32 s16, s16, s13\ns_lshl_b32 s16, s16, 10\ns_add_u32 s16, s16, {WS_H1}')
A('s_waitcnt vmcnt(0)')
for j in range(8):
    A(f'v_lshlrev_b32 v{AK+2*j}, 16, v{8+j}\nv_and_b32 v{AK+2*j+1}, 0xffff0000, v{8+j}')
    A(f'v_lshlrev_b32 v6, 16, v{HRES+j}\nv_and_b32 v7, 0xffff0000, v{HRES+j}')
    A(f'v_add_f32 v{AK+2*j}, v{AK+2*j}, v6\nv_add_f32 v{AK+2*j+1}, v{AK+2*j+1}, v7')
poll('v5', 'v6', 8)
stamp('s5_polled')
def gload(s):
    if s % 4 == 0 and s: A('s_add_u32 s16, s16, 4096')
    A(f'buffer_load_dwordx4 {v(GF(s),4)}, v244, {SWS}, s16 offen offset:{(s%4)*1024} sc1')
for s in range(NW): gload(s)
A(f'v_and_b32 v4, 31, v0\nv_lshlrev_b32 v4, 10, v4\nv_lshrrev_b32 v5, 5, v0\nv_lshl_add_u32 v4, v5, 4, v4')
issued = NW
for s in range(43):
    A(f's_waitcnt vmcnt({issued-1-s}) lgkmcnt({4 if s < 42 else 0})')
    mfma(AS, B5(s, 1), GF(s), '0' if s == 0 else None)
    mfma(AK, B5(s, 0), GF(s))
    if s == 2: A('s_waitcnt lgkmcnt(0)\ns_barrier')
    if s == 36: A('s_barrier')
    if s + 2 < 43 and s != 1: w2rd(s + 2)
    if s == 1: w2rd(3)
    if issued < 43: gload(issued); issued += 1
stamp('s5_mfma')
for q in range(4): A(f'ds_write_b128 v236, {v(AS+4*q,4)} offset:{q*1024}')
A('s_waitcnt lgkmcnt(0)\ns_barrier')
for q in range(4): A(f'ds_read_b128 {v(AS+4*q,4)}, v237 offset:{q*1024}')
for q in range(4):
    A(f's_waitcnt lgkmcnt({3-q})')
    for j in range(2): A(f'v_pk_add_f32 {v(AK+4*q+2*j,2)}, {v(AK+4*q+2*j,2)}, {v(AS+4*q+2*j,2)}')
    for j in range(2): A(f'v_cvt_pk_bf16_f32 v{8+2*q+j}, v{AK+4*q+2*j}, v{AK+4*q+2*j+1}')
    if q % 2:
        b = 8 + 2 * q - 2
        A(f'v_permlane32_swap_b32 v{b}, v{b+2}\nv_permlane32_swap_b32 v{b+1}, v{b+3}')
        A(f'buffer_store_dwordx4 {v(b,4)}, v4, {SOUT}, s24 offen offset:{(q//2)*32}')
stamp('end')
A('s_endpgm')

A.label('Lloader2')
A(f's_and_b32 {sI}, {sW}, 3')
A(f'v_lshrrev_b32 v2, 3, v0\nv_and_b32 v3, 7, v0\nv_bfe_u32 v4, v0, 4, 1\nv_lshlrev_b32 v4, 2, v4\nv_xor_b32 v4, v4, v3\nv_lshlrev_b32 v4, 4, v4\nv_lshl_add_u32 {VWO}, v2, 10, v4')
for ph in range(3):
    A(f'v_add_u32 v2, {64*ph}, v0\nv_mul_u32_u24 v3, 171, v2\nv_lshrrev_b32 v3, 11, v3\nv_mul_u32_u24 v4, 12, v3\nv_sub_u32 v4, v2, v4')
    A(f'v_mul_u32_u24 v3, 2752, v3\nv_lshl_add_u32 v{8+ph}, v4, 4, v3')
A(f's_mul_i32 s16, {sI}, {128*2752}\ns_mul_i32 s13, {sM}, 192\ns_add_u32 s16, s16, s13\ns_mul_i32 s18, {sI}, {128*192}\ns_add_u32 s18, s18, {RB}')
def w1grp():
    for ph in range(3):
        A(f's_add_u32 m0, s18, {ph*1024}'); dma(f'v{8+ph}', SW1, 's16')
    A(f's_add_u32 s16, s16, {16*2752}\ns_add_u32 s18, s18, 3072')
for g in range(2): w1grp()
A('s_waitcnt vmcnt(6)')
set_flag('s22', 'v6', 'v7')
stamp('o_flag')
for g in range(6): w1grp()
A(f's_mul_i32 s13, {sM}, 192\nv_lshlrev_b32 v2, 1, v0\nbuffer_load_ushort v12, v2, {SB1}, s13 offen\nbuffer_load_ushort v13, v2, {SB1}, s13 offen offset:128')
tr_lane_addr('v2', 192, 4, 'v4', False)
A(f's_mul_i32 s13, {sI}, {128*192}\nv_add_u32 v2, s13, v2\nv_mov_b32 v3, 0x3f803f80')
for r in range(16, 22): A(f'v_mov_b32 v{r}, 0')
A('s_barrier')
A('s_waitcnt vmcnt(0)')
stamp('ld_c')
for half in range(2):
    for s in range(4):
        for b in range(3):
            for ii in range(2): trd(32 + 12 * s + 4 * b + 2 * ii, 'v2', (4 * half + s) * 3072 + ii * 1536 + b * 64)
    A('s_waitcnt lgkmcnt(0)')
    for s in range(4):
        for j in range(4):
            for b in range(3): A(f'v_dot2c_f32_bf16 v{16+2*b+(j&1)}, v{32+12*s+4*b+j}, v3')
A('v_add_f32 v16, v16, v17\nv_add_f32 v18, v18, v19\nv_add_f32 v20, v20, v21\nv_mov_b32 v21, v20')
half_sum2('v16', 'v18'); half_sum2('v20', 'v21')
A(f's_mul_i32 s13, {sI}, 384\ns_add_u32 s13, s13, {A_PART}\nv_lshlrev_b32 v4, 2, v0\nv_add_u32 v5, s13, v4')
A('ds_write_b32 v5, v16\ns_mov_b32 exec_hi, 0\nds_write_b32 v5, v20 offset:256\ns_mov_b32 exec_hi, -1')
A('s_waitcnt lgkmcnt(0)\ns_barrier')
A(f'v_add_u32 v4, {RA}, v4')
for i in range(4): A(f'ds_read_b32 v{16+i}, v4 offset:{i*384}\nds_read_b32 v{20+i}, v4 offset:{i*384+256}')
A('v_lshlrev_b32 v12, 16, v12\nv_lshlrev_b32 v13, 16, v13\ns_waitcnt lgkmcnt(0)')
A('v_add_f32 v16, v16, v17\nv_add_f32 v18, v18, v19\nv_add_f32 v20, v20, v21\nv_add_f32 v22, v22, v23\nv_add_f32 v16, v16, v18\nv_add_f32 v20, v20, v22')
A(f'ds_write_b32 v4, v16 offset:{A_CSF-RA}\nds_write_b32 v4, v12 offset:{A_B1F-RA}\ns_mov_b32 exec_hi, 0')
A(f'ds_write_b32 v4, v20 offset:{A_CSF-RA+256}\nds_write_b32 v4, v13 offset:{A_B1F-RA+256}\ns_mov_b32 exec_hi, -1')
A('s_waitcnt lgkmcnt(0)\ns_barrier')
A(f's_mul_i32 s16, {sB}, {43*16*1024}\ns_lshl_b32 s13, {sA}, 13\ns_add_u32 s16, s16, s13\ns_lshl_b32 s13, {sSub}, 7\ns_add_u32 s16, s16, s13')
def w2loop(n, ldsbase, khstride):
    A(f's_mul_i32 s18, {sB}, {khstride}\ns_lshl_b32 s13, {sA}, 10\ns_add_u32 s18, s18, s13\ns_add_u32 s18, s18, {ldsbase}\ns_mov_b32 s19, {n}')
    lp = L(); A.label(lp)
    A('s_mov_b32 m0, s18'); dma(VWO, SW2, 's16')
    A(f's_add_u32 s16, s16, 16384\ns_add_u32 s18, s18, 2048\ns_sub_u32 s19, s19, 1\ns_cmp_lg_u32 s19, 0\ns_cbranch_scc1 {lp}')
w2loop(15, A_W2, 30720)
A('s_waitcnt vmcnt(0)\ns_barrier')
w2loop(24, RB, 49152)
A('s_waitcnt vmcnt(0)')
stamp('ld_d')
A('s_barrier')
w2loop(4, A_W2, 30720)
A('s_waitcnt vmcnt(0)\ns_barrier')
A('s_barrier')
A.label('Lexit')
A('s_endpgm')
A.label('Lcodeend')

n = A.fix_hazards()
hdr = open('cdna_kernels/' + NAME + '.s.ref').read().split('; Override')[0]
out = hdr + f'; @launch grid=(256,1,1) block=(512,1,1) lds=163840\n.amdgcn_target "amdgcn-amd-amdhsa--gfx950"\n.text\n.globl {NAME}_kernel\n.p2align 8\n.type {NAME}_kernel,@function\n{NAME}_kernel:\n'
out += A.text()
out += f'''.fill 64, 4, 0xbf800000
.section .rodata,"a"
.p2align 6
.amdhsa_kernel {NAME}_kernel
  .amdhsa_next_free_vgpr 256
  .amdhsa_next_free_sgpr 102
  .amdhsa_accum_offset 256
  .amdhsa_group_segment_fixed_size 0
  .amdhsa_kernarg_size 88
  .amdhsa_user_sgpr_count 2
  .amdhsa_user_sgpr_kernarg_segment_ptr 1
  .amdhsa_system_sgpr_workgroup_id_x 1
  .amdhsa_float_denorm_mode_32 3
.end_amdhsa_kernel
'''
open(sys.argv[1], 'w').write(out)
print('nops inserted:', n, 'instructions:', len(A.ins))
```

```python
import sys, math
from emit import Asm
NAME = "sequential_preLN__sliding_block__dense_activation_squared_relu__prompt"
OPT = dict(stamps=False, spin=0)
for a in sys.argv[2:]:
    k, v = a.split('='); OPT[k] = int(v)

WS_KV, WS_O, WS_H, WS_ST, WS_H1, WS_FL = 0x0, 0x400000, 0x600000, 0x800000, 0x900000, 0x1000000
WS_STAMP = 0x2000000
F1, F2, F3, F4 = 0, 64*16, 64*48, 64*64
SLOT = 32768
RB, RA = 0, 98304
L_ST, L_CS, L_CV, L_PR, L_Q, L_KV, TS = 0, 1024, 2048, 3072, 5120, 13312, 8256
A_PART, A_CSF, A_B1F, A_W2, A_SCR3 = RA, RA + 1536, RA + 2048, RA + 4096, RA + 4096
TIMEOUT = 400000
CSC = 0.25 * math.log2(math.e)
import struct
def f2u(x): return struct.unpack('<I', struct.pack('<f', x))[0]

sW, sT, sSub, sG, sM = 's3', 's4', 's5', 's6', 's7'
SX, SWQ, SWO, SW1, SB1, SW2, SB2, SOUT, SWS, SDBG = [f's[{b}:{b+3}]' for b in range(40, 80, 4)]
sA, sB = 's80', 's81'
def v(a, n=1): return f'v{a}' if n == 1 else f'v[{a}:{a+n-1}]'

A = Asm()
uid = [0]
def L(p='L'):
    uid[0] += 1; return f'{p}{uid[0]}'
stamp_n = [0]
def stamp(name):
    if not OPT['stamps']: return
    i = stamp_n[0]; stamp_n[0] += 1
    STAMPS.append(name)
    A(f's_memtime s[98:99]\ns_waitcnt lgkmcnt(0)\nv_mov_b32 v247, s98\nv_mov_b32 v246, s97\ns_mov_b64 s[94:95], exec\ns_mov_b64 exec, 1')
    A(f'buffer_store_dword v247, v246, {SWS}, 0 offen offset:{4*STAMP_IDS[name]}\ns_mov_b64 exec, s[94:95]')
STAMPS = []
def stampv(name, sreg):
    if not OPT['stamps']: return
    A(f'v_mov_b32 v247, {sreg}\nv_mov_b32 v246, s97\ns_mov_b64 s[94:95], exec\ns_mov_b64 exec, 1')
    A(f'buffer_store_dword v247, v246, {SWS}, 0 offen offset:{4*STAMP_IDS[name]}\ns_mov_b64 exec, s[94:95]')
STAMP_NAMES = ['start', 's1_c0', 's1_loop_end', 's1_bs1', 's1_stored', 's1_flag', 'kv_ready', 'att_p1', 'att_end', 'o_flag',
               's3_polled', 's3_mfma', 's3_flag', 's4_polled', 's4_phA', 's4_phB', 's4_flag', 's5_polled', 's5_mfma', 'end', 'ld_a', 'ld_b', 'ld_c', 'ld_d', 'x0', 'x1', 'x2', 'x3', 'x4', 'x5', 'x6', 'x7']
STAMP_IDS = {n: i for i, n in enumerate(STAMP_NAMES)}

def poll(vaddr, vtmp, nlanes, srd=SWS, want_ge=None):
    lp, dn = L('Lpoll'), L('Lpd')
    A(f's_mov_b32 exec_lo, {hex((1 << nlanes) - 1)}\ns_mov_b32 exec_hi, 0\ns_mov_b32 s8, 0')
    A.label(lp)
    A(f'buffer_load_dword {vtmp}, {vaddr}, {srd}, 0 offen sc1\ns_add_u32 s8, s8, 1\ns_waitcnt vmcnt(0)')
    if want_ge is None: A(f'v_cmp_eq_u32 vcc, 0, {vtmp}')
    else: A(f'v_cmp_gt_u32 vcc, {want_ge}, {vtmp}')
    A(f's_cmp_gt_u32 s8, {TIMEOUT}\ns_cbranch_scc1 {dn}\ns_cbranch_vccnz {lp}')
    A.label(dn)
    A('s_mov_b64 exec, -1')

def set_flag(sidx, vt0, vt1):
    A(f's_lshl_b32 s9, {sidx}, 7\ns_add_u32 s9, s9, {WS_FL}\nv_mov_b32 {vt0}, s9\nv_mov_b32 {vt1}, 1\ns_mov_b64 exec, 1')
    A(f'buffer_store_dword {vt1}, {vt0}, {SWS}, 0 offen sc1\ns_mov_b64 exec, -1')

def tr_lane_addr(dst, rowstride, hrows, tmp, swz=True, flip=None):
    A(f'v_lshrrev_b32 {dst}, 5, v0')
    A(f'v_mul_u32_u24 {dst}, {hrows}, {dst}')
    A(f'v_bfe_u32 {tmp}, v0, 2, 2')
    A(f'v_add_u32 {dst}, {dst}, {tmp}')
    A(f'v_mul_u32_u24 {dst}, {rowstride}, {dst}')
    if swz:
        A(f'v_bfe_u32 {tmp}, v0, 3, 1')
        if flip: A(f'v_xor_b32 {tmp}, {flip}, {tmp}')
        A(f'v_lshl_add_u32 {dst}, {tmp}, 6, {dst}')
    A(f'v_bfe_u32 {tmp}, v0, 4, 1\nv_lshl_add_u32 {dst}, {tmp}, 5, {dst}')
    A(f'v_and_b32 {tmp}, 3, v0\nv_lshl_add_u32 {dst}, {tmp}, 3, {dst}')

MF = 'v_mfma_f32_32x32x16_bf16'
def mfma(d, a, b, c=None):
    cs = v(d, 16) if c is None else (c if isinstance(c, str) else v(c, 16))
    A(f'{MF} {v(d,16)}, {v(a,4)}, {v(b,4)}, {cs}')
def trd(d, addr, off): A(f'ds_read_b64_tr_b16 {v(d,2)}, {addr} offset:{off}')
def dma(voff, srd, soff, sc=''): A(f'buffer_load_dwordx4 {voff}, {srd}, {soff} offen{sc} lds')
def half_sum2(a, b):
    A(f'v_permlane32_swap_b32 {a}, {b}\nv_add_f32 {a}, {a}, {b}')
def att_masks():
    A('v_and_b32 v232, 31, v0\nv_lshrrev_b32 v233, 5, v0\nv_lshlrev_b32 v233, 2, v233\nv_sub_u32 v232, v232, v233')
    A('v_mov_b32 v234, 0xff800000\nv_mov_b32 v235, 0')
    for r in range(16):
        key = (r & 3) + 8 * (r >> 2)
        A(f'v_cmp_le_i32 vcc, {key}, v232')
        A(f'v_cndmask_b32 v{56+r}, v234, v235, vcc')
        A(f'v_cndmask_b32 v{72+r}, v235, v234, vcc')

A(f's_cmp_ge_u32 s2, 256\ns_cbranch_scc1 Lexit')
A('s_load_dwordx16 s[16:31], s[0:1], 0\ns_load_dwordx4 s[32:35], s[0:1], 64\ns_load_dwordx2 s[36:37], s[0:1], 80')
A(f'v_lshrrev_b32 v1, 6, v0\nv_and_b32 v0, 63, v0\nv_readfirstlane_b32 {sW}, v1')
A(f's_and_b32 s8, s2, 7\ns_lshr_b32 s9, s2, 3\ns_and_b32 {sM}, s9, 15\ns_lshr_b32 s9, s9, 4\ns_lshl_b32 {sG}, s8, 1\ns_add_u32 {sG}, {sG}, s9')
A(f's_lshr_b32 s9, {sM}, 3\ns_lshl_b32 {sT}, {sG}, 1\ns_add_u32 {sT}, {sT}, s9\ns_and_b32 {sSub}, {sM}, 7')
A(f's_and_b32 {sA}, {sW}, 1\ns_bfe_u32 {sB}, {sW}, 0x10001')
A('s_waitcnt lgkmcnt(0)')
for (b, p, sz) in ((40, 16, 2097152), (44, 18, 1572864), (48, 20, 524288), (52, 24, 1409024), (56, 26, 2752), (60, 28, 1409024),
                   (64, 30, 1024), (68, 32, 2097152), (72, 36, 268435456), (76, 34, 256)):
    A(f's_mov_b32 s{b}, s{p}\ns_and_b32 s{b+1}, s{p+1}, 0xffff\ns_mov_b32 s{b+2}, {sz}\ns_mov_b32 s{b+3}, 0x20000')
if OPT['stamps']:
    A(f's_lshl_b32 s97, s2, 3\ns_add_u32 s97, s97, {sW}\ns_lshl_b32 s97, s97, 7\ns_add_u32 s97, s97, {WS_STAMP}')
A(f's_cmp_ge_u32 {sW}, 4\ns_cbranch_scc1 Lloader')

stamp('start')
aQ, aK_, aV = 16, 32, 48
XF = lambda p: 64 + 4 * p
WF = lambda p, b: 80 + 12 * p + 4 * b
SUM, SQ, CQ, CK, CV_ = 128, 130, 132, 134, 136
ONES = 'v138'
AX = lambda p: f'v{140+p}'
AW = lambda q: f'v{144+q}'
lz, lpf, lgo = L(), L(), L()
A(f's_cmp_lg_u32 {sW}, 0\ns_cbranch_scc1 {lpf}')
A(f's_mul_i32 s8, s2, 20\nv_add_u32 v2, s8, v0\nv_lshlrev_b32 v2, 7, v2\nv_add_u32 v2, {WS_FL}, v2\nv_mov_b32 v3, 0')
A(f's_mov_b32 exec_lo, 0xfffff\ns_mov_b32 exec_hi, 0\nbuffer_store_dword v3, v2, {SWS}, 0 offen sc1\ns_waitcnt vmcnt(0)')
A(f's_mov_b64 exec, 1\nv_mov_b32 v2, 1\nbuffer_atomic_add v2, v3, {SDBG}, 0 offen sc1\ns_mov_b64 exec, -1\ns_branch {lgo}')
A.label(lpf)
A(f's_cmp_eq_u32 {sW}, 3\ns_cbranch_scc1 {lgo}')
A('s_getpc_b64 s[10:11]')
A.label('Lpc')
A(f's_lshr_b32 s8, s2, 3\ns_lshl_b32 s9, {sW}, 4\ns_add_u32 s8, s8, s9\ns_and_b32 s8, s8, 31\ns_lshl_b32 s8, s8, 10')
A(f's_min_u32 s8, s8, Lcodeend-Lpc-1024\ns_add_u32 s10, s10, s8\ns_addc_u32 s11, s11, 0\ns_and_b32 s10, s10, -16\nv_lshlrev_b32 v2, 4, v0')
A('global_load_dwordx4 v[4:7], v2, s[10:11]')
A.label(lgo)
for r in list(range(16, 64)) + list(range(XF(2), XF(4))) + list(range(WF(2, 0), WF(4, 0))) + list(range(128, 138)):
    A(f'v_mov_b32 v{r}, 0')
A(f'v_mov_b32 {ONES}, 0x3f803f80')
A(f's_xor_b32 s12, {sA}, {sB}\ns_lshl_b32 s12, s12, 1')
A(f'v_and_b32 v2, 31, v0\nv_bfe_u32 v3, v0, 1, 3\nv_lshrrev_b32 v4, 5, v0\nv_xor_b32 v3, v3, v4')
A(f's_lshl_b32 s13, {sA}, 12\nv_lshlrev_b32 v2, 7, v2\nv_add_u32 v2, s13, v2')
for p in range(4):
    A(f's_xor_b32 s13, s12, {p}\ns_lshl_b32 s13, s13, 1\nv_xor_b32 v4, s13, v3\nv_lshl_add_u32 {AX(p)}, v4, 4, v2')
tr_lane_addr(AW(0), 128, 8, 'v2', True, sB)
A(f's_lshl_b32 s13, s12, 11\ns_add_u32 s13, s13, 8192\ns_xor_b32 s14, s12, 2\ns_lshl_b32 s14, s14, 11\ns_add_u32 s14, s14, 8192')
A(f'v_add_u32 {AW(1)}, s14, {AW(0)}\nv_add_u32 {AW(0)}, s13, {AW(0)}')
A('s_mov_b32 s15, 0')
def s1_reads(p):
    out = [f'ds_read_b128 {v(XF(p),4)}, {AX(p)}']
    for b in range(3):
        for i in range(2):
            out.append(f'ds_read_b64_tr_b16 {v(WF(p,b)+2*i,2)}, {AW(p>>1)} offset:{(p&1)*2048 + i*512 + b*8192}')
    return out
def s1_mf(p):
    return [f'{MF} {v(aK_,16)}, {v(WF(p,1),4)}, {v(XF(p),4)}, {v(aK_,16)}',
            f'{MF} {v(aV,16)}, {v(XF(p),4)}, {v(WF(p,2),4)}, {v(aV,16)}',
            f'{MF} {v(aQ,16)}, {v(WF(p,0),4)}, {v(XF(p),4)}, {v(aQ,16)}']
def s1_dots():
    for p in (2, 3):
        for j in range(4):
            A(f'v_dot2c_f32_bf16 v{SUM+(j&1)}, v{XF(p)+j}, {ONES}')
            A(f'v_dot2c_f32_bf16 v{SQ+(j&1)}, v{XF(p)+j}, v{XF(p)+j}')
            A(f'v_dot2c_f32_bf16 v{CQ+(j&1)}, v{WF(p,0)+j}, {ONES}')
            A(f'v_dot2c_f32_bf16 v{CK+(j&1)}, v{WF(p,1)+j}, {ONES}')
            A(f'v_dot2c_f32_bf16 v{CV_+(j&1)}, v{WF(p,2)+j}, {ONES}')
if OPT['stamps']: A('s_mov_b32 s90, 0\ns_mov_b32 s91, 0')
A.label('Ls1')
if OPT['stamps']: A('s_memtime s[86:87]\ns_waitcnt lgkmcnt(0)')
A('s_barrier')
if OPT['stamps']: A('s_memtime s[88:89]\ns_waitcnt lgkmcnt(0)\ns_sub_u32 s86, s88, s86\ns_add_u32 s90, s90, s86\ns_cmp_eq_u32 s15, 0\ns_cselect_b32 s91, s88, s91')
for x in s1_reads(0) + s1_reads(1): A(x)
s1_dots()
A('s_waitcnt lgkmcnt(0)')
rd = s1_reads(2) + s1_reads(3)
mm = s1_mf(0) + s1_mf(1)
k = 0
for i, m in enumerate(mm):
    A(m)
    n = (3, 3, 2, 2, 2, 2)[i]
    for x in rd[k:k+n]: A(x)
    k += n
A('s_mov_b32 s13, 32768\ns_cmp_eq_u32 s15, 4\ns_cselect_b32 s13, -131072, s13\ns_add_u32 s15, s15, 1')
A('s_waitcnt lgkmcnt(7)')
m2 = s1_mf(2)
A(m2[0]); A(f'v_add_u32 {AX(0)}, s13, {AX(0)}\nv_add_u32 {AX(1)}, s13, {AX(1)}')
A(m2[1]); A(f'v_add_u32 {AX(2)}, s13, {AX(2)}\nv_add_u32 {AX(3)}, s13, {AX(3)}')
A(m2[2]); A(f'v_add_u32 {AW(0)}, s13, {AW(0)}\nv_add_u32 {AW(1)}, s13, {AW(1)}')
A('s_waitcnt lgkmcnt(0)')
for m in s1_mf(3): A(m)
A('s_cmp_lt_u32 s15, 8\ns_cbranch_scc1 Ls1')
stamp('s1_loop_end')
stampv('s1_c0', 's91')
if OPT['stamps']: A('s_add_u32 s90, s90, s91')
stampv('x0', 's90')
s1_dots()
for r in (SUM, SQ, CQ, CK, CV_): A(f'v_add_f32 v{r}, v{r}, v{r+1}')
A(f'v_mov_b32 v{CV_+1}, v{CV_}')
half_sum2(f'v{SUM}', f'v{SQ}'); half_sum2(f'v{CQ}', f'v{CK}'); half_sum2(f'v{CV_}', f'v{CV_+1}')
A(f'v_and_b32 v2, 31, v0\nv_lshlrev_b32 v2, 4, v2\ns_lshl_b32 s13, {sA}, 9\nv_add_u32 v2, s13, v2')
A(f'v_lshrrev_b32 v3, 5, v0\nv_lshl_add_u32 v3, v3, 2, v2\ns_lshl_b32 s13, {sB}, 3\nv_add_u32 v3, s13, v3')
A(f's_lshl_b32 s13, {sB}, 9\ns_lshl_b32 s14, {sA}, 8\ns_add_u32 s14, s14, s13\nv_lshlrev_b32 v4, 2, v0\nv_add_u32 v5, s14, v4')
A(f'ds_write_b32 v3, v{SUM} offset:{L_ST}\nds_write_b32 v5, v{CQ} offset:{L_CS}\nds_write_b32 v5, v{CV_} offset:{L_CV}')
A('v_xor_b32 v5, 256, v5')
A(f's_lshl_b32 s13, {sW}, 9\ns_add_u32 s13, s13, {L_PR}\nv_add_u32 v6, s13, v4')
A(f'v_lshrrev_b32 v7, 5, v0\nv_lshlrev_b32 v7, 4, v7\nv_add_u32 v7, s13, v7')
A('s_waitcnt lgkmcnt(0)\ns_barrier')
stamp('s1_bs1')
A(f'ds_read_b128 v[8:11], v2 offset:{L_ST}\nds_read_b32 v12, v5 offset:{L_CS}\nds_read_b32 v13, v5 offset:{L_CV}')
A(f's_lshl_b32 s13, {sT}, 1\ns_add_u32 s13, s13, {sA}\ns_lshl_b32 s16, s13, 3\ns_add_u32 s16, s16, {sSub}\ns_lshl_b32 s16, s16, 13')
A(f's_lshl_b32 s14, {sB}, 11\ns_add_u32 s16, s16, s14\ns_add_u32 s17, s16, 4096')
A(f's_lshl_b32 s18, s13, 4\ns_lshl_b32 s14, {sSub}, 1\ns_add_u32 s18, s18, s14\ns_add_u32 s18, s18, {sB}')
A(f'v_lshlrev_b32 v14, 4, v0')
A(f's_mul_i32 s13, {sA}, {TS}\ns_add_u32 s13, s13, {L_KV + 8*TS}\ns_lshl_b32 s14, {sB}, 11\ns_add_u32 s14, s14, s13\nv_add_u32 v15, s14, v14')
A(f's_mul_i32 s14, {sB}, 2080\ns_add_u32 s14, s14, s13\ns_add_u32 s14, s14, 4096\nv_add_u32 v146, s14, v14')
A(f's_lshl_b32 s13, {sA}, 12\ns_lshl_b32 s14, {sB}, 11\ns_add_u32 s13, s13, s14\ns_add_u32 s13, s13, {L_Q}\nv_add_u32 v147, s13, v14')
A('s_waitcnt lgkmcnt(0)')
RS, MRS, CSV = 148, 150, 152
A(f'v_add_f32 v8, v8, v10\nv_add_f32 v9, v9, v11\nv_mul_f32 v8, {hex(f2u(1/512))}, v8\nv_mul_f32 v9, {hex(f2u(1/512))}, v9')
A(f'v_fma_f32 v9, -v8, v8, v9\nv_max_f32 v9, 0, v9\nv_add_f32 v9, {hex(f2u(1e-5))}, v9\nv_rsq_f32 v{RS}, v9')
A(f'v_add_f32 v{CQ}, v{CQ}, v12\nv_add_f32 v{CSV}, v{CV_}, v13\nv_mul_f32 v{MRS}, v8, v{RS}')
A(f'v_cmp_gt_u32 vcc, 32, v0\nv_cndmask_b32 v8, v{MRS}, v{RS}, vcc')
A(f'ds_write_b32 v6, v8\nds_write_b32 v6, v{CQ} offset:256')
tK, tRS, tMRS, tQ = 64, 80, 96, 112
A('s_waitcnt lgkmcnt(0)')
for q in range(4): A(f'ds_read_b128 {v(tK+4*q,4)}, v7 offset:{384+32*q}')
for q in range(4): A(f'ds_read_b128 {v(tMRS+4*q,4)}, v7 offset:{128+32*q}')
for q in range(4): A(f'ds_read_b128 {v(tRS+4*q,4)}, v7 offset:{32*q}')
for q in range(4): A(f'ds_read_b128 {v(tQ+4*q,4)}, v7 offset:{256+32*q}')
KF, VF, QF = 156, 164, 172
def pk_epi(acc, t, mul_b, rs_b, out, t_is_scale=None):
    pass
A('s_waitcnt lgkmcnt(12)')
for j in range(8): A(f'v_pk_mul_f32 {v(tK+2*j,2)}, {v(tK+2*j,2)}, {v(MRS,2)} op_sel_hi:[1,0]')
for j in range(8): A(f'v_pk_fma_f32 {v(tK+2*j,2)}, {v(aK_+2*j,2)}, {v(RS,2)}, {v(tK+2*j,2)} op_sel_hi:[1,0,1] neg_lo:[0,0,1] neg_hi:[0,0,1]')
for j in range(8): A(f'v_cvt_pk_bf16_f32 v{KF+j}, v{tK+2*j}, v{tK+2*j+1}')
A(f'buffer_store_dwordx4 {v(KF,4)}, v14, {SWS}, s16 offen sc1\nbuffer_store_dwordx4 {v(KF+4,4)}, v14, {SWS}, s16 offen offset:1024 sc1')
A('s_waitcnt lgkmcnt(4)')
for j in range(8): A(f'v_pk_mul_f32 {v(tMRS+2*j,2)}, {v(tMRS+2*j,2)}, {v(CSV,2)} op_sel_hi:[1,0]')
for j in range(8): A(f'v_pk_fma_f32 {v(tMRS+2*j,2)}, {v(aV+2*j,2)}, {v(tRS+2*j,2)}, {v(tMRS+2*j,2)} neg_lo:[0,0,1] neg_hi:[0,0,1]')
for j in range(8): A(f'v_cvt_pk_bf16_f32 v{VF+j}, v{tMRS+2*j}, v{tMRS+2*j+1}')
A(f'buffer_store_dwordx4 {v(VF,4)}, v14, {SWS}, s17 offen sc1\nbuffer_store_dwordx4 {v(VF+4,4)}, v14, {SWS}, s17 offen offset:1024 sc1')
stamp('s1_stored')
A(f'ds_write_b128 v15, {v(KF,4)}\nds_write_b128 v15, {v(KF+4,4)} offset:1024\nds_write_b128 v146, {v(VF,4)}\nds_write_b128 v146, {v(VF+4,4)} offset:1040')
A(f'v_mul_f32 v{RS}, {hex(f2u(CSC))}, v{RS}\nv_mul_f32 v{MRS}, {hex(f2u(CSC))}, v{MRS}')
A('s_waitcnt lgkmcnt(4)')
for j in range(8): A(f'v_pk_mul_f32 {v(tQ+2*j,2)}, {v(tQ+2*j,2)}, {v(MRS,2)} op_sel_hi:[1,0]')
for j in range(8): A(f'v_pk_fma_f32 {v(tQ+2*j,2)}, {v(aQ+2*j,2)}, {v(RS,2)}, {v(tQ+2*j,2)} op_sel_hi:[1,0,1] neg_lo:[0,0,1] neg_hi:[0,0,1]')
for j in range(8): A(f'v_cvt_pk_bf16_f32 v{QF+j}, v{tQ+2*j}, v{tQ+2*j+1}')
A(f'ds_write_b128 v147, {v(QF,4)}\nds_write_b128 v147, {v(QF+4,4)} offset:1024')
att_masks()
A('s_waitcnt vmcnt(0)')
set_flag('s18', 'v2', 'v3')
stamp('s1_flag')
A('s_waitcnt lgkmcnt(0)\ns_branch Latt')

A.label('Lloader')
sI = 's82'
A(f's_and_b32 {sI}, {sW}, 3')
VX0, VX1, VWQ, VWO = 'v240', 'v241', 'v242', 'v243'
A(f'v_lshrrev_b32 v2, 3, v0\nv_and_b32 v3, 7, v0\nv_lshrrev_b32 v4, 4, v0\nv_xor_b32 v4, v4, v3')
A(f's_lshl_b32 s13, {sI}, 14\nv_lshlrev_b32 v5, 10, v2\nv_add_u32 v5, s13, v5\nv_lshl_add_u32 {VX0}, v4, 4, v5')
A(f'v_xor_b32 v4, 4, v4\nv_add_u32 v5, 8192, v5\nv_lshl_add_u32 {VX1}, v4, 4, v5')
A(f'v_bfe_u32 v4, v0, 4, 1\nv_lshlrev_b32 v4, 2, v4\nv_xor_b32 v4, v4, v3\nv_lshlrev_b32 v4, 4, v4')
A(f'v_lshl_add_u32 {VWO}, v2, 10, v4')
A(f's_mul_i32 s13, {sI}, {16*3072}\nv_mul_u32_u24 v5, 3072, v2\nv_add3_u32 {VWQ}, v5, v4, s13')
A(f's_lshl_b32 s16, {sT}, 16\ns_lshl_b32 s17, {sSub}, 7\ns_lshl_b32 s18, {sI}, 11\ns_mov_b32 s19, 0')
def issue_chunk():
    A(f's_mov_b32 m0, s18'); dma(VX0, SX, 's16')
    A(f's_add_u32 m0, s18, 1024'); dma(VX1, SX, 's16')
    for b in (1, 2, 0):
        for e in range(2):
            A(f's_add_u32 s13, s17, {b*1024 + e*24576}\ns_add_u32 m0, s18, {8192 + b*8192 + e*1024}'); dma(VWQ, SWQ, 's13')
    A(f's_add_u32 s16, s16, 128\ns_add_u32 s17, s17, {64*3072}\ns_add_u32 s18, s18, {SLOT}\ns_add_u32 s19, s19, 1')
A.label('Lld0')
issue_chunk()
A('s_cmp_lt_u32 s19, 5\ns_cbranch_scc1 Lld0')
A(f's_sub_u32 s18, s18, {5*SLOT}')
A('s_waitcnt vmcnt(32)\ns_barrier')
A.label('Lld1')
A('s_waitcnt vmcnt(24)\ns_barrier')
issue_chunk()
A('s_cmp_lt_u32 s19, 8\ns_cbranch_scc1 Lld1')
def issue_wo(part):
    A(f's_lshl_b32 s16, {sI}, 16\ns_lshl_b32 s13, {sSub}, 7\ns_add_u32 s16, s16, s13\ns_add_u32 s16, s16, {part*256*1024}')
    A(f's_lshl_b32 s18, {sI}, 13\ns_add_u32 s18, s18, {RA + part*SLOT}')
    for e in range(8):
        A(f's_add_u32 s13, s16, {e*8192}\ns_add_u32 m0, s18, {e*1024}'); dma(VWO, SWO, 's13')
A('s_waitcnt vmcnt(24)\ns_barrier')
issue_wo(0)
A('s_waitcnt vmcnt(24)\ns_barrier')
issue_wo(1)
A('s_waitcnt vmcnt(24)\ns_barrier')
A('s_waitcnt vmcnt(16)\ns_barrier')
stamp('ld_a')
A('v_mov_b32 v2, 0')
poll('v2', 'v3', 1, SDBG, want_ge=256)
att_masks()
A('s_barrier')
A(f'v_lshrrev_b32 v2, 2, v0\nv_mul_u32_u24 v2, {TS}, v2\nv_and_b32 v3, 3, v0\nv_mul_u32_u24 v3, 1040, v3\nv_add3_u32 v2, v2, v3, 0')
for r in range(4, 8): A(f'v_mov_b32 v{r}, 0x3f803f80')
A(f's_mov_b32 exec_lo, -1\ns_mov_b32 exec_hi, 0xff\nds_write_b128 v2, v[4:7] offset:{L_KV + 4096 + 1024}\ns_mov_b64 exec, -1')
lnh = L()
A(f's_add_u32 s13, {sT}, {sI}\ns_cmp_lt_u32 s13, 4\ns_cbranch_scc1 {lnh}')
A(f's_sub_u32 s13, s13, 4\ns_lshl_b32 s13, s13, 1')
A(f's_lshl_b32 s14, s13, 4\ns_lshl_b32 s15, {sSub}, 1\ns_add_u32 s14, s14, s15')
A(f'v_lshrrev_b32 v2, 1, v0\nv_lshlrev_b32 v2, 4, v2\nv_and_b32 v3, 1, v0\nv_add3_u32 v2, v2, v3, s14\nv_lshlrev_b32 v2, 7, v2\nv_add_u32 v2, {WS_FL + F1*128}, v2')
A(f's_lshl_b32 s16, s13, 3\ns_add_u32 s16, s16, {sSub}\ns_lshl_b32 s16, s16, 13')
A(f's_mul_i32 s18, {sI}, {2*TS}\ns_add_u32 s18, s18, {L_KV}\nv_lshlrev_b32 v4, 4, v0')
poll('v2', 'v3', 4)
stamp('ld_b')
for t in range(2):
    for i in range(8):
        lo = t * TS + (i * 1024 if i < 4 else 4096 + (i - 4) * 1040)
        A(f's_add_u32 s13, s16, {t*65536 + i*1024}\ns_add_u32 m0, s18, {lo}'); dma('v4', SWS, 's13', ' sc1')
A.label(lnh)
A('s_waitcnt vmcnt(0) lgkmcnt(0)')

A.label('Latt')
KFa = lambda t: 16 + 4 * t
QFa, CL, CF = 52, 56, 72
S1 = lambda t: 88 + 16 * t
sTau = 's20'
A(f's_lshr_b32 s13, {sW}, 2\ns_and_b32 s14, {sW}, 3\ns_lshl_b32 s21, {sT}, 1\ns_add_u32 s21, s21, s13')
A(f's_sub_u32 {sTau}, 8, s21\ns_max_i32 {sTau}, {sTau}, 0')
A(f's_mul_i32 s15, s13, {TS}\ns_add_u32 s15, s15, {L_KV}\ns_lshl_b32 s16, s14, 10\ns_add_u32 s16, s16, s15')
A(f'v_lshlrev_b32 v232, 4, v0\nv_add_u32 v233, s16, v232\nv_add_u32 v234, {8*TS}, v233')
A(f's_lshl_b32 s16, {sW}, 10\ns_add_u32 s16, s16, {L_Q}\nv_add_u32 v235, s16, v232')
A(f's_lshr_b32 s16, s14, 1\ns_mul_i32 s16, s16, 2080\ns_add_u32 s16, s16, s15\ns_add_u32 s16, s16, 4096')
A(f's_lshl_b32 s17, {sA}, 8\nv_or_b32 v236, s17, v232\nv_mov_b32 v237, 1024\nv_and_b32 v238, 16, v0\nv_cmp_eq_u32 vcc, 0, v238\nv_cndmask_b32 v236, v237, v236, vcc')
A(f'v_add_u32 v236, s16, v236\nv_add_u32 v237, {8*TS}, v236')
A(f's_lshl_b32 s22, s21, 5\ns_lshl_b32 s13, {sSub}, 2\ns_add_u32 s22, s22, s13\ns_add_u32 s22, s22, s14')
A('s_barrier')
stamp('kv_ready')
A(f'ds_read_b128 {v(QFa,4)}, v235\nds_read_b128 {v(KFa(8),4)}, v234')
for t in range(7, -1, -1): A(f'ds_read_b128 {v(KFa(t),4)}, v233 offset:{t*TS}')
def smf(t, dst, cmid):
    c = CL if t == 8 else (CF if t == 0 else cmid)
    mfma(dst, KFa(t), QFa, c)
M0_, M1_ = 'v238', 'v239'
A(f'v_mov_b32 {M0_}, 0xff800000\nv_mov_b32 {M1_}, 0xff800000')
def maxgrp(t):
    sk = L()
    if t < 8: A(f's_cmp_gt_u32 {sTau}, {t}\ns_cbranch_scc1 {sk}')
    for j in range(8):
        m = M0_ if j % 2 == 0 else M1_
        A(f'v_max3_f32 {m}, v{S1(t)+2*j}, v{S1(t)+2*j+1}, {m}')
    if t < 8: A.label(sk)
order = list(range(8, -1, -1))
for i, t in enumerate(order):
    A(f's_waitcnt lgkmcnt({8-i})')
    smf(t, S1(t), '0')
    if i >= 2: maxgrp(order[i-2])
VB = lambda t: 184 + 8 * (t % 3)
def vread(t):
    a = ('v237', 0) if t == 8 else ('v236', t * TS)
    A(f'ds_read_b128 {v(VB(t),4)}, {a[0]} offset:{a[1]}\nds_read_b128 {v(VB(t)+4,4)}, {a[0]} offset:{a[1]+1040}')
maxgrp(1); maxgrp(0)
A(f'v_max_f32 {M0_}, {M0_}, {M1_}\nv_mov_b32 {M1_}, {M0_}\nv_permlane32_swap_b32 {M0_}, {M1_}\nv_max_f32 {M0_}, {M0_}, {M1_}')
stamp('att_p1')
NM, OA = 136, 152
SB_ = lambda t: 88 + 16 * (t % 3)
PB = lambda t: 168 + 8 * (t % 2)
for r in range(16): A(f'v_sub_f32 v{CL+r}, v{CL+r}, {M0_}')
smf(8, SB_(8), NM)
for r in range(16): A(f'v_sub_f32 v{NM+r}, 0, {M0_}')
vread(8); vread(7)
smf(7, SB_(7), NM)
for r in range(16): A(f'v_sub_f32 v{CF+r}, v{CF+r}, {M0_}')
def pv(t, a, first):
    mfma(OA, VB(t) + 4 * a, PB(t) + 4 * a, '0' if first else None)
tails = {}
for t in order:
    if t < 8:
        tails[t] = L('Ltail')
        A(f's_cmp_gt_u32 {sTau}, {t}\ns_cbranch_scc1 {tails[t]}')
    ex = [f'v_exp_f32 v{SB_(t)+r}, v{SB_(t)+r}' for r in range(16)]
    cv = [f'v_cvt_pk_bf16_f32 v{PB(t)+j}, v{SB_(t)+2*j}, v{SB_(t)+2*j+1}' for j in range(8)]
    seq = ex[0:4] + ['PV0'] + ex[4:6] + cv[0:2] + ex[6:8] + ['PV1'] + ex[8:10] + cv[2:4] + ex[10:12] + ['SM'] + ex[12:16] + cv[4:8]
    for x in seq:
        if x == 'PV0':
            if t < 8:
                A('s_waitcnt lgkmcnt(2)' if t >= 1 else 's_waitcnt lgkmcnt(2)')
                pv(t + 1, 0, t + 1 == 8)
        elif x == 'PV1':
            if t < 8: pv(t + 1, 1, False)
            if t < 8 and t - 1 >= 0: vread(t - 1)
        elif x == 'SM':
            if t - 2 >= 0: smf(t - 2, SB_(t - 2), NM)
        else: A(x)
ldone = L('Lattdone')
A('s_waitcnt lgkmcnt(0)')
pv(0, 0, False); pv(0, 1, False)
for t in range(7, -1, -1):
    A(f's_branch {ldone}')
    A.label(tails[t])
    A('s_waitcnt lgkmcnt(0)')
    pv(t + 1, 0, t + 1 == 8); pv(t + 1, 1, False)
A.label(ldone)
A(f's_lshl_b32 s13, s22, 10\ns_add_u32 s13, s13, {WS_O}\ns_add_u32 s22, s22, {F2}')
A(f'v_rcp_f32 v238, v{OA+8}')
for j in range(4): A(f'v_pk_mul_f32 {v(OA+2*j,2)}, {v(OA+2*j,2)}, v[238:239] op_sel_hi:[1,0]')
for j in range(4): A(f'v_cvt_pk_bf16_f32 v{168+j}, v{OA+2*j}, v{OA+2*j+1}')
A(f'buffer_store_dwordx4 v[168:171], v232, {SWS}, s13 offen sc1')
stamp('att_end')
A('s_barrier')
A(f's_cmp_ge_u32 {sW}, 4\ns_cbranch_scc1 Lloader2')

sTile = 's23'
A(f's_lshl_b32 {sTile}, {sT}, 1\ns_add_u32 {sTile}, {sTile}, {sA}')
accK, accS = 0, 0
AK, AS = 16, 32
OF = lambda i: 48 + 4 * i
WOF = lambda i, c: 112 + 8 * i + 4 * c
HRES = 248
tr_lane_addr('v2', 128, 4, 'v4', True, sB)
A(f's_lshl_b32 s13, {sB}, 15\ns_add_u32 s13, s13, {RA}\nv_add_u32 v2, s13, v2\nv_xor_b32 v3, 64, v2')
A(f'v_and_b32 v4, 31, v0\nv_lshlrev_b32 v4, 10, v4\nv_lshrrev_b32 v5, 5, v0\nv_lshl_add_u32 v4, v5, 3, v4')
A(f's_lshl_b32 s24, {sTile}, 15\ns_lshl_b32 s13, {sSub}, 7\ns_add_u32 s24, s24, s13\ns_lshl_b32 s13, {sB}, 6\ns_add_u32 s24, s24, s13')
for q in range(4): A(f'buffer_load_dwordx2 {v(8+2*q,2)}, v4, {SX}, s24 offen offset:{16*q}')
A('s_waitcnt vmcnt(4)')
set_flag('s22', 'v6', 'v7')
stamp('o_flag')
for i in range(16):
    for c in range(2):
        for ii in range(2): trd(WOF(i, c) + 2 * ii, 'v2' if c == 0 else 'v3', i * 2048 + ii * 1024)
A(f's_lshl_b32 s13, {sTile}, 5\ns_lshl_b32 s14, {sB}, 4\ns_add_u32 s13, s13, s14\nv_add_u32 v5, s13, v0\nv_lshlrev_b32 v5, 7, v5\nv_add_u32 v5, {WS_FL + F2*128}, v5')
A(f's_lshl_b32 s16, s13, 10\ns_add_u32 s16, s16, {WS_O}\nv_lshlrev_b32 v244, 4, v0')
A('s_waitcnt vmcnt(1)')
for q in range(4):
    for j in range(2):
        A(f'v_lshlrev_b32 v{AK+4*q+2*j}, 16, v{8+2*q+j}\nv_and_b32 v{AK+4*q+2*j+1}, 0xffff0000, v{8+2*q+j}')
A('s_waitcnt lgkmcnt(0)\ns_barrier')
poll('v5', 'v6', 16)
stamp('s3_polled')
for i in range(16):
    if i % 4 == 0 and i: A('s_add_u32 s16, s16, 4096')
    A(f'buffer_load_dwordx4 {v(OF(i),4)}, v244, {SWS}, s16 offen offset:{(i%4)*1024} sc1')
A(f's_lshl_b32 s13, {sW}, 12\ns_add_u32 s13, s13, {A_SCR3}\nv_add_u32 v2, s13, v244\ns_xor_b32 s13, {sW}, 2\ns_lshl_b32 s13, s13, 12\ns_add_u32 s13, s13, {A_SCR3}\nv_add_u32 v3, s13, v244')
A(f's_lshl_b32 s13, {sSub}, 1\ns_add_u32 s13, s13, {sB}')
A(f's_lshl_b32 s14, {sTile}, 4\ns_add_u32 s14, s14, s13')
A(f's_lshl_b32 s16, s14, 11\ns_add_u32 s16, s16, {WS_H}\ns_lshl_b32 s17, s14, 8\ns_add_u32 s17, s17, {WS_ST}\ns_add_u32 s18, s14, {F3}\nv_lshlrev_b32 v5, 2, v0')
A(f'v_mov_b32 v6, 0x3f803f80\nv_mov_b32 v8, 0\nv_mov_b32 v9, 0\nv_mov_b32 v10, 0\nv_mov_b32 v11, 0')
for i in range(16):
    A(f's_waitcnt vmcnt({15-i})')
    mfma(AS, WOF(i, 1), OF(i), '0' if i == 0 else None)
    mfma(AK, WOF(i, 0), OF(i))
stamp('s3_mfma')
for q in range(4): A(f'ds_write_b128 v2, {v(AS+4*q,4)} offset:{q*1024}')
A('s_waitcnt lgkmcnt(0)\ns_barrier')
for q in range(4): A(f'ds_read_b128 {v(AS+4*q,4)}, v3 offset:{q*1024}')
for q in range(4):
    A(f's_waitcnt lgkmcnt({3-q})')
    for j in range(2): A(f'v_pk_add_f32 {v(AK+4*q+2*j,2)}, {v(AK+4*q+2*j,2)}, {v(AS+4*q+2*j,2)}')
    for j in range(2): A(f'v_cvt_pk_bf16_f32 v{HRES+2*q+j}, v{AK+4*q+2*j}, v{AK+4*q+2*j+1}')
    if q % 2: A(f'buffer_store_dwordx4 {v(HRES+2*q-2,4)}, v244, {SWS}, s16 offen offset:{(q//2)*1024} sc1')
for j in range(8):
    A(f'v_dot2c_f32_bf16 v{8+(j&1)}, v{HRES+j}, v6\nv_dot2c_f32_bf16 v{10+(j&1)}, v{HRES+j}, v{HRES+j}')
A('v_add_f32 v8, v8, v9\nv_add_f32 v10, v10, v11')
half_sum2('v8', 'v10')
A(f'buffer_store_dword v8, v5, {SWS}, s17 offen sc1')
A('s_waitcnt vmcnt(0)')
set_flag('s18', 'v6', 'v7')
stamp('s3_flag')
A('s_barrier')
A(f's_cmp_eq_u32 {sM}, 15\ns_cbranch_scc1 Ls4skip')
AC = lambda b: 16 + 16 * b
HF = lambda k: 64 + 4 * k
BF = lambda s, b: 192 + 8 * (s % 3) + 4 * b
B1T = HF(20)
STT = 216
sT4 = 's25'
A(f's_lshl_b32 {sT4}, {sG}, 2\ns_add_u32 {sT4}, {sT4}, {sW}')
tr_lane_addr('v2', 192, 4, 'v4', False)
A(f'v_add_u32 v3, 49152, v2')
A(f'v_lshrrev_b32 v4, 5, v0\nv_lshlrev_b32 v4, 4, v4\nv_add_u32 v4, {RA}, v4')
for b in range(3):
    for q in range(4):
        A(f'ds_read_b128 {v(AC(b)+4*q,4)}, v4 offset:{A_CSF-RA + b*128 + 32*q}')
        A(f'ds_read_b128 {v(B1T+16*b+4*q,4)}, v4 offset:{A_B1F-RA + b*128 + 32*q}')
def w1rd(ks, b, dst):
    a = 'v2' if ks < 16 else 'v3'
    for ii in range(2): trd(dst + 2 * ii, a, (ks % 16) * 3072 + ii * 1536 + b * 64)
for s in range(2):
    for b in range(2): w1rd(s, b, BF(s, b))
A(f's_lshl_b32 s13, {sT4}, 4\nv_add_u32 v5, s13, v0\nv_lshlrev_b32 v5, 7, v5\nv_add_u32 v5, {WS_FL + F3*128}, v5')
A(f's_lshl_b32 s16, {sT4}, 15\ns_add_u32 s16, s16, {WS_H}\ns_lshl_b32 s17, {sT4}, 12\ns_add_u32 s17, s17, {WS_ST}\nv_lshlrev_b32 v7, 2, v0')
poll('v5', 'v6', 16)
stamp('s4_polled')
for i in range(16): A(f'buffer_load_dword v{STT+i}, v7, {SWS}, s17 offen offset:{i*256} sc1')
def hload(k):
    if k % 4 == 0 and k: A('s_add_u32 s16, s16, 4096')
    A(f'buffer_load_dwordx4 {v(HF(k),4)}, v244, {SWS}, s16 offen offset:{(k%4)*1024} sc1')
for k in range(20): hload(k)
A(f's_mul_i32 s17, {sT4}, 86\ns_mul_i32 s13, {sM}, 6\ns_add_u32 s17, s17, s13\ns_lshl_b32 s17, s17, 10\ns_add_u32 s17, s17, {WS_H1}')
A(f's_lshl_b32 s18, {sT4}, 4\ns_add_u32 s18, s18, {sM}\ns_add_u32 s18, s18, {F4}')
A('s_waitcnt vmcnt(20) lgkmcnt(0)')
for st in (8, 4, 2, 1):
    for i in range(st): A(f'v_add_f32 v{STT+i}, v{STT+i}, v{STT+i+st}')
MEAN, STD, RS4 = 232, 234, 236
A(f'v_mov_b32 v{STT+1}, v{STT}\nv_permlane32_swap_b32 v{STT}, v{STT+1}')
A(f'v_mul_f32 v{MEAN}, {hex(f2u(1/512))}, v{STT}\nv_mul_f32 v{STT+1}, {hex(f2u(1/512))}, v{STT+1}')
A(f'v_fma_f32 v{STT+1}, -v{MEAN}, v{MEAN}, v{STT+1}\nv_max_f32 v{STT+1}, 0, v{STT+1}\nv_add_f32 v{STT+1}, {hex(f2u(1e-5))}, v{STT+1}')
A(f'v_rsq_f32 v{RS4}, v{STT+1}\nv_sqrt_f32 v{STD}, v{STT+1}')
for b in range(3):
    for j in range(8): A(f'v_pk_mul_f32 {v(AC(b)+2*j,2)}, {v(AC(b)+2*j,2)}, {v(MEAN,2)} op_sel_hi:[1,0]')
    for j in range(8): A(f'v_pk_fma_f32 {v(AC(b)+2*j,2)}, {v(B1T+16*b+2*j,2)}, {v(STD,2)}, {v(AC(b)+2*j,2)} op_sel_hi:[1,0,1] neg_lo:[0,0,1] neg_hi:[0,0,1]')
for k in range(20, 32): hload(k)
for ks in range(32):
    A(f's_waitcnt vmcnt({31-ks}) lgkmcnt({4 if ks > 0 else 0})' if ks < 31 else 's_waitcnt vmcnt(0) lgkmcnt(4)')
    mfma(AC(0), BF(ks, 0), HF(ks))
    if ks + 2 < 32: w1rd(ks + 2, 0, BF(ks + 2, 0))
    else: w1rd(2 * (ks - 30), 2, 216 + 8 * (ks - 30))
    mfma(AC(1), BF(ks, 1), HF(ks))
    if ks + 2 < 32: w1rd(ks + 2, 1, BF(ks + 2, 1))
    else: w1rd(2 * (ks - 30) + 1, 2, 220 + 8 * (ks - 30))
stamp('s4_phA')
BF2 = lambda s: 216 + 4 * (s % 4)
def epi_ops(b, dst):
    ops = []
    for j in range(8):
        r0, r1 = AC(b) + 2 * j, AC(b) + 2 * j + 1
        ops += [f'v_max_f32 v{r0}, 0, v{r0}', f'v_max_f32 v{r1}, 0, v{r1}', f'v_mul_f32 v{r0}, v{RS4}, v{r0}', f'v_mul_f32 v{r1}, v{RS4}, v{r1}',
                f'v_mul_f32 v{r0}, v{r0}, v{r0}', f'v_mul_f32 v{r1}, v{r1}, v{r1}', f'v_cvt_pk_bf16_f32 v{dst+j}, v{r0}, v{r1}']
        if j == 3: ops.append(('st', b, 0, dst))
        if j == 7: ops.append(('st', b, 1, dst + 4))
    return ops
def h1store(b, hf, src):
    sk = None
    if b > 0:
        sk = L(); A(f's_cmp_eq_u32 {sM}, 14\ns_cbranch_scc1 {sk}')
    off = (2 * b + hf) * 1024
    if off < 4096: A(f'buffer_store_dwordx4 {v(src,4)}, v244, {SWS}, s17 offen offset:{off} sc1')
    else: A(f's_add_u32 s13, s17, 4096\nbuffer_store_dwordx4 {v(src,4)}, v244, {SWS}, s13 offen offset:{off-4096} sc1')
    if sk: A.label(sk)
ep = epi_ops(0, 192) + epi_ops(1, 200)
pos = 0
for ks in range(32):
    A(f's_waitcnt lgkmcnt({min(6, 2*(31-ks))})')
    mfma(AC(2), BF2(ks), HF(ks))
    if ks + 4 < 32: w1rd(ks + 4, 2, BF2(ks + 4))
    if ks >= 1:
        n = 4
        for x in ep[pos:pos+n]:
            if isinstance(x, tuple): h1store(x[1], x[2], x[3])
            else: A(x)
        pos += n
assert pos >= len(ep)
stamp('s4_phB')
A('s_barrier')
for j in range(16): A(f'v_max_f32 v{AC(2)+j}, 0, v{AC(2)+j}')
for j in range(8): A(f'v_pk_mul_f32 {v(AC(2)+2*j,2)}, {v(AC(2)+2*j,2)}, {v(RS4,2)} op_sel_hi:[1,0]')
for j in range(8): A(f'v_pk_mul_f32 {v(AC(2)+2*j,2)}, {v(AC(2)+2*j,2)}, {v(AC(2)+2*j,2)}')
for j in range(8): A(f'v_cvt_pk_bf16_f32 v{208+j}, v{AC(2)+2*j}, v{AC(2)+2*j+1}')
h1store(2, 0, 208); h1store(2, 1, 212)
A('s_waitcnt vmcnt(0)')
set_flag('s18', 'v6', 'v7')
stamp('s4_flag')
A('s_branch Ls5')
A.label('Ls4skip')
A('s_barrier')
A.label('Ls5')
NW = 40
GF = lambda s: 48 + 4 * (s % NW)
B5 = lambda s, c: 208 + 8 * (s % 3) + 4 * c
A(f'v_lshrrev_b32 v4, 5, v0\nv_lshlrev_b32 v4, 3, v4\ns_lshl_b32 s13, {sSub}, 7\ns_lshl_b32 s14, {sB}, 6\ns_add_u32 s13, s13, s14')
for q in range(4): A(f'buffer_load_dwordx2 {v(8+2*q,2)}, v4, {SB2}, s13 offen offset:{16*q}')
tr_lane_addr('v2', 128, 4, 'v4', True, sB)
A(f's_mul_i32 s13, {sB}, 49152\ns_add_u32 s13, s13, {RB}\nv_add_u32 v234, s13, v2\nv_xor_b32 v235, 64, v234')
A(f's_mul_i32 s13, {sB}, 30720\ns_add_u32 s13, s13, {A_W2}\nv_add_u32 v232, s13, v2\nv_xor_b32 v233, 64, v232')
A(f's_lshl_b32 s14, {sA}, 12\ns_add_u32 s13, s13, s14\ns_add_u32 s13, s13, 8192\nv_add_u32 v236, s13, v244')
A(f's_xor_b32 s15, {sB}, 1\ns_mul_i32 s13, s15, 30720\ns_add_u32 s13, s13, s14\ns_add_u32 s13, s13, {A_W2 + 8192}\nv_add_u32 v237, s13, v244')
def w2rd(s):
    for c in range(2):
        if s < 15: a, off = ('v232', 'v233')[c], s * 2048
        elif s < 39: a, off = ('v234', 'v235')[c], (s - 15) * 2048
        else: a, off = ('v232', 'v233')[c], (s - 39) * 2048
        for ii in range(2): trd(B5(s, c) + 2 * ii, a, off + ii * 1024)
w2rd(0); w2rd(1)
A(f's_lshl_b32 s13, {sTile}, 4\ns_mul_i32 s14, {sB}, 7\ns_add_u32 s13, s13, s14\nv_add_u32 v5, s13, v0\nv_lshlrev_b32 v5, 7, v5\nv_add_u32 v5, {WS_FL + F4*128}, v5')
A(f's_mul_i32 s16, {sTile}, 86\ns_mul_i32 s13, {sB}, 43\ns_add_u32 s16, s16, s13\ns_lshl_b32 s16, s16, 10\ns_add_u32 s16, s16, {WS_H1}')
A('s_waitcnt vmcnt(0)')
for j in range(8):
    A(f'v_lshlrev_b32 v{AK+2*j}, 16, v{8+j}\nv_and_b32 v{AK+2*j+1}, 0xffff0000, v{8+j}')
    A(f'v_lshlrev_b32 v6, 16, v{HRES+j}\nv_and_b32 v7, 0xffff0000, v{HRES+j}')
    A(f'v_add_f32 v{AK+2*j}, v{AK+2*j}, v6\nv_add_f32 v{AK+2*j+1}, v{AK+2*j+1}, v7')
poll('v5', 'v6', 8)
stamp('s5_polled')
def gload(s):
    if s % 4 == 0 and s: A('s_add_u32 s16, s16, 4096')
    A(f'buffer_load_dwordx4 {v(GF(s),4)}, v244, {SWS}, s16 offen offset:{(s%4)*1024} sc1')
for s in range(NW): gload(s)
A(f'v_and_b32 v4, 31, v0\nv_lshlrev_b32 v4, 10, v4\nv_lshrrev_b32 v5, 5, v0\nv_lshl_add_u32 v4, v5, 4, v4')
issued = NW
for s in range(43):
    A(f's_waitcnt vmcnt({issued-1-s}) lgkmcnt({4 if s < 42 else 0})')
    mfma(AS, B5(s, 1), GF(s), '0' if s == 0 else None)
    mfma(AK, B5(s, 0), GF(s))
    if s == 2: A('s_waitcnt lgkmcnt(0)\ns_barrier')
    if s == 36: A('s_barrier')
    if s + 2 < 43 and s != 1: w2rd(s + 2)
    if s == 1: w2rd(3)
    if issued < 43: gload(issued); issued += 1
stamp('s5_mfma')
for q in range(4): A(f'ds_write_b128 v236, {v(AS+4*q,4)} offset:{q*1024}')
A('s_waitcnt lgkmcnt(0)\ns_barrier')
for q in range(4): A(f'ds_read_b128 {v(AS+4*q,4)}, v237 offset:{q*1024}')
for q in range(4):
    A(f's_waitcnt lgkmcnt({3-q})')
    for j in range(2): A(f'v_pk_add_f32 {v(AK+4*q+2*j,2)}, {v(AK+4*q+2*j,2)}, {v(AS+4*q+2*j,2)}')
    for j in range(2): A(f'v_cvt_pk_bf16_f32 v{8+2*q+j}, v{AK+4*q+2*j}, v{AK+4*q+2*j+1}')
    if q % 2:
        b = 8 + 2 * q - 2
        A(f'v_permlane32_swap_b32 v{b}, v{b+2}\nv_permlane32_swap_b32 v{b+1}, v{b+3}')
        A(f'buffer_store_dwordx4 {v(b,4)}, v4, {SOUT}, s24 offen offset:{(q//2)*32}')
stamp('end')
if OPT['spin']:
    A('s_memtime s[86:87]\ns_waitcnt lgkmcnt(0)')
    A.label('Lspin')
    A(f's_memtime s[88:89]\ns_waitcnt lgkmcnt(0)\ns_sub_u32 s88, s88, s86\ns_cmp_lt_u32 s88, {OPT["spin"]}\ns_cbranch_scc1 Lspin')
A('s_endpgm')

A.label('Lloader2')
A(f's_and_b32 {sI}, {sW}, 3')
A(f'v_lshrrev_b32 v2, 3, v0\nv_and_b32 v3, 7, v0\nv_bfe_u32 v4, v0, 4, 1\nv_lshlrev_b32 v4, 2, v4\nv_xor_b32 v4, v4, v3\nv_lshlrev_b32 v4, 4, v4\nv_lshl_add_u32 {VWO}, v2, 10, v4')
for ph in range(3):
    A(f'v_add_u32 v2, {64*ph}, v0\nv_mul_u32_u24 v3, 171, v2\nv_lshrrev_b32 v3, 11, v3\nv_mul_u32_u24 v4, 12, v3\nv_sub_u32 v4, v2, v4')
    A(f'v_mul_u32_u24 v3, 2752, v3\nv_lshl_add_u32 v{8+ph}, v4, 4, v3')
A(f's_mul_i32 s16, {sI}, {128*2752}\ns_mul_i32 s13, {sM}, 192\ns_add_u32 s16, s16, s13\ns_mul_i32 s18, {sI}, {128*192}\ns_add_u32 s18, s18, {RB}')
def w1grp():
    for ph in range(3):
        A(f's_add_u32 m0, s18, {ph*1024}'); dma(f'v{8+ph}', SW1, 's16')
    A(f's_add_u32 s16, s16, {16*2752}\ns_add_u32 s18, s18, 3072')
for g in range(2): w1grp()
A('s_waitcnt vmcnt(6)')
set_flag('s22', 'v6', 'v7')
stamp('o_flag')
for g in range(6): w1grp()
A(f's_mul_i32 s13, {sM}, 192\nv_lshlrev_b32 v2, 1, v0\nbuffer_load_ushort v12, v2, {SB1}, s13 offen\nbuffer_load_ushort v13, v2, {SB1}, s13 offen offset:128')
tr_lane_addr('v2', 192, 4, 'v4', False)
A(f's_mul_i32 s13, {sI}, {128*192}\nv_add_u32 v2, s13, v2\nv_mov_b32 v3, 0x3f803f80')
for r in range(16, 22): A(f'v_mov_b32 v{r}, 0')
A('s_barrier')
A('s_waitcnt vmcnt(0)')
stamp('ld_c')
for half in range(2):
    for s in range(4):
        for b in range(3):
            for ii in range(2): trd(32 + 12 * s + 4 * b + 2 * ii, 'v2', (4 * half + s) * 3072 + ii * 1536 + b * 64)
    A('s_waitcnt lgkmcnt(0)')
    for s in range(4):
        for j in range(4):
            for b in range(3): A(f'v_dot2c_f32_bf16 v{16+2*b+(j&1)}, v{32+12*s+4*b+j}, v3')
A('v_add_f32 v16, v16, v17\nv_add_f32 v18, v18, v19\nv_add_f32 v20, v20, v21\nv_mov_b32 v21, v20')
half_sum2('v16', 'v18'); half_sum2('v20', 'v21')
A(f's_mul_i32 s13, {sI}, 384\ns_add_u32 s13, s13, {A_PART}\nv_lshlrev_b32 v4, 2, v0\nv_add_u32 v5, s13, v4')
A('ds_write_b32 v5, v16\ns_mov_b32 exec_hi, 0\nds_write_b32 v5, v20 offset:256\ns_mov_b32 exec_hi, -1')
A('s_waitcnt lgkmcnt(0)\ns_barrier')
A(f'v_add_u32 v4, {RA}, v4')
for i in range(4): A(f'ds_read_b32 v{16+i}, v4 offset:{i*384}\nds_read_b32 v{20+i}, v4 offset:{i*384+256}')
A('v_lshlrev_b32 v12, 16, v12\nv_lshlrev_b32 v13, 16, v13\ns_waitcnt lgkmcnt(0)')
A('v_add_f32 v16, v16, v17\nv_add_f32 v18, v18, v19\nv_add_f32 v20, v20, v21\nv_add_f32 v22, v22, v23\nv_add_f32 v16, v16, v18\nv_add_f32 v20, v20, v22')
A(f'ds_write_b32 v4, v16 offset:{A_CSF-RA}\nds_write_b32 v4, v12 offset:{A_B1F-RA}\ns_mov_b32 exec_hi, 0')
A(f'ds_write_b32 v4, v20 offset:{A_CSF-RA+256}\nds_write_b32 v4, v13 offset:{A_B1F-RA+256}\ns_mov_b32 exec_hi, -1')
A('s_waitcnt lgkmcnt(0)\ns_barrier')
A(f's_mul_i32 s16, {sB}, {43*16*1024}\ns_lshl_b32 s13, {sA}, 13\ns_add_u32 s16, s16, s13\ns_lshl_b32 s13, {sSub}, 7\ns_add_u32 s16, s16, s13')
def w2loop(n, ldsbase, khstride):
    A(f's_mul_i32 s18, {sB}, {khstride}\ns_lshl_b32 s13, {sA}, 10\ns_add_u32 s18, s18, s13\ns_add_u32 s18, s18, {ldsbase}\ns_mov_b32 s19, {n}')
    lp = L(); A.label(lp)
    A('s_mov_b32 m0, s18'); dma(VWO, SW2, 's16')
    A(f's_add_u32 s16, s16, 16384\ns_add_u32 s18, s18, 2048\ns_sub_u32 s19, s19, 1\ns_cmp_lg_u32 s19, 0\ns_cbranch_scc1 {lp}')
w2loop(15, A_W2, 30720)
A('s_waitcnt vmcnt(0)\ns_barrier')
w2loop(24, RB, 49152)
A('s_waitcnt vmcnt(0)')
stamp('ld_d')
A('s_barrier')
w2loop(4, A_W2, 30720)
A('s_waitcnt vmcnt(0)\ns_barrier')
A('s_barrier')
A.label('Lexit')
A('s_endpgm')
A.label('Lcodeend')

n = A.fix_hazards()
hdr = open('cdna_kernels/' + NAME + '.s.ref').read().split('; Override')[0]
out = hdr + f'; @launch grid=(256,1,1) block=(512,1,1) lds=163840\n.amdgcn_target "amdgcn-amd-amdhsa--gfx950"\n.text\n.globl {NAME}_kernel\n.p2align 8\n.type {NAME}_kernel,@function\n{NAME}_kernel:\n'
out += A.text()
out += f'''.fill 64, 4, 0xbf800000
.section .rodata,"a"
.p2align 6
.amdhsa_kernel {NAME}_kernel
  .amdhsa_next_free_vgpr 256
  .amdhsa_next_free_sgpr 102
  .amdhsa_accum_offset 256
  .amdhsa_group_segment_fixed_size 0
  .amdhsa_kernarg_size 88
  .amdhsa_user_sgpr_count 2
  .amdhsa_user_sgpr_kernarg_segment_ptr 1
  .amdhsa_system_sgpr_workgroup_id_x 1
  .amdhsa_float_denorm_mode_32 3
.end_amdhsa_kernel
'''
open(sys.argv[1], 'w').write(out)
print('nops inserted:', n, 'instructions:', len(A.ins))
```

```python
import sys, math
from emit import Asm
NAME = "sequential_preLN__sliding_block__dense_activation_squared_relu__prompt"
OPT = dict(stamps=False, spin=0, until=0)
for a in sys.argv[2:]:
    k, v = a.split('='); OPT[k] = int(v)

WS_KV, WS_O, WS_H, WS_ST, WS_H1, WS_FL = 0x0, 0x400000, 0x600000, 0x800000, 0x900000, 0x1000000
WS_STAMP = 0x2000000
F1, F2, F3, F4 = 0, 64*16, 64*48, 64*64
SLOT = 32768
RB, RA = 0, 98304
L_ST, L_CS, L_CV, L_PR, L_Q, L_KV, TS = 0, 1024, 2048, 3072, 5120, 13312, 8256
A_PART, A_CSF, A_B1F, A_W2, A_SCR3 = RA, RA + 1536, RA + 2048, RA + 4096, RA + 4096
TIMEOUT = 400000
CSC = 0.25 * math.log2(math.e)
import struct
def f2u(x): return struct.unpack('<I', struct.pack('<f', x))[0]

sW, sT, sSub, sG, sM = 's3', 's4', 's5', 's6', 's7'
SX, SWQ, SWO, SW1, SB1, SW2, SB2, SOUT, SWS, SDBG = [f's[{b}:{b+3}]' for b in range(40, 80, 4)]
sA, sB = 's80', 's81'
def v(a, n=1): return f'v{a}' if n == 1 else f'v[{a}:{a+n-1}]'

A = Asm()
uid = [0]
def L(p='L'):
    uid[0] += 1; return f'{p}{uid[0]}'
stamp_n = [0]
def stamp(name):
    if not OPT['stamps']: return
    i = stamp_n[0]; stamp_n[0] += 1
    STAMPS.append(name)
    A(f's_memtime s[98:99]\ns_waitcnt lgkmcnt(0)\nv_mov_b32 v247, s98\nv_mov_b32 v246, s97\ns_mov_b64 s[94:95], exec\ns_mov_b64 exec, 1')
    A(f'buffer_store_dword v247, v246, {SWS}, 0 offen offset:{4*STAMP_IDS[name]}\ns_mov_b64 exec, s[94:95]')
STAMPS = []
def stampv(name, sreg):
    if not OPT['stamps']: return
    A(f'v_mov_b32 v247, {sreg}\nv_mov_b32 v246, s97\ns_mov_b64 s[94:95], exec\ns_mov_b64 exec, 1')
    A(f'buffer_store_dword v247, v246, {SWS}, 0 offen offset:{4*STAMP_IDS[name]}\ns_mov_b64 exec, s[94:95]')
STAMP_NAMES = ['start', 's1_c0', 's1_loop_end', 's1_bs1', 's1_stored', 's1_flag', 'kv_ready', 'att_p1', 'att_end', 'o_flag',
               's3_polled', 's3_mfma', 's3_flag', 's4_polled', 's4_phA', 's4_phB', 's4_flag', 's5_polled', 's5_mfma', 'end', 'ld_a', 'ld_b', 'ld_c', 'ld_d', 'x0', 'x1', 'x2', 'x3', 'x4', 'x5', 'x6', 'x7']
STAMP_IDS = {n: i for i, n in enumerate(STAMP_NAMES)}

def poll(vaddr, vtmp, nlanes, srd=SWS, want_ge=None):
    lp, dn = L('Lpoll'), L('Lpd')
    A(f's_mov_b32 exec_lo, {hex((1 << nlanes) - 1)}\ns_mov_b32 exec_hi, 0\ns_mov_b32 s8, 0')
    A.label(lp)
    A(f'buffer_load_dword {vtmp}, {vaddr}, {srd}, 0 offen sc1\ns_add_u32 s8, s8, 1\ns_waitcnt vmcnt(0)')
    if want_ge is None: A(f'v_cmp_eq_u32 vcc, 0, {vtmp}')
    else: A(f'v_cmp_gt_u32 vcc, {want_ge}, {vtmp}')
    A(f's_cmp_gt_u32 s8, {TIMEOUT}\ns_cbranch_scc1 {dn}\ns_cbranch_vccnz {lp}')
    A.label(dn)
    A('s_mov_b64 exec, -1')

def set_flag(sidx, vt0, vt1):
    A(f's_lshl_b32 s9, {sidx}, 7\ns_add_u32 s9, s9, {WS_FL}\nv_mov_b32 {vt0}, s9\nv_mov_b32 {vt1}, 1\ns_mov_b64 exec, 1')
    A(f'buffer_store_dword {vt1}, {vt0}, {SWS}, 0 offen sc1\ns_mov_b64 exec, -1')

def tr_lane_addr(dst, rowstride, hrows, tmp, swz=True, flip=None):
    A(f'v_lshrrev_b32 {dst}, 5, v0')
    A(f'v_mul_u32_u24 {dst}, {hrows}, {dst}')
    A(f'v_bfe_u32 {tmp}, v0, 2, 2')
    A(f'v_add_u32 {dst}, {dst}, {tmp}')
    A(f'v_mul_u32_u24 {dst}, {rowstride}, {dst}')
    if swz:
        A(f'v_bfe_u32 {tmp}, v0, 3, 1')
        if flip: A(f'v_xor_b32 {tmp}, {flip}, {tmp}')
        A(f'v_lshl_add_u32 {dst}, {tmp}, 6, {dst}')
    A(f'v_bfe_u32 {tmp}, v0, 4, 1\nv_lshl_add_u32 {dst}, {tmp}, 5, {dst}')
    A(f'v_and_b32 {tmp}, 3, v0\nv_lshl_add_u32 {dst}, {tmp}, 3, {dst}')

MF = 'v_mfma_f32_32x32x16_bf16'
def mfma(d, a, b, c=None):
    cs = v(d, 16) if c is None else (c if isinstance(c, str) else v(c, 16))
    A(f'{MF} {v(d,16)}, {v(a,4)}, {v(b,4)}, {cs}')
def trd(d, addr, off): A(f'ds_read_b64_tr_b16 {v(d,2)}, {addr} offset:{off}')
def dma(voff, srd, soff, sc=''): A(f'buffer_load_dwordx4 {voff}, {srd}, {soff} offen{sc} lds')
def half_sum2(a, b):
    A(f'v_permlane32_swap_b32 {a}, {b}\nv_add_f32 {a}, {a}, {b}')
def att_masks():
    A('v_and_b32 v232, 31, v0\nv_lshrrev_b32 v233, 5, v0\nv_lshlrev_b32 v233, 2, v233\nv_sub_u32 v232, v232, v233')
    A('v_mov_b32 v234, 0xff800000\nv_mov_b32 v235, 0')
    for r in range(16):
        key = (r & 3) + 8 * (r >> 2)
        A(f'v_cmp_le_i32 vcc, {key}, v232')
        A(f'v_cndmask_b32 v{56+r}, v234, v235, vcc')
        A(f'v_cndmask_b32 v{72+r}, v235, v234, vcc')

A(f's_cmp_ge_u32 s2, 256\ns_cbranch_scc1 Lexit')
if OPT['until']: A('s_memtime s[84:85]')
A('s_load_dwordx16 s[16:31], s[0:1], 0\ns_load_dwordx4 s[32:35], s[0:1], 64\ns_load_dwordx2 s[36:37], s[0:1], 80')
A(f'v_lshrrev_b32 v1, 6, v0\nv_and_b32 v0, 63, v0\nv_readfirstlane_b32 {sW}, v1')
A(f's_and_b32 s8, s2, 7\ns_lshr_b32 s9, s2, 3\ns_and_b32 {sM}, s9, 15\ns_lshr_b32 s9, s9, 4\ns_lshl_b32 {sG}, s8, 1\ns_add_u32 {sG}, {sG}, s9')
A(f's_lshr_b32 s9, {sM}, 3\ns_lshl_b32 {sT}, {sG}, 1\ns_add_u32 {sT}, {sT}, s9\ns_and_b32 {sSub}, {sM}, 7')
A(f's_and_b32 {sA}, {sW}, 1\ns_bfe_u32 {sB}, {sW}, 0x10001')
A('s_waitcnt lgkmcnt(0)')
for (b, p, sz) in ((40, 16, 2097152), (44, 18, 1572864), (48, 20, 524288), (52, 24, 1409024), (56, 26, 2752), (60, 28, 1409024),
                   (64, 30, 1024), (68, 32, 2097152), (72, 36, 268435456), (76, 34, 256)):
    A(f's_mov_b32 s{b}, s{p}\ns_and_b32 s{b+1}, s{p+1}, 0xffff\ns_mov_b32 s{b+2}, {sz}\ns_mov_b32 s{b+3}, 0x20000')
if OPT['stamps']:
    A(f's_lshl_b32 s97, s2, 3\ns_add_u32 s97, s97, {sW}\ns_lshl_b32 s97, s97, 7\ns_add_u32 s97, s97, {WS_STAMP}')
A(f's_cmp_ge_u32 {sW}, 4\ns_cbranch_scc1 Lloader')

stamp('start')
aQ, aK_, aV = 16, 32, 48
XF = lambda p: 64 + 4 * p
WF = lambda p, b: 80 + 12 * p + 4 * b
SUM, SQ, CQ, CK, CV_ = 128, 130, 132, 134, 136
ONES = 'v138'
AX = lambda p: f'v{140+p}'
AW = lambda q: f'v{144+q}'
lz, lpf, lgo = L(), L(), L()
A(f's_cmp_lg_u32 {sW}, 0\ns_cbranch_scc1 {lpf}')
A(f's_mul_i32 s8, s2, 20\nv_add_u32 v2, s8, v0\nv_lshlrev_b32 v2, 7, v2\nv_add_u32 v2, {WS_FL}, v2\nv_mov_b32 v3, 0')
A(f's_mov_b32 exec_lo, 0xfffff\ns_mov_b32 exec_hi, 0\nbuffer_store_dword v3, v2, {SWS}, 0 offen sc1\ns_waitcnt vmcnt(0)')
A(f's_mov_b64 exec, 1\nv_mov_b32 v2, 1\nbuffer_atomic_add v2, v3, {SDBG}, 0 offen sc1\ns_mov_b64 exec, -1\ns_branch {lgo}')
A.label(lpf)
A(f's_cmp_eq_u32 {sW}, 3\ns_cbranch_scc1 {lgo}')
A('s_getpc_b64 s[10:11]')
A.label('Lpc')
A(f's_lshr_b32 s8, s2, 3\ns_lshl_b32 s9, {sW}, 4\ns_add_u32 s8, s8, s9\ns_and_b32 s8, s8, 31\ns_lshl_b32 s8, s8, 10')
A(f's_min_u32 s8, s8, Lcodeend-Lpc-1024\ns_add_u32 s10, s10, s8\ns_addc_u32 s11, s11, 0\ns_and_b32 s10, s10, -16\nv_lshlrev_b32 v2, 4, v0')
A('global_load_dwordx4 v[4:7], v2, s[10:11]')
A.label(lgo)
for r in list(range(16, 64)) + list(range(XF(2), XF(4))) + list(range(WF(2, 0), WF(4, 0))) + list(range(128, 138)):
    A(f'v_mov_b32 v{r}, 0')
A(f'v_mov_b32 {ONES}, 0x3f803f80')
A(f's_xor_b32 s12, {sA}, {sB}\ns_lshl_b32 s12, s12, 1')
A(f'v_and_b32 v2, 31, v0\nv_bfe_u32 v3, v0, 1, 3\nv_lshrrev_b32 v4, 5, v0\nv_xor_b32 v3, v3, v4')
A(f's_lshl_b32 s13, {sA}, 12\nv_lshlrev_b32 v2, 7, v2\nv_add_u32 v2, s13, v2')
for p in range(4):
    A(f's_xor_b32 s13, s12, {p}\ns_lshl_b32 s13, s13, 1\nv_xor_b32 v4, s13, v3\nv_lshl_add_u32 {AX(p)}, v4, 4, v2')
tr_lane_addr(AW(0), 128, 8, 'v2', True, sB)
A(f's_lshl_b32 s13, s12, 11\ns_add_u32 s13, s13, 8192\ns_xor_b32 s14, s12, 2\ns_lshl_b32 s14, s14, 11\ns_add_u32 s14, s14, 8192')
A(f'v_add_u32 {AW(1)}, s14, {AW(0)}\nv_add_u32 {AW(0)}, s13, {AW(0)}')
A('s_mov_b32 s15, 0')
def s1_reads(p):
    out = [f'ds_read_b128 {v(XF(p),4)}, {AX(p)}']
    for b in range(3):
        for i in range(2):
            out.append(f'ds_read_b64_tr_b16 {v(WF(p,b)+2*i,2)}, {AW(p>>1)} offset:{(p&1)*2048 + i*512 + b*8192}')
    return out
def s1_mf(p):
    return [f'{MF} {v(aK_,16)}, {v(WF(p,1),4)}, {v(XF(p),4)}, {v(aK_,16)}',
            f'{MF} {v(aV,16)}, {v(XF(p),4)}, {v(WF(p,2),4)}, {v(aV,16)}',
            f'{MF} {v(aQ,16)}, {v(WF(p,0),4)}, {v(XF(p),4)}, {v(aQ,16)}']
def s1_dots():
    for p in (2, 3):
        for j in range(4):
            A(f'v_dot2c_f32_bf16 v{SUM+(j&1)}, v{XF(p)+j}, {ONES}')
            A(f'v_dot2c_f32_bf16 v{SQ+(j&1)}, v{XF(p)+j}, v{XF(p)+j}')
            A(f'v_dot2c_f32_bf16 v{CQ+(j&1)}, v{WF(p,0)+j}, {ONES}')
            A(f'v_dot2c_f32_bf16 v{CK+(j&1)}, v{WF(p,1)+j}, {ONES}')
            A(f'v_dot2c_f32_bf16 v{CV_+(j&1)}, v{WF(p,2)+j}, {ONES}')
if OPT['stamps']: A('s_mov_b32 s90, 0\ns_mov_b32 s91, 0')
A.label('Ls1')
if OPT['stamps']: A('s_memtime s[86:87]\ns_waitcnt lgkmcnt(0)')
A('s_barrier')
if OPT['stamps']: A('s_memtime s[88:89]\ns_waitcnt lgkmcnt(0)\ns_sub_u32 s86, s88, s86\ns_add_u32 s90, s90, s86\ns_cmp_eq_u32 s15, 0\ns_cselect_b32 s91, s88, s91')
for x in s1_reads(0) + s1_reads(1): A(x)
s1_dots()
A('s_waitcnt lgkmcnt(0)')
rd = s1_reads(2) + s1_reads(3)
mm = s1_mf(0) + s1_mf(1)
k = 0
for i, m in enumerate(mm):
    A(m)
    n = (3, 3, 2, 2, 2, 2)[i]
    for x in rd[k:k+n]: A(x)
    k += n
A('s_mov_b32 s13, 32768\ns_cmp_eq_u32 s15, 4\ns_cselect_b32 s13, -131072, s13\ns_add_u32 s15, s15, 1')
A('s_waitcnt lgkmcnt(7)')
m2 = s1_mf(2)
A(m2[0]); A(f'v_add_u32 {AX(0)}, s13, {AX(0)}\nv_add_u32 {AX(1)}, s13, {AX(1)}')
A(m2[1]); A(f'v_add_u32 {AX(2)}, s13, {AX(2)}\nv_add_u32 {AX(3)}, s13, {AX(3)}')
A(m2[2]); A(f'v_add_u32 {AW(0)}, s13, {AW(0)}\nv_add_u32 {AW(1)}, s13, {AW(1)}')
A('s_waitcnt lgkmcnt(0)')
for m in s1_mf(3): A(m)
A('s_cmp_lt_u32 s15, 8\ns_cbranch_scc1 Ls1')
stamp('s1_loop_end')
stampv('s1_c0', 's91')
if OPT['stamps']: A('s_add_u32 s90, s90, s91')
stampv('x0', 's90')
s1_dots()
for r in (SUM, SQ, CQ, CK, CV_): A(f'v_add_f32 v{r}, v{r}, v{r+1}')
A(f'v_mov_b32 v{CV_+1}, v{CV_}')
half_sum2(f'v{SUM}', f'v{SQ}'); half_sum2(f'v{CQ}', f'v{CK}'); half_sum2(f'v{CV_}', f'v{CV_+1}')
A(f'v_and_b32 v2, 31, v0\nv_lshlrev_b32 v2, 4, v2\ns_lshl_b32 s13, {sA}, 9\nv_add_u32 v2, s13, v2')
A(f'v_lshrrev_b32 v3, 5, v0\nv_lshl_add_u32 v3, v3, 2, v2\ns_lshl_b32 s13, {sB}, 3\nv_add_u32 v3, s13, v3')
A(f's_lshl_b32 s13, {sB}, 9\ns_lshl_b32 s14, {sA}, 8\ns_add_u32 s14, s14, s13\nv_lshlrev_b32 v4, 2, v0\nv_add_u32 v5, s14, v4')
A(f'ds_write_b32 v3, v{SUM} offset:{L_ST}\nds_write_b32 v5, v{CQ} offset:{L_CS}\nds_write_b32 v5, v{CV_} offset:{L_CV}')
A('v_xor_b32 v5, 256, v5')
A(f's_lshl_b32 s13, {sW}, 9\ns_add_u32 s13, s13, {L_PR}\nv_add_u32 v6, s13, v4')
A(f'v_lshrrev_b32 v7, 5, v0\nv_lshlrev_b32 v7, 4, v7\nv_add_u32 v7, s13, v7')
A('s_waitcnt lgkmcnt(0)\ns_barrier')
stamp('s1_bs1')
A(f'ds_read_b128 v[8:11], v2 offset:{L_ST}\nds_read_b32 v12, v5 offset:{L_CS}\nds_read_b32 v13, v5 offset:{L_CV}')
A(f's_lshl_b32 s13, {sT}, 1\ns_add_u32 s13, s13, {sA}\ns_lshl_b32 s16, s13, 3\ns_add_u32 s16, s16, {sSub}\ns_lshl_b32 s16, s16, 13')
A(f's_lshl_b32 s14, {sB}, 11\ns_add_u32 s16, s16, s14\ns_add_u32 s17, s16, 4096')
A(f's_lshl_b32 s18, s13, 4\ns_lshl_b32 s14, {sSub}, 1\ns_add_u32 s18, s18, s14\ns_add_u32 s18, s18, {sB}')
A(f'v_lshlrev_b32 v14, 4, v0')
A(f's_mul_i32 s13, {sA}, {TS}\ns_add_u32 s13, s13, {L_KV + 8*TS}\ns_lshl_b32 s14, {sB}, 11\ns_add_u32 s14, s14, s13\nv_add_u32 v15, s14, v14')
A(f's_mul_i32 s14, {sB}, 2080\ns_add_u32 s14, s14, s13\ns_add_u32 s14, s14, 4096\nv_add_u32 v146, s14, v14')
A(f's_lshl_b32 s13, {sA}, 12\ns_lshl_b32 s14, {sB}, 11\ns_add_u32 s13, s13, s14\ns_add_u32 s13, s13, {L_Q}\nv_add_u32 v147, s13, v14')
A('s_waitcnt lgkmcnt(0)')
RS, MRS, CSV = 148, 150, 152
A(f'v_add_f32 v8, v8, v10\nv_add_f32 v9, v9, v11\nv_mul_f32 v8, {hex(f2u(1/512))}, v8\nv_mul_f32 v9, {hex(f2u(1/512))}, v9')
A(f'v_fma_f32 v9, -v8, v8, v9\nv_max_f32 v9, 0, v9\nv_add_f32 v9, {hex(f2u(1e-5))}, v9\nv_rsq_f32 v{RS}, v9')
A(f'v_add_f32 v{CQ}, v{CQ}, v12\nv_add_f32 v{CSV}, v{CV_}, v13\nv_mul_f32 v{MRS}, v8, v{RS}')
A(f'v_cmp_gt_u32 vcc, 32, v0\nv_cndmask_b32 v8, v{MRS}, v{RS}, vcc')
A(f'ds_write_b32 v6, v8\nds_write_b32 v6, v{CQ} offset:256')
tK, tRS, tMRS, tQ = 64, 80, 96, 112
A('s_waitcnt lgkmcnt(0)')
for q in range(4): A(f'ds_read_b128 {v(tK+4*q,4)}, v7 offset:{384+32*q}')
for q in range(4): A(f'ds_read_b128 {v(tMRS+4*q,4)}, v7 offset:{128+32*q}')
for q in range(4): A(f'ds_read_b128 {v(tRS+4*q,4)}, v7 offset:{32*q}')
for q in range(4): A(f'ds_read_b128 {v(tQ+4*q,4)}, v7 offset:{256+32*q}')
KF, VF, QF = 156, 164, 172
def pk_epi(acc, t, mul_b, rs_b, out, t_is_scale=None):
    pass
A('s_waitcnt lgkmcnt(12)')
for j in range(8): A(f'v_pk_mul_f32 {v(tK+2*j,2)}, {v(tK+2*j,2)}, {v(MRS,2)} op_sel_hi:[1,0]')
for j in range(8): A(f'v_pk_fma_f32 {v(tK+2*j,2)}, {v(aK_+2*j,2)}, {v(RS,2)}, {v(tK+2*j,2)} op_sel_hi:[1,0,1] neg_lo:[0,0,1] neg_hi:[0,0,1]')
for j in range(8): A(f'v_cvt_pk_bf16_f32 v{KF+j}, v{tK+2*j}, v{tK+2*j+1}')
A(f'buffer_store_dwordx4 {v(KF,4)}, v14, {SWS}, s16 offen sc1\nbuffer_store_dwordx4 {v(KF+4,4)}, v14, {SWS}, s16 offen offset:1024 sc1')
A('s_waitcnt lgkmcnt(4)')
for j in range(8): A(f'v_pk_mul_f32 {v(tMRS+2*j,2)}, {v(tMRS+2*j,2)}, {v(CSV,2)} op_sel_hi:[1,0]')
for j in range(8): A(f'v_pk_fma_f32 {v(tMRS+2*j,2)}, {v(aV+2*j,2)}, {v(tRS+2*j,2)}, {v(tMRS+2*j,2)} neg_lo:[0,0,1] neg_hi:[0,0,1]')
for j in range(8): A(f'v_cvt_pk_bf16_f32 v{VF+j}, v{tMRS+2*j}, v{tMRS+2*j+1}')
A(f'buffer_store_dwordx4 {v(VF,4)}, v14, {SWS}, s17 offen sc1\nbuffer_store_dwordx4 {v(VF+4,4)}, v14, {SWS}, s17 offen offset:1024 sc1')
stamp('s1_stored')
A(f'ds_write_b128 v15, {v(KF,4)}\nds_write_b128 v15, {v(KF+4,4)} offset:1024\nds_write_b128 v146, {v(VF,4)}\nds_write_b128 v146, {v(VF+4,4)} offset:1040')
A(f'v_mul_f32 v{RS}, {hex(f2u(CSC))}, v{RS}\nv_mul_f32 v{MRS}, {hex(f2u(CSC))}, v{MRS}')
A('s_waitcnt lgkmcnt(4)')
for j in range(8): A(f'v_pk_mul_f32 {v(tQ+2*j,2)}, {v(tQ+2*j,2)}, {v(MRS,2)} op_sel_hi:[1,0]')
for j in range(8): A(f'v_pk_fma_f32 {v(tQ+2*j,2)}, {v(aQ+2*j,2)}, {v(RS,2)}, {v(tQ+2*j,2)} op_sel_hi:[1,0,1] neg_lo:[0,0,1] neg_hi:[0,0,1]')
for j in range(8): A(f'v_cvt_pk_bf16_f32 v{QF+j}, v{tQ+2*j}, v{tQ+2*j+1}')
A(f'ds_write_b128 v147, {v(QF,4)}\nds_write_b128 v147, {v(QF+4,4)} offset:1024')
att_masks()
A('s_waitcnt vmcnt(0)')
set_flag('s18', 'v2', 'v3')
stamp('s1_flag')
A('s_waitcnt lgkmcnt(0)\ns_branch Latt')

A.label('Lloader')
sI = 's82'
A(f's_and_b32 {sI}, {sW}, 3')
VX0, VX1, VWQ, VWO = 'v240', 'v241', 'v242', 'v243'
A(f'v_lshrrev_b32 v2, 3, v0\nv_and_b32 v3, 7, v0\nv_lshrrev_b32 v4, 4, v0\nv_xor_b32 v4, v4, v3')
A(f's_lshl_b32 s13, {sI}, 14\nv_lshlrev_b32 v5, 10, v2\nv_add_u32 v5, s13, v5\nv_lshl_add_u32 {VX0}, v4, 4, v5')
A(f'v_xor_b32 v4, 4, v4\nv_add_u32 v5, 8192, v5\nv_lshl_add_u32 {VX1}, v4, 4, v5')
A(f'v_bfe_u32 v4, v0, 4, 1\nv_lshlrev_b32 v4, 2, v4\nv_xor_b32 v4, v4, v3\nv_lshlrev_b32 v4, 4, v4')
A(f'v_lshl_add_u32 {VWO}, v2, 10, v4')
A(f's_mul_i32 s13, {sI}, {16*3072}\nv_mul_u32_u24 v5, 3072, v2\nv_add3_u32 {VWQ}, v5, v4, s13')
A(f's_lshl_b32 s16, {sT}, 16\ns_lshl_b32 s17, {sSub}, 7\ns_lshl_b32 s18, {sI}, 11\ns_mov_b32 s19, 0')
def issue_chunk():
    A(f's_mov_b32 m0, s18'); dma(VX0, SX, 's16')
    A(f's_add_u32 m0, s18, 1024'); dma(VX1, SX, 's16')
    for b in (1, 2, 0):
        for e in range(2):
            A(f's_add_u32 s13, s17, {b*1024 + e*24576}\ns_add_u32 m0, s18, {8192 + b*8192 + e*1024}'); dma(VWQ, SWQ, 's13')
    A(f's_add_u32 s16, s16, 128\ns_add_u32 s17, s17, {64*3072}\ns_add_u32 s18, s18, {SLOT}\ns_add_u32 s19, s19, 1')
A.label('Lld0')
issue_chunk()
A('s_cmp_lt_u32 s19, 5\ns_cbranch_scc1 Lld0')
A(f's_sub_u32 s18, s18, {5*SLOT}')
A('s_waitcnt vmcnt(32)\ns_barrier')
A.label('Lld1')
A('s_waitcnt vmcnt(24)\ns_barrier')
issue_chunk()
A('s_cmp_lt_u32 s19, 8\ns_cbranch_scc1 Lld1')
def issue_wo(part):
    A(f's_lshl_b32 s16, {sI}, 16\ns_lshl_b32 s13, {sSub}, 7\ns_add_u32 s16, s16, s13\ns_add_u32 s16, s16, {part*256*1024}')
    A(f's_lshl_b32 s18, {sI}, 13\ns_add_u32 s18, s18, {RA + part*SLOT}')
    for e in range(8):
        A(f's_add_u32 s13, s16, {e*8192}\ns_add_u32 m0, s18, {e*1024}'); dma(VWO, SWO, 's13')
A('s_waitcnt vmcnt(24)\ns_barrier')
issue_wo(0)
A('s_waitcnt vmcnt(24)\ns_barrier')
issue_wo(1)
A('s_waitcnt vmcnt(24)\ns_barrier')
A('s_waitcnt vmcnt(16)\ns_barrier')
stamp('ld_a')
A('v_mov_b32 v2, 0')
poll('v2', 'v3', 1, SDBG, want_ge=256)
att_masks()
A('s_barrier')
A(f'v_lshrrev_b32 v2, 2, v0\nv_mul_u32_u24 v2, {TS}, v2\nv_and_b32 v3, 3, v0\nv_mul_u32_u24 v3, 1040, v3\nv_add3_u32 v2, v2, v3, 0')
for r in range(4, 8): A(f'v_mov_b32 v{r}, 0x3f803f80')
A(f's_mov_b32 exec_lo, -1\ns_mov_b32 exec_hi, 0xff\nds_write_b128 v2, v[4:7] offset:{L_KV + 4096 + 1024}\ns_mov_b64 exec, -1')
lnh = L()
A(f's_add_u32 s13, {sT}, {sI}\ns_cmp_lt_u32 s13, 4\ns_cbranch_scc1 {lnh}')
A(f's_sub_u32 s13, s13, 4\ns_lshl_b32 s13, s13, 1')
A(f's_lshl_b32 s14, s13, 4\ns_lshl_b32 s15, {sSub}, 1\ns_add_u32 s14, s14, s15')
A(f'v_lshrrev_b32 v2, 1, v0\nv_lshlrev_b32 v2, 4, v2\nv_and_b32 v3, 1, v0\nv_add3_u32 v2, v2, v3, s14\nv_lshlrev_b32 v2, 7, v2\nv_add_u32 v2, {WS_FL + F1*128}, v2')
A(f's_lshl_b32 s16, s13, 3\ns_add_u32 s16, s16, {sSub}\ns_lshl_b32 s16, s16, 13')
A(f's_mul_i32 s18, {sI}, {2*TS}\ns_add_u32 s18, s18, {L_KV}\nv_lshlrev_b32 v4, 4, v0')
poll('v2', 'v3', 4)
stamp('ld_b')
for t in range(2):
    for i in range(8):
        lo = t * TS + (i * 1024 if i < 4 else 4096 + (i - 4) * 1040)
        A(f's_add_u32 s13, s16, {t*65536 + i*1024}\ns_add_u32 m0, s18, {lo}'); dma('v4', SWS, 's13', ' sc1')
A.label(lnh)
A('s_waitcnt vmcnt(0) lgkmcnt(0)')

A.label('Latt')
KFa = lambda t: 16 + 4 * t
QFa, CL, CF = 52, 56, 72
S1 = lambda t: 88 + 16 * t
sTau = 's20'
A(f's_lshr_b32 s13, {sW}, 2\ns_and_b32 s14, {sW}, 3\ns_lshl_b32 s21, {sT}, 1\ns_add_u32 s21, s21, s13')
A(f's_sub_u32 {sTau}, 8, s21\ns_max_i32 {sTau}, {sTau}, 0')
A(f's_mul_i32 s15, s13, {TS}\ns_add_u32 s15, s15, {L_KV}\ns_lshl_b32 s16, s14, 10\ns_add_u32 s16, s16, s15')
A(f'v_lshlrev_b32 v232, 4, v0\nv_add_u32 v233, s16, v232\nv_add_u32 v234, {8*TS}, v233')
A(f's_lshl_b32 s16, {sW}, 10\ns_add_u32 s16, s16, {L_Q}\nv_add_u32 v235, s16, v232')
A(f's_lshr_b32 s16, s14, 1\ns_mul_i32 s16, s16, 2080\ns_add_u32 s16, s16, s15\ns_add_u32 s16, s16, 4096')
A(f's_lshl_b32 s17, {sA}, 8\nv_or_b32 v236, s17, v232\nv_mov_b32 v237, 1024\nv_and_b32 v238, 16, v0\nv_cmp_eq_u32 vcc, 0, v238\nv_cndmask_b32 v236, v237, v236, vcc')
A(f'v_add_u32 v236, s16, v236\nv_add_u32 v237, {8*TS}, v236')
A(f's_lshl_b32 s22, s21, 5\ns_lshl_b32 s13, {sSub}, 2\ns_add_u32 s22, s22, s13\ns_add_u32 s22, s22, s14')
A('s_barrier')
stamp('kv_ready')
A(f'ds_read_b128 {v(QFa,4)}, v235\nds_read_b128 {v(KFa(8),4)}, v234')
for t in range(7, -1, -1): A(f'ds_read_b128 {v(KFa(t),4)}, v233 offset:{t*TS}')
def smf(t, dst, cmid):
    c = CL if t == 8 else (CF if t == 0 else cmid)
    mfma(dst, KFa(t), QFa, c)
M0_, M1_ = 'v238', 'v239'
A(f'v_mov_b32 {M0_}, 0xff800000\nv_mov_b32 {M1_}, 0xff800000')
def maxgrp(t):
    sk = L()
    if t < 8: A(f's_cmp_gt_u32 {sTau}, {t}\ns_cbranch_scc1 {sk}')
    for j in range(8):
        m = M0_ if j % 2 == 0 else M1_
        A(f'v_max3_f32 {m}, v{S1(t)+2*j}, v{S1(t)+2*j+1}, {m}')
    if t < 8: A.label(sk)
order = list(range(8, -1, -1))
for i, t in enumerate(order):
    A(f's_waitcnt lgkmcnt({8-i})')
    smf(t, S1(t), '0')
    if i >= 2: maxgrp(order[i-2])
VB = lambda t: 184 + 8 * (t % 3)
def vread(t):
    a = ('v237', 0) if t == 8 else ('v236', t * TS)
    A(f'ds_read_b128 {v(VB(t),4)}, {a[0]} offset:{a[1]}\nds_read_b128 {v(VB(t)+4,4)}, {a[0]} offset:{a[1]+1040}')
maxgrp(1); maxgrp(0)
A(f'v_max_f32 {M0_}, {M0_}, {M1_}\nv_mov_b32 {M1_}, {M0_}\nv_permlane32_swap_b32 {M0_}, {M1_}\nv_max_f32 {M0_}, {M0_}, {M1_}')
stamp('att_p1')
NM, OA = 136, 152
SB_ = lambda t: 88 + 16 * (t % 3)
PB = lambda t: 168 + 8 * (t % 2)
for r in range(16): A(f'v_sub_f32 v{CL+r}, v{CL+r}, {M0_}')
smf(8, SB_(8), NM)
for r in range(16): A(f'v_sub_f32 v{NM+r}, 0, {M0_}')
vread(8); vread(7)
smf(7, SB_(7), NM)
for r in range(16): A(f'v_sub_f32 v{CF+r}, v{CF+r}, {M0_}')
def pv(t, a, first):
    mfma(OA, VB(t) + 4 * a, PB(t) + 4 * a, '0' if first else None)
tails = {}
for t in order:
    if t < 8:
        tails[t] = L('Ltail')
        A(f's_cmp_gt_u32 {sTau}, {t}\ns_cbranch_scc1 {tails[t]}')
    ex = [f'v_exp_f32 v{SB_(t)+r}, v{SB_(t)+r}' for r in range(16)]
    cv = [f'v_cvt_pk_bf16_f32 v{PB(t)+j}, v{SB_(t)+2*j}, v{SB_(t)+2*j+1}' for j in range(8)]
    seq = ex[0:4] + ['PV0'] + ex[4:6] + cv[0:2] + ex[6:8] + ['PV1'] + ex[8:10] + cv[2:4] + ex[10:12] + ['SM'] + ex[12:16] + cv[4:8]
    for x in seq:
        if x == 'PV0':
            if t < 8:
                A('s_waitcnt lgkmcnt(2)' if t >= 1 else 's_waitcnt lgkmcnt(2)')
                pv(t + 1, 0, t + 1 == 8)
        elif x == 'PV1':
            if t < 8: pv(t + 1, 1, False)
            if t < 8 and t - 1 >= 0: vread(t - 1)
        elif x == 'SM':
            if t - 2 >= 0: smf(t - 2, SB_(t - 2), NM)
        else: A(x)
ldone = L('Lattdone')
A('s_waitcnt lgkmcnt(0)')
pv(0, 0, False); pv(0, 1, False)
for t in range(7, -1, -1):
    A(f's_branch {ldone}')
    A.label(tails[t])
    A('s_waitcnt lgkmcnt(0)')
    pv(t + 1, 0, t + 1 == 8); pv(t + 1, 1, False)
A.label(ldone)
A(f's_lshl_b32 s13, s22, 10\ns_add_u32 s13, s13, {WS_O}\ns_add_u32 s22, s22, {F2}')
A(f'v_rcp_f32 v238, v{OA+8}')
for j in range(4): A(f'v_pk_mul_f32 {v(OA+2*j,2)}, {v(OA+2*j,2)}, v[238:239] op_sel_hi:[1,0]')
for j in range(4): A(f'v_cvt_pk_bf16_f32 v{168+j}, v{OA+2*j}, v{OA+2*j+1}')
A(f'buffer_store_dwordx4 v[168:171], v232, {SWS}, s13 offen sc1')
stamp('att_end')
A('s_barrier')
A(f's_cmp_ge_u32 {sW}, 4\ns_cbranch_scc1 Lloader2')

sTile = 's23'
A(f's_lshl_b32 {sTile}, {sT}, 1\ns_add_u32 {sTile}, {sTile}, {sA}')
accK, accS = 0, 0
AK, AS = 16, 32
OF = lambda i: 48 + 4 * i
WOF = lambda i, c: 112 + 8 * i + 4 * c
HRES = 248
tr_lane_addr('v2', 128, 4, 'v4', True, sB)
A(f's_lshl_b32 s13, {sB}, 15\ns_add_u32 s13, s13, {RA}\nv_add_u32 v2, s13, v2\nv_xor_b32 v3, 64, v2')
A(f'v_and_b32 v4, 31, v0\nv_lshlrev_b32 v4, 10, v4\nv_lshrrev_b32 v5, 5, v0\nv_lshl_add_u32 v4, v5, 3, v4')
A(f's_lshl_b32 s24, {sTile}, 15\ns_lshl_b32 s13, {sSub}, 7\ns_add_u32 s24, s24, s13\ns_lshl_b32 s13, {sB}, 6\ns_add_u32 s24, s24, s13')
for q in range(4): A(f'buffer_load_dwordx2 {v(8+2*q,2)}, v4, {SX}, s24 offen offset:{16*q}')
A('s_waitcnt vmcnt(4)')
set_flag('s22', 'v6', 'v7')
stamp('o_flag')
for i in range(16):
    for c in range(2):
        for ii in range(2): trd(WOF(i, c) + 2 * ii, 'v2' if c == 0 else 'v3', i * 2048 + ii * 1024)
A(f's_lshl_b32 s13, {sTile}, 5\ns_lshl_b32 s14, {sB}, 4\ns_add_u32 s13, s13, s14\nv_add_u32 v5, s13, v0\nv_lshlrev_b32 v5, 7, v5\nv_add_u32 v5, {WS_FL + F2*128}, v5')
A(f's_lshl_b32 s16, s13, 10\ns_add_u32 s16, s16, {WS_O}\nv_lshlrev_b32 v244, 4, v0')
A('s_waitcnt vmcnt(1)')
for q in range(4):
    for j in range(2):
        A(f'v_lshlrev_b32 v{AK+4*q+2*j}, 16, v{8+2*q+j}\nv_and_b32 v{AK+4*q+2*j+1}, 0xffff0000, v{8+2*q+j}')
A('s_waitcnt lgkmcnt(0)\ns_barrier')
poll('v5', 'v6', 16)
stamp('s3_polled')
for i in range(16):
    if i % 4 == 0 and i: A('s_add_u32 s16, s16, 4096')
    A(f'buffer_load_dwordx4 {v(OF(i),4)}, v244, {SWS}, s16 offen offset:{(i%4)*1024} sc1')
A(f's_lshl_b32 s13, {sW}, 12\ns_add_u32 s13, s13, {A_SCR3}\nv_add_u32 v2, s13, v244\ns_xor_b32 s13, {sW}, 2\ns_lshl_b32 s13, s13, 12\ns_add_u32 s13, s13, {A_SCR3}\nv_add_u32 v3, s13, v244')
A(f's_lshl_b32 s13, {sSub}, 1\ns_add_u32 s13, s13, {sB}')
A(f's_lshl_b32 s14, {sTile}, 4\ns_add_u32 s14, s14, s13')
A(f's_lshl_b32 s16, s14, 11\ns_add_u32 s16, s16, {WS_H}\ns_lshl_b32 s17, s14, 8\ns_add_u32 s17, s17, {WS_ST}\ns_add_u32 s18, s14, {F3}\nv_lshlrev_b32 v5, 2, v0')
A(f'v_mov_b32 v6, 0x3f803f80\nv_mov_b32 v8, 0\nv_mov_b32 v9, 0\nv_mov_b32 v10, 0\nv_mov_b32 v11, 0')
for i in range(16):
    A(f's_waitcnt vmcnt({15-i})')
    mfma(AS, WOF(i, 1), OF(i), '0' if i == 0 else None)
    mfma(AK, WOF(i, 0), OF(i))
stamp('s3_mfma')
for q in range(4): A(f'ds_write_b128 v2, {v(AS+4*q,4)} offset:{q*1024}')
A('s_waitcnt lgkmcnt(0)\ns_barrier')
for q in range(4): A(f'ds_read_b128 {v(AS+4*q,4)}, v3 offset:{q*1024}')
for q in range(4):
    A(f's_waitcnt lgkmcnt({3-q})')
    for j in range(2): A(f'v_pk_add_f32 {v(AK+4*q+2*j,2)}, {v(AK+4*q+2*j,2)}, {v(AS+4*q+2*j,2)}')
    for j in range(2): A(f'v_cvt_pk_bf16_f32 v{HRES+2*q+j}, v{AK+4*q+2*j}, v{AK+4*q+2*j+1}')
    if q % 2: A(f'buffer_store_dwordx4 {v(HRES+2*q-2,4)}, v244, {SWS}, s16 offen offset:{(q//2)*1024} sc1')
for j in range(8):
    A(f'v_dot2c_f32_bf16 v{8+(j&1)}, v{HRES+j}, v6\nv_dot2c_f32_bf16 v{10+(j&1)}, v{HRES+j}, v{HRES+j}')
A('v_add_f32 v8, v8, v9\nv_add_f32 v10, v10, v11')
half_sum2('v8', 'v10')
A(f'buffer_store_dword v8, v5, {SWS}, s17 offen sc1')
A('s_waitcnt vmcnt(0)')
set_flag('s18', 'v6', 'v7')
stamp('s3_flag')
A('s_barrier')
A(f's_cmp_eq_u32 {sM}, 15\ns_cbranch_scc1 Ls4skip')
AC = lambda b: 16 + 16 * b
HF = lambda k: 64 + 4 * k
BF = lambda s, b: 192 + 8 * (s % 3) + 4 * b
B1T = HF(20)
STT = 216
sT4 = 's25'
A(f's_lshl_b32 {sT4}, {sG}, 2\ns_add_u32 {sT4}, {sT4}, {sW}')
tr_lane_addr('v2', 192, 4, 'v4', False)
A(f'v_add_u32 v3, 49152, v2')
A(f'v_lshrrev_b32 v4, 5, v0\nv_lshlrev_b32 v4, 4, v4\nv_add_u32 v4, {RA}, v4')
for b in range(3):
    for q in range(4):
        A(f'ds_read_b128 {v(AC(b)+4*q,4)}, v4 offset:{A_CSF-RA + b*128 + 32*q}')
        A(f'ds_read_b128 {v(B1T+16*b+4*q,4)}, v4 offset:{A_B1F-RA + b*128 + 32*q}')
def w1rd(ks, b, dst):
    a = 'v2' if ks < 16 else 'v3'
    for ii in range(2): trd(dst + 2 * ii, a, (ks % 16) * 3072 + ii * 1536 + b * 64)
for s in range(2):
    for b in range(2): w1rd(s, b, BF(s, b))
A(f's_lshl_b32 s13, {sT4}, 4\nv_add_u32 v5, s13, v0\nv_lshlrev_b32 v5, 7, v5\nv_add_u32 v5, {WS_FL + F3*128}, v5')
A(f's_lshl_b32 s16, {sT4}, 15\ns_add_u32 s16, s16, {WS_H}\ns_lshl_b32 s17, {sT4}, 12\ns_add_u32 s17, s17, {WS_ST}\nv_lshlrev_b32 v7, 2, v0')
poll('v5', 'v6', 16)
stamp('s4_polled')
for i in range(16): A(f'buffer_load_dword v{STT+i}, v7, {SWS}, s17 offen offset:{i*256} sc1')
def hload(k):
    if k % 4 == 0 and k: A('s_add_u32 s16, s16, 4096')
    A(f'buffer_load_dwordx4 {v(HF(k),4)}, v244, {SWS}, s16 offen offset:{(k%4)*1024} sc1')
for k in range(20): hload(k)
A(f's_mul_i32 s17, {sT4}, 86\ns_mul_i32 s13, {sM}, 6\ns_add_u32 s17, s17, s13\ns_lshl_b32 s17, s17, 10\ns_add_u32 s17, s17, {WS_H1}')
A(f's_lshl_b32 s18, {sT4}, 4\ns_add_u32 s18, s18, {sM}\ns_add_u32 s18, s18, {F4}')
A('s_waitcnt vmcnt(20) lgkmcnt(0)')
for st in (8, 4, 2, 1):
    for i in range(st): A(f'v_add_f32 v{STT+i}, v{STT+i}, v{STT+i+st}')
MEAN, STD, RS4 = 232, 234, 236
A(f'v_mov_b32 v{STT+1}, v{STT}\nv_permlane32_swap_b32 v{STT}, v{STT+1}')
A(f'v_mul_f32 v{MEAN}, {hex(f2u(1/512))}, v{STT}\nv_mul_f32 v{STT+1}, {hex(f2u(1/512))}, v{STT+1}')
A(f'v_fma_f32 v{STT+1}, -v{MEAN}, v{MEAN}, v{STT+1}\nv_max_f32 v{STT+1}, 0, v{STT+1}\nv_add_f32 v{STT+1}, {hex(f2u(1e-5))}, v{STT+1}')
A(f'v_rsq_f32 v{RS4}, v{STT+1}\nv_sqrt_f32 v{STD}, v{STT+1}')
for b in range(3):
    for j in range(8): A(f'v_pk_mul_f32 {v(AC(b)+2*j,2)}, {v(AC(b)+2*j,2)}, {v(MEAN,2)} op_sel_hi:[1,0]')
    for j in range(8): A(f'v_pk_fma_f32 {v(AC(b)+2*j,2)}, {v(B1T+16*b+2*j,2)}, {v(STD,2)}, {v(AC(b)+2*j,2)} op_sel_hi:[1,0,1] neg_lo:[0,0,1] neg_hi:[0,0,1]')
for k in range(20, 32): hload(k)
for ks in range(32):
    A(f's_waitcnt vmcnt({31-ks}) lgkmcnt({4 if ks > 0 else 0})' if ks < 31 else 's_waitcnt vmcnt(0) lgkmcnt(4)')
    mfma(AC(0), BF(ks, 0), HF(ks))
    if ks + 2 < 32: w1rd(ks + 2, 0, BF(ks + 2, 0))
    else: w1rd(2 * (ks - 30), 2, 216 + 8 * (ks - 30))
    mfma(AC(1), BF(ks, 1), HF(ks))
    if ks + 2 < 32: w1rd(ks + 2, 1, BF(ks + 2, 1))
    else: w1rd(2 * (ks - 30) + 1, 2, 220 + 8 * (ks - 30))
stamp('s4_phA')
BF2 = lambda s: 216 + 4 * (s % 4)
def epi_ops(b, dst):
    ops = []
    for j in range(8):
        r0, r1 = AC(b) + 2 * j, AC(b) + 2 * j + 1
        ops += [f'v_max_f32 v{r0}, 0, v{r0}', f'v_max_f32 v{r1}, 0, v{r1}', f'v_mul_f32 v{r0}, v{RS4}, v{r0}', f'v_mul_f32 v{r1}, v{RS4}, v{r1}',
                f'v_mul_f32 v{r0}, v{r0}, v{r0}', f'v_mul_f32 v{r1}, v{r1}, v{r1}', f'v_cvt_pk_bf16_f32 v{dst+j}, v{r0}, v{r1}']
        if j == 3: ops.append(('st', b, 0, dst))
        if j == 7: ops.append(('st', b, 1, dst + 4))
    return ops
def h1store(b, hf, src):
    sk = None
    if b > 0:
        sk = L(); A(f's_cmp_eq_u32 {sM}, 14\ns_cbranch_scc1 {sk}')
    off = (2 * b + hf) * 1024
    if off < 4096: A(f'buffer_store_dwordx4 {v(src,4)}, v244, {SWS}, s17 offen offset:{off} sc1')
    else: A(f's_add_u32 s13, s17, 4096\nbuffer_store_dwordx4 {v(src,4)}, v244, {SWS}, s13 offen offset:{off-4096} sc1')
    if sk: A.label(sk)
ep = epi_ops(0, 192) + epi_ops(1, 200)
pos = 0
for ks in range(32):
    A(f's_waitcnt lgkmcnt({min(6, 2*(31-ks))})')
    mfma(AC(2), BF2(ks), HF(ks))
    if ks + 4 < 32: w1rd(ks + 4, 2, BF2(ks + 4))
    if ks >= 1:
        n = 4
        for x in ep[pos:pos+n]:
            if isinstance(x, tuple): h1store(x[1], x[2], x[3])
            else: A(x)
        pos += n
assert pos >= len(ep)
stamp('s4_phB')
A('s_barrier')
for j in range(16): A(f'v_max_f32 v{AC(2)+j}, 0, v{AC(2)+j}')
for j in range(8): A(f'v_pk_mul_f32 {v(AC(2)+2*j,2)}, {v(AC(2)+2*j,2)}, {v(RS4,2)} op_sel_hi:[1,0]')
for j in range(8): A(f'v_pk_mul_f32 {v(AC(2)+2*j,2)}, {v(AC(2)+2*j,2)}, {v(AC(2)+2*j,2)}')
for j in range(8): A(f'v_cvt_pk_bf16_f32 v{208+j}, v{AC(2)+2*j}, v{AC(2)+2*j+1}')
h1store(2, 0, 208); h1store(2, 1, 212)
A('s_waitcnt vmcnt(0)')
set_flag('s18', 'v6', 'v7')
stamp('s4_flag')
A('s_branch Ls5')
A.label('Ls4skip')
A('s_barrier')
A.label('Ls5')
NW = 40
GF = lambda s: 48 + 4 * (s % NW)
B5 = lambda s, c: 208 + 8 * (s % 3) + 4 * c
A(f'v_lshrrev_b32 v4, 5, v0\nv_lshlrev_b32 v4, 3, v4\ns_lshl_b32 s13, {sSub}, 7\ns_lshl_b32 s14, {sB}, 6\ns_add_u32 s13, s13, s14')
for q in range(4): A(f'buffer_load_dwordx2 {v(8+2*q,2)}, v4, {SB2}, s13 offen offset:{16*q}')
tr_lane_addr('v2', 128, 4, 'v4', True, sB)
A(f's_mul_i32 s13, {sB}, 49152\ns_add_u32 s13, s13, {RB}\nv_add_u32 v234, s13, v2\nv_xor_b32 v235, 64, v234')
A(f's_mul_i32 s13, {sB}, 30720\ns_add_u32 s13, s13, {A_W2}\nv_add_u32 v232, s13, v2\nv_xor_b32 v233, 64, v232')
A(f's_lshl_b32 s14, {sA}, 12\ns_add_u32 s13, s13, s14\ns_add_u32 s13, s13, 8192\nv_add_u32 v236, s13, v244')
A(f's_xor_b32 s15, {sB}, 1\ns_mul_i32 s13, s15, 30720\ns_add_u32 s13, s13, s14\ns_add_u32 s13, s13, {A_W2 + 8192}\nv_add_u32 v237, s13, v244')
def w2rd(s):
    for c in range(2):
        if s < 15: a, off = ('v232', 'v233')[c], s * 2048
        elif s < 39: a, off = ('v234', 'v235')[c], (s - 15) * 2048
        else: a, off = ('v232', 'v233')[c], (s - 39) * 2048
        for ii in range(2): trd(B5(s, c) + 2 * ii, a, off + ii * 1024)
w2rd(0); w2rd(1)
A(f's_lshl_b32 s13, {sTile}, 4\ns_mul_i32 s14, {sB}, 7\ns_add_u32 s13, s13, s14\nv_add_u32 v5, s13, v0\nv_lshlrev_b32 v5, 7, v5\nv_add_u32 v5, {WS_FL + F4*128}, v5')
A(f's_mul_i32 s16, {sTile}, 86\ns_mul_i32 s13, {sB}, 43\ns_add_u32 s16, s16, s13\ns_lshl_b32 s16, s16, 10\ns_add_u32 s16, s16, {WS_H1}')
A('s_waitcnt vmcnt(0)')
for j in range(8):
    A(f'v_lshlrev_b32 v{AK+2*j}, 16, v{8+j}\nv_and_b32 v{AK+2*j+1}, 0xffff0000, v{8+j}')
    A(f'v_lshlrev_b32 v6, 16, v{HRES+j}\nv_and_b32 v7, 0xffff0000, v{HRES+j}')
    A(f'v_add_f32 v{AK+2*j}, v{AK+2*j}, v6\nv_add_f32 v{AK+2*j+1}, v{AK+2*j+1}, v7')
poll('v5', 'v6', 8)
stamp('s5_polled')
def gload(s):
    if s % 4 == 0 and s: A('s_add_u32 s16, s16, 4096')
    A(f'buffer_load_dwordx4 {v(GF(s),4)}, v244, {SWS}, s16 offen offset:{(s%4)*1024} sc1')
for s in range(NW): gload(s)
A(f'v_and_b32 v4, 31, v0\nv_lshlrev_b32 v4, 10, v4\nv_lshrrev_b32 v5, 5, v0\nv_lshl_add_u32 v4, v5, 4, v4')
issued = NW
for s in range(43):
    A(f's_waitcnt vmcnt({issued-1-s}) lgkmcnt({4 if s < 42 else 0})')
    mfma(AS, B5(s, 1), GF(s), '0' if s == 0 else None)
    mfma(AK, B5(s, 0), GF(s))
    if s == 2: A('s_waitcnt lgkmcnt(0)\ns_barrier')
    if s == 36: A('s_barrier')
    if s + 2 < 43 and s != 1: w2rd(s + 2)
    if s == 1: w2rd(3)
    if issued < 43: gload(issued); issued += 1
stamp('s5_mfma')
for q in range(4): A(f'ds_write_b128 v236, {v(AS+4*q,4)} offset:{q*1024}')
A('s_waitcnt lgkmcnt(0)\ns_barrier')
for q in range(4): A(f'ds_read_b128 {v(AS+4*q,4)}, v237 offset:{q*1024}')
for q in range(4):
    A(f's_waitcnt lgkmcnt({3-q})')
    for j in range(2): A(f'v_pk_add_f32 {v(AK+4*q+2*j,2)}, {v(AK+4*q+2*j,2)}, {v(AS+4*q+2*j,2)}')
    for j in range(2): A(f'v_cvt_pk_bf16_f32 v{8+2*q+j}, v{AK+4*q+2*j}, v{AK+4*q+2*j+1}')
    if q % 2:
        b = 8 + 2 * q - 2
        A(f'v_permlane32_swap_b32 v{b}, v{b+2}\nv_permlane32_swap_b32 v{b+1}, v{b+3}')
        A(f'buffer_store_dwordx4 {v(b,4)}, v4, {SOUT}, s24 offen offset:{(q//2)*32}')
stamp('end')
if OPT['until']:
    A.label('Lspin')
    A(f's_memtime s[88:89]\ns_waitcnt lgkmcnt(0)\ns_sub_u32 s88, s88, s84\ns_cmp_lt_u32 s88, {OPT["until"]}\ns_cbranch_scc1 Lspin')
if OPT['spin']:
    A('s_memtime s[86:87]\ns_waitcnt lgkmcnt(0)')
    A.label('Lspin')
    A(f's_memtime s[88:89]\ns_waitcnt lgkmcnt(0)\ns_sub_u32 s88, s88, s86\ns_cmp_lt_u32 s88, {OPT["spin"]}\ns_cbranch_scc1 Lspin')
A('s_endpgm')

A.label('Lloader2')
A(f's_and_b32 {sI}, {sW}, 3')
A(f'v_lshrrev_b32 v2, 3, v0\nv_and_b32 v3, 7, v0\nv_bfe_u32 v4, v0, 4, 1\nv_lshlrev_b32 v4, 2, v4\nv_xor_b32 v4, v4, v3\nv_lshlrev_b32 v4, 4, v4\nv_lshl_add_u32 {VWO}, v2, 10, v4')
for ph in range(3):
    A(f'v_add_u32 v2, {64*ph}, v0\nv_mul_u32_u24 v3, 171, v2\nv_lshrrev_b32 v3, 11, v3\nv_mul_u32_u24 v4, 12, v3\nv_sub_u32 v4, v2, v4')
    A(f'v_mul_u32_u24 v3, 2752, v3\nv_lshl_add_u32 v{8+ph}, v4, 4, v3')
A(f's_mul_i32 s16, {sI}, {128*2752}\ns_mul_i32 s13, {sM}, 192\ns_add_u32 s16, s16, s13\ns_mul_i32 s18, {sI}, {128*192}\ns_add_u32 s18, s18, {RB}')
def w1grp():
    for ph in range(3):
        A(f's_add_u32 m0, s18, {ph*1024}'); dma(f'v{8+ph}', SW1, 's16')
    A(f's_add_u32 s16, s16, {16*2752}\ns_add_u32 s18, s18, 3072')
for g in range(2): w1grp()
A('s_waitcnt vmcnt(6)')
set_flag('s22', 'v6', 'v7')
stamp('o_flag')
for g in range(6): w1grp()
A(f's_mul_i32 s13, {sM}, 192\nv_lshlrev_b32 v2, 1, v0\nbuffer_load_ushort v12, v2, {SB1}, s13 offen\nbuffer_load_ushort v13, v2, {SB1}, s13 offen offset:128')
tr_lane_addr('v2', 192, 4, 'v4', False)
A(f's_mul_i32 s13, {sI}, {128*192}\nv_add_u32 v2, s13, v2\nv_mov_b32 v3, 0x3f803f80')
for r in range(16, 22): A(f'v_mov_b32 v{r}, 0')
A('s_barrier')
A('s_waitcnt vmcnt(0)')
stamp('ld_c')
for half in range(2):
    for s in range(4):
        for b in range(3):
            for ii in range(2): trd(32 + 12 * s + 4 * b + 2 * ii, 'v2', (4 * half + s) * 3072 + ii * 1536 + b * 64)
    A('s_waitcnt lgkmcnt(0)')
    for s in range(4):
        for j in range(4):
            for b in range(3): A(f'v_dot2c_f32_bf16 v{16+2*b+(j&1)}, v{32+12*s+4*b+j}, v3')
A('v_add_f32 v16, v16, v17\nv_add_f32 v18, v18, v19\nv_add_f32 v20, v20, v21\nv_mov_b32 v21, v20')
half_sum2('v16', 'v18'); half_sum2('v20', 'v21')
A(f's_mul_i32 s13, {sI}, 384\ns_add_u32 s13, s13, {A_PART}\nv_lshlrev_b32 v4, 2, v0\nv_add_u32 v5, s13, v4')
A('ds_write_b32 v5, v16\ns_mov_b32 exec_hi, 0\nds_write_b32 v5, v20 offset:256\ns_mov_b32 exec_hi, -1')
A('s_waitcnt lgkmcnt(0)\ns_barrier')
A(f'v_add_u32 v4, {RA}, v4')
for i in range(4): A(f'ds_read_b32 v{16+i}, v4 offset:{i*384}\nds_read_b32 v{20+i}, v4 offset:{i*384+256}')
A('v_lshlrev_b32 v12, 16, v12\nv_lshlrev_b32 v13, 16, v13\ns_waitcnt lgkmcnt(0)')
A('v_add_f32 v16, v16, v17\nv_add_f32 v18, v18, v19\nv_add_f32 v20, v20, v21\nv_add_f32 v22, v22, v23\nv_add_f32 v16, v16, v18\nv_add_f32 v20, v20, v22')
A(f'ds_write_b32 v4, v16 offset:{A_CSF-RA}\nds_write_b32 v4, v12 offset:{A_B1F-RA}\ns_mov_b32 exec_hi, 0')
A(f'ds_write_b32 v4, v20 offset:{A_CSF-RA+256}\nds_write_b32 v4, v13 offset:{A_B1F-RA+256}\ns_mov_b32 exec_hi, -1')
A('s_waitcnt lgkmcnt(0)\ns_barrier')
A(f's_mul_i32 s16, {sB}, {43*16*1024}\ns_lshl_b32 s13, {sA}, 13\ns_add_u32 s16, s16, s13\ns_lshl_b32 s13, {sSub}, 7\ns_add_u32 s16, s16, s13')
def w2loop(n, ldsbase, khstride):
    A(f's_mul_i32 s18, {sB}, {khstride}\ns_lshl_b32 s13, {sA}, 10\ns_add_u32 s18, s18, s13\ns_add_u32 s18, s18, {ldsbase}\ns_mov_b32 s19, {n}')
    lp = L(); A.label(lp)
    A('s_mov_b32 m0, s18'); dma(VWO, SW2, 's16')
    A(f's_add_u32 s16, s16, 16384\ns_add_u32 s18, s18, 2048\ns_sub_u32 s19, s19, 1\ns_cmp_lg_u32 s19, 0\ns_cbranch_scc1 {lp}')
w2loop(15, A_W2, 30720)
A('s_waitcnt vmcnt(0)\ns_barrier')
w2loop(24, RB, 49152)
A('s_waitcnt vmcnt(0)')
stamp('ld_d')
A('s_barrier')
w2loop(4, A_W2, 30720)
A('s_waitcnt vmcnt(0)\ns_barrier')
A('s_barrier')
A.label('Lexit')
A('s_endpgm')
A.label('Lcodeend')

n = A.fix_hazards()
hdr = open('cdna_kernels/' + NAME + '.s.ref').read().split('; Override')[0]
out = hdr + f'; @launch grid=(256,1,1) block=(512,1,1) lds=163840\n.amdgcn_target "amdgcn-amd-amdhsa--gfx950"\n.text\n.globl {NAME}_kernel\n.p2align 8\n.type {NAME}_kernel,@function\n{NAME}_kernel:\n'
out += A.text()
out += f'''.fill 64, 4, 0xbf800000
.section .rodata,"a"
.p2align 6
.amdhsa_kernel {NAME}_kernel
  .amdhsa_next_free_vgpr 256
  .amdhsa_next_free_sgpr 102
  .amdhsa_accum_offset 256
  .amdhsa_group_segment_fixed_size 0
  .amdhsa_kernarg_size 88
  .amdhsa_user_sgpr_count 2
  .amdhsa_user_sgpr_kernarg_segment_ptr 1
  .amdhsa_system_sgpr_workgroup_id_x 1
  .amdhsa_float_denorm_mode_32 3
.end_amdhsa_kernel
'''
open(sys.argv[1], 'w').write(out)
print('nops inserted:', n, 'instructions:', len(A.ins))
```

```python
import sys, math, struct
from emit import Asm
NAME = "sequential_preLN__sliding_block__dense_activation_squared_relu__prompt"
OPT = dict(stamps=0, until=0, fast=1, pf=1, wbl2=0, outsc=0, la3=8, la4=8, la5=10, pfa=2, pfc=1, pfd=1, p1pos=0, nt=0)
for a in sys.argv[2:]:
    k, v_ = a.split('='); assert k in OPT, k; OPT[k] = int(v_)

WS_KV, WS_O, WS_H, WS_ST, WS_H1, WS_FL = 0x0, 0x400000, 0x600000, 0x800000, 0x900000, 0x1000000
WS_STAMP = 0x2000000
F1, F2, F3, F4 = 0, 64*16, 64*48, 64*64
RB, RA = 0, 98304
SL = 16384
L_STAT, L_CNT, L_PR = 0, 512, 1024
L_Q, L_K, L_V, VT = 4096, 12288, 53248, 4160
L_WQ = 2 * SL
A_PART, A_CSF, A_B1F, A_W2, A_SCR3 = RA, RA + 1536, RA + 2048, RA + 4096, RA + 4096
TIMEOUT = 400000
CSC = 0.25 * math.log2(math.e)
def f2u(x): return hex(struct.unpack('<I', struct.pack('<f', x))[0])

sW, sT, sSub, sG, sM = 's3', 's4', 's5', 's6', 's7'
SX, SWQ, SWO, SW1, SB1, SW2, SB2, SOUT, SWS, SDBG = [f's[{b}:{b+3}]' for b in range(40, 80, 4)]
sA, sB, sI, sMode, sJ = 's80', 's81', 's82', 's83', 's38'
def v(a, n=1): return f'v{a}' if n == 1 else f'v[{a}:{a+n-1}]'

A = Asm()
uid = [0]
def L(p='L'):
    uid[0] += 1; return f'{p}{uid[0]}'
STAMP_NAMES = ['start', 's1_c0', 's1_loop_end', 's1_bs1', 's1_stored', 's1_flag', 'kv_ready', 'att_p1', 'att_end', 'o_flag',
               's3_polled', 's3_mfma', 's3_flag', 's4_polled', 's4_phA', 's4_phB', 's4_flag', 's5_polled', 's5_mfma', 'end',
               'ld_a', 'ld_b', 'ld_c', 'ld_d', 'x0', 'x1', 'x2', 'x3', 'x4', 'x5', 'x6', 'x7']
SID = {n: i for i, n in enumerate(STAMP_NAMES)}
def stamp(name):
    if not OPT['stamps']: return
    A(f's_memtime s[98:99]\ns_waitcnt lgkmcnt(0)\nv_mov_b32 v247, s98\nv_mov_b32 v246, s97\ns_mov_b64 s[94:95], exec\ns_mov_b64 exec, 1')
    A(f'buffer_store_dword v247, v246, {SWS}, 0 offen offset:{4*SID[name]}\ns_mov_b64 exec, s[94:95]')

def poll(vaddr, vtmp, nlanes):
    lp, dn = L('Lpoll'), L('Lpd')
    A(f's_mov_b32 exec_lo, {hex((1 << nlanes) - 1)}\ns_mov_b32 exec_hi, 0\ns_mov_b32 s8, 0')
    A.label(lp)
    A(f'buffer_load_dword {vtmp}, {vaddr}, {SWS}, 0 offen sc1\ns_add_u32 s8, s8, 1\ns_waitcnt vmcnt(0)')
    A(f'v_cmp_eq_u32 vcc, 0, {vtmp}\ns_cmp_gt_u32 s8, {TIMEOUT}\ns_cbranch_scc1 {dn}\ns_cbranch_vccnz {lp}')
    A.label(dn)
    A('s_mov_b64 exec, -1')
def lds_wait(off, want, va, vt):
    lp, dn = L('Llw'), L('Llwd')
    A(f'v_mov_b32 {va}, {off}\ns_mov_b32 s8, 0')
    A.label(lp)
    A(f'ds_read_b32 {vt}, {va}\ns_add_u32 s8, s8, 1\ns_waitcnt lgkmcnt(0)\nv_readfirstlane_b32 s9, {vt}')
    A(f's_cmp_gt_u32 s8, {TIMEOUT*4}\ns_cbranch_scc1 {dn}\ns_cmp_lt_u32 s9, {want}\ns_cbranch_scc1 {lp}')
    A.label(dn)
def lds_inc(off, va, vt):
    A(f'v_mov_b32 {va}, {off}\nv_mov_b32 {vt}, 1\ns_mov_b64 exec, 1\nds_add_u32 {va}, {vt}\ns_mov_b64 exec, -1')
def dual(lines, always_slow=False):
    if always_slow or not OPT['fast']:
        for x in lines: A(x + ' sc1')
        return
    ls, ld = L('Lsl'), L('Lsd')
    A(f's_cmp_eq_u32 {sMode}, 0\ns_cbranch_scc1 {ls}')
    for x in lines: A(x + ['', ' nt', ' sc0', ' sc0 nt'][OPT['nt']])
    A(f's_branch {ld}'); A.label(ls)
    for x in lines: A(x + ' sc1')
    A.label(ld)
def set_flag(sidx, vt0, vt1, slow=False):
    A(f's_lshl_b32 s9, {sidx}, 7\ns_add_u32 s9, s9, {WS_FL}\nv_mov_b32 {vt0}, s9\nv_mov_b32 {vt1}, 1\ns_mov_b64 exec, 1')
    dual([f'buffer_store_dword {vt1}, {vt0}, {SWS}, 0 offen'], slow)
    A('s_mov_b64 exec, -1')
def tr_lane_addr(dst, rowstride, hrows, tmp, swz=True, flip=None):
    A(f'v_lshrrev_b32 {dst}, 5, v0\nv_mul_u32_u24 {dst}, {hrows}, {dst}\nv_bfe_u32 {tmp}, v0, 2, 2\nv_add_u32 {dst}, {dst}, {tmp}')
    A(f'v_mul_u32_u24 {dst}, {rowstride}, {dst}')
    if swz:
        A(f'v_bfe_u32 {tmp}, v0, 3, 1')
        if flip: A(f'v_xor_b32 {tmp}, {flip}, {tmp}')
        A(f'v_lshl_add_u32 {dst}, {tmp}, 6, {dst}')
    A(f'v_bfe_u32 {tmp}, v0, 4, 1\nv_lshl_add_u32 {dst}, {tmp}, 5, {dst}')
    A(f'v_and_b32 {tmp}, 3, v0\nv_lshl_add_u32 {dst}, {tmp}, 3, {dst}')
MF = 'v_mfma_f32_32x32x16_bf16'
def mfs(d, a, b, c=None):
    cs = v(d, 16) if c is None else (c if isinstance(c, str) else v(c, 16))
    return f'{MF} {v(d,16)}, {v(a,4)}, {v(b,4)}, {cs}'
def mfma(d, a, b, c=None): A(mfs(d, a, b, c))
def trs(d, addr, off): return f'ds_read_b64_tr_b16 {v(d,2)}, {addr} offset:{off}'
def trd(d, addr, off): A(trs(d, addr, off))
def dma(voff, srd, soff, sc=''): A(f'buffer_load_dwordx4 {voff}, {srd}, {soff} offen{sc} lds')
def half_sum2(a, b): A(f'v_permlane32_swap_b32 {a}, {b}\nv_add_f32 {a}, {a}, {b}')
def att_masks():
    A('v_and_b32 v232, 31, v0\nv_lshrrev_b32 v233, 5, v0\nv_lshlrev_b32 v233, 2, v233\nv_sub_u32 v232, v232, v233')
    A('v_mov_b32 v234, 0xff800000\nv_mov_b32 v235, 0')
    for r in range(16):
        key = (r & 3) + 8 * (r >> 2)
        A(f'v_cmp_le_i32 vcc, {key}, v232\nv_cndmask_b32 v{56+r}, v234, v235, vcc\nv_cndmask_b32 v{72+r}, v235, v234, vcc')
def x_frag_addrs(AX):
    A(f'v_and_b32 v2, 31, v0\nv_bfe_u32 v3, v0, 1, 3\nv_lshrrev_b32 v4, 5, v0\nv_xor_b32 v3, v3, v4')
    A(f's_lshl_b32 s13, {sA}, 12\ns_add_u32 s13, s13, {RA}\nv_lshlrev_b32 v2, 7, v2\nv_add_u32 v2, s13, v2')
    for p in range(4): A(f'v_xor_b32 v4, {2*p}, v3\nv_lshl_add_u32 {AX(p)}, v4, 4, v2')
def wo_voff(dst):
    A(f'v_lshrrev_b32 v2, 3, v0\nv_and_b32 v3, 7, v0\nv_bfe_u32 v4, v0, 4, 1\nv_lshlrev_b32 v4, 2, v4\nv_xor_b32 v4, v4, v3\nv_lshlrev_b32 v4, 4, v4\nv_lshl_add_u32 {dst}, v2, 10, v4')
def pk_norm(t, acc, rs, mul, out, per_reg_rs=False):
    for j in range(8): A(f'v_pk_mul_f32 {v(t+2*j,2)}, {v(t+2*j,2)}, {v(mul,2)} op_sel_hi:[1,0]')
    for j in range(8):
        if per_reg_rs: A(f'v_pk_fma_f32 {v(t+2*j,2)}, {v(acc+2*j,2)}, {v(rs+2*j,2)}, {v(t+2*j,2)} neg_lo:[0,0,1] neg_hi:[0,0,1]')
        else: A(f'v_pk_fma_f32 {v(t+2*j,2)}, {v(acc+2*j,2)}, {v(rs,2)}, {v(t+2*j,2)} op_sel_hi:[1,0,1] neg_lo:[0,0,1] neg_hi:[0,0,1]')
    for j in range(8): A(f'v_cvt_pk_bf16_f32 v{out+j}, v{t+2*j}, v{t+2*j+1}')
def touch(srd, sbase, n, first=0):
    for i in range(first, first + n):
        A(f's_add_u32 s13, {sbase}, {i*8192}\nbuffer_load_dword v239, v245, {srd}, s13 offen')

A(f's_cmp_ge_u32 s2, 256\ns_cbranch_scc1 Lexit')
if OPT['until']: A('s_memtime s[84:85]')
A('s_load_dwordx16 s[16:31], s[0:1], 0\ns_load_dwordx4 s[32:35], s[0:1], 64\ns_load_dwordx2 s[36:37], s[0:1], 80')
A(f'v_lshrrev_b32 v1, 6, v0\nv_and_b32 v0, 63, v0\nv_readfirstlane_b32 {sW}, v1')
A(f's_and_b32 s8, s2, 7\ns_lshr_b32 {sJ}, s2, 3\ns_and_b32 {sM}, {sJ}, 15\ns_lshr_b32 s9, {sJ}, 4\ns_lshl_b32 {sG}, s8, 1\ns_add_u32 {sG}, {sG}, s9')
A(f's_lshr_b32 s9, {sM}, 3\ns_lshl_b32 {sT}, {sG}, 1\ns_add_u32 {sT}, {sT}, s9\ns_and_b32 {sSub}, {sM}, 7')
A(f's_and_b32 {sA}, {sW}, 1\ns_bfe_u32 {sB}, {sW}, 0x10001\ns_and_b32 {sI}, {sW}, 3\ns_mov_b32 {sMode}, 0')
A('s_waitcnt lgkmcnt(0)')
def srd(b, p, sz): A(f's_mov_b32 s{b}, s{p}\ns_and_b32 s{b+1}, s{p+1}, 0xffff\ns_mov_b32 s{b+2}, {sz}\ns_mov_b32 s{b+3}, 0x20000')
srd(40, 16, 2097152); srd(44, 18, 1572864)
A(f's_cmp_ge_u32 {sW}, 4\ns_cbranch_scc1 Lloader')
def other_srds():
    for (b, p, sz) in ((72, 36, 268435456), (76, 34, 256), (48, 20, 524288), (52, 24, 1409024), (56, 26, 2752), (60, 28, 1409024),
                       (64, 30, 1024), (68, 32, 2097152)): srd(b, p, sz)
    if OPT['stamps']:
        A(f's_lshl_b32 s97, s2, 3\ns_add_u32 s97, s97, {sW}\ns_lshl_b32 s97, s97, 7\ns_add_u32 s97, s97, {WS_STAMP}')
other_srds()
stamp('start')
aK_, aV = 16, 32
XF = lambda p: 64 + 4 * p
WF = lambda p, b: 80 + 8 * p + 4 * b
CK, CV_ = 128, 130
ONES = 'v138'
AX = lambda p: f'v{140+p}'
AW = 'v144'
A(f's_getreg_b32 s39, hwreg(HW_REG_XCC_ID)\ns_and_b32 s39, s39, 15\ns_or_b32 s39, s39, 0x80')
lpf, lgo = L(), L()
A(f's_cmp_lg_u32 {sW}, 0\ns_cbranch_scc1 {lpf}')
A(f's_mul_i32 s8, s2, 20\nv_add_u32 v2, s8, v0\nv_lshlrev_b32 v2, 7, v2\nv_add_u32 v2, {WS_FL}, v2\nv_mov_b32 v3, 0')
A(f's_mov_b32 exec_lo, 0xfffff\ns_mov_b32 exec_hi, 0\nbuffer_store_dword v3, v2, {SWS}, 0 offen sc1')
A(f'v_lshlrev_b32 v4, 2, v0\nds_write_b32 v4, v3 offset:{L_CNT}')
A(f's_lshl_b32 s8, {sG}, 4\ns_and_b32 s9, {sM}, 12\ns_add_u32 s8, s8, s9\ns_and_b32 s9, {sM}, 3\ns_lshl_b32 s9, s9, 3\ns_lshl_b32 s9, s39, s9')
A(f'v_mov_b32 v2, s8\nv_mov_b32 v3, s9\ns_mov_b64 exec, 1\ns_waitcnt vmcnt(0) lgkmcnt(0)')
A(f'buffer_atomic_or v3, v2, {SDBG}, 0 offen sc1\ns_mov_b64 exec, -1\ns_branch {lgo}')
A.label(lpf)
A(f's_cmp_eq_u32 {sW}, 3\ns_cbranch_scc1 {lgo}')
A('s_getpc_b64 s[10:11]')
A.label('Lpc')
A(f's_lshl_b32 s9, {sW}, 4\ns_add_u32 s8, {sJ}, s9\ns_and_b32 s8, s8, 31\ns_lshl_b32 s8, s8, 10')
A(f's_min_u32 s8, s8, Lcodeend-Lpc-1024\ns_add_u32 s10, s10, s8\ns_addc_u32 s11, s11, 0\ns_and_b32 s10, s10, -16\nv_lshlrev_b32 v2, 4, v0')
A('global_load_dwordx4 v[4:7], v2, s[10:11]')
A.label(lgo)
for r in list(range(16, 48)) + list(range(WF(2, 0), WF(4, 0))) + list(range(128, 132)): A(f'v_mov_b32 v{r}, 0')
A(f'v_mov_b32 {ONES}, 0x3f803f80')
x_frag_addrs(AX)
tr_lane_addr(AW, 128, 8, 'v2', True, sB)
A(f'v_add_u32 {AW}, {4*SL}, {AW}\ns_mov_b32 s15, 0\nv_lshlrev_b32 v146, 2, v0')
def p1_reads(p):
    out = [f'ds_read_b128 {v(XF(p),4)}, {AX(p)}']
    for b in range(2):
        for i in range(2): out.append(trs(WF(p, b) + 2 * i, AW, p * 2048 + i * 512 + b * 8192))
    return out
def p1_mf(p): return [mfs(aK_, WF(p, 0), XF(p)), mfs(aV, XF(p), WF(p, 1))]
def p1_dots(ps):
    for p in ps:
        for j in range(4):
            A(f'v_dot2c_f32_bf16 v{CK+(j&1)}, v{WF(p,0)+j}, {ONES}\nv_dot2c_f32_bf16 v{CV_+(j&1)}, v{WF(p,1)+j}, {ONES}')
A.label('Ls1')
A('s_barrier')
for x in p1_reads(0) + p1_reads(1): A(x)
ldb = L()
A(f's_cmp_lg_u32 s15, 4\ns_cbranch_scc1 {ldb}\nbuffer_load_dword v147, v146, {SDBG}, 0 offen sc1')
A.label(ldb)
p1_dots((2, 3))
A('s_waitcnt lgkmcnt(0)')
rd = p1_reads(2) + p1_reads(3); mm = p1_mf(0) + p1_mf(1); k = 0
for i, m in enumerate(mm):
    A(m); n = (3, 3, 2, 2)[i]
    for x in rd[k:k+n]: A(x)
    k += n
A(f's_mov_b32 s13, {SL}\ns_cmp_eq_u32 s15, 1\ns_cselect_b32 s13, {-4*SL}, s13\ns_cmp_eq_u32 s15, 6\ns_cselect_b32 s13, {-4*SL}, s13\ns_add_u32 s15, s15, 1')
A('s_waitcnt lgkmcnt(5)')
m2 = p1_mf(2)
A(m2[0]); A(f'v_add_u32 {AX(0)}, 8192, {AX(0)}\nv_add_u32 {AX(1)}, 8192, {AX(1)}\nv_add_u32 {AX(2)}, 8192, {AX(2)}')
A(m2[1]); A(f'v_add_u32 {AX(3)}, 8192, {AX(3)}\nv_add_u32 {AW}, s13, {AW}')
A('s_waitcnt lgkmcnt(0)')
for m in p1_mf(3): A(m)
p1_dots((0, 1))
A('s_cmp_lt_u32 s15, 8\ns_cbranch_scc1 Ls1')
stamp('s1_loop_end')
p1_dots((2, 3))
CSV = 152
A(f'v_add_f32 v{CK}, v{CK}, v{CK+1}\nv_add_f32 v{CV_}, v{CV_}, v{CV_+1}')
half_sum2(f'v{CK}', f'v{CV_}')
A(f's_lshl_b32 s13, {sW}, 8\ns_add_u32 s13, s13, {L_PR}\nv_add_u32 v6, s13, v146\nds_write_b32 v6, v{CK}')
A(f'v_lshrrev_b32 v7, 5, v0\nv_lshlrev_b32 v7, 4, v7\nv_add_u32 v8, s13, v7\nv_and_b32 v9, 31, v0\nv_lshlrev_b32 v9, 2, v9\nv_add_u32 v10, s13, v9')
tK, tRS, tMRS = 64, 80, 96
A('s_waitcnt lgkmcnt(0)')
for q in range(4): A(f'ds_read_b128 {v(tK+4*q,4)}, v8 offset:{32*q}')
A(f'ds_read_b32 v{CSV}, v10 offset:128')
lchk, lok = L(), L()
A('s_mov_b32 s8, 0')
A.label(lchk)
A(f's_waitcnt vmcnt(0)\nv_and_b32 v2, 0x80808080, v147\nv_cmp_ne_u32 vcc, 0x80808080, v2\ns_add_u32 s8, s8, 1')
A(f's_cbranch_vccz {lok}\ns_cmp_gt_u32 s8, {TIMEOUT}\ns_cbranch_scc1 {lok}')
A(f'buffer_load_dword v147, v146, {SDBG}, 0 offen sc1\ns_branch {lchk}')
A.label(lok)
A(f's_mul_i32 s9, s39, 0x01010101\nv_cmp_eq_u32 vcc, s9, v147\ns_lshl_b32 s9, {sG}, 2\ns_lshr_b64 s[10:11], vcc, s9\ns_and_b32 s10, s10, 15')
A(f's_cmp_eq_u32 s10, 15\ns_cselect_b32 {sMode}, 1, 0\nv_mov_b32 v2, {L_CNT+8}\nv_mov_b32 v3, {sMode}\nds_write_b32 v2, v3')
A(f's_lshl_b32 s13, {sA}, 7\nv_add_u32 v7, s13, v7\nv_add_u32 v9, s13, v9')
A(f's_lshl_b32 s13, {sT}, 1\ns_add_u32 s13, s13, {sA}\ns_lshl_b32 s16, s13, 3\ns_add_u32 s16, s16, {sSub}\ns_lshl_b32 s16, s16, 13')
A(f's_lshl_b32 s14, {sB}, 11\ns_add_u32 s16, s16, s14\ns_add_u32 s17, s16, 4096')
A(f's_lshl_b32 s18, s13, 4\ns_lshl_b32 s14, {sSub}, 1\ns_add_u32 s18, s18, s14\ns_add_u32 s18, s18, {sB}\nv_lshlrev_b32 v14, 4, v0')
A('s_waitcnt lgkmcnt(0)\ns_barrier')
stamp('s1_bs1')
RS, MRS = 148, 150
A(f'ds_read_b32 v{RS}, v9 offset:{L_STAT}\nds_read_b32 v{MRS}, v9 offset:{L_STAT+256}')
for q in range(4): A(f'ds_read_b128 {v(tMRS+4*q,4)}, v7 offset:{L_STAT+256+32*q}')
for q in range(4): A(f'ds_read_b128 {v(tRS+4*q,4)}, v7 offset:{L_STAT+32*q}')
KF, VF = 156, 164
A('s_waitcnt lgkmcnt(8)')
pk_norm(tK, aK_, RS, MRS, KF)
A(f'buffer_store_dwordx4 {v(KF,4)}, v14, {SWS}, s16 offen sc1\nbuffer_store_dwordx4 {v(KF+4,4)}, v14, {SWS}, s16 offen offset:1024 sc1')
A('s_waitcnt lgkmcnt(0)')
pk_norm(tMRS, aV, tRS, CSV, VF, True)
A(f'buffer_store_dwordx4 {v(VF,4)}, v14, {SWS}, s17 offen sc1\nbuffer_store_dwordx4 {v(VF+4,4)}, v14, {SWS}, s17 offen offset:1024 sc1')
stamp('s1_stored')
att_masks()
A(f's_lshl_b32 s13, {sA}, 12\ns_lshl_b32 s14, {sB}, 11\ns_add_u32 s13, s13, s14\ns_add_u32 s13, s13, {L_K + 8*4096}\nv_add_u32 v15, s13, v14')
A(f's_mul_i32 s13, {sA}, {VT}\ns_mul_i32 s14, {sB}, 2080\ns_add_u32 s13, s13, s14\ns_add_u32 s13, s13, {L_V + 8*VT}\nv_add_u32 v146, s13, v14')
A(f'v_lshrrev_b32 v8, 2, v0\nv_mul_u32_u24 v8, {VT}, v8\nv_and_b32 v9, 3, v0\nv_mul_u32_u24 v9, 1040, v9\nv_add_u32 v8, v8, v9')
for r in range(10, 14): A(f'v_mov_b32 v{r}, 0x3f803f80')
A('s_waitcnt vmcnt(0)')
set_flag('s18', 'v2', 'v3', slow=True)
stamp('s1_flag')
sTile = 's23'
HRES = 248
A(f's_lshl_b32 {sTile}, {sT}, 1\ns_add_u32 {sTile}, {sTile}, {sA}')
A(f'v_and_b32 v4, 31, v0\nv_lshlrev_b32 v4, 10, v4\nv_lshrrev_b32 v5, 5, v0\nv_lshl_add_u32 v4, v5, 3, v4')
A(f's_lshl_b32 s24, {sTile}, 15\ns_lshl_b32 s13, {sSub}, 7\ns_add_u32 s24, s24, s13\ns_lshl_b32 s13, {sB}, 6\ns_add_u32 s24, s24, s13')
for q in range(4): A(f'buffer_load_dwordx2 {v(HRES+2*q,2)}, v4, {SX}, s24 offen offset:{16*q}')
lnh, lnh2 = L(), L()
A(f's_add_u32 s19, {sT}, {sI}\ns_cmp_lt_u32 s19, 4\ns_cbranch_scc1 {lnh}')
A(f's_sub_u32 s13, s19, 4\ns_lshl_b32 s13, s13, 1')
A(f's_lshl_b32 s14, s13, 4\ns_lshl_b32 s15, {sSub}, 1\ns_add_u32 s14, s14, s15')
A(f'v_lshrrev_b32 v2, 1, v0\nv_lshlrev_b32 v2, 4, v2\nv_and_b32 v3, 1, v0\nv_add3_u32 v2, v2, v3, s14\nv_lshlrev_b32 v2, 7, v2\nv_add_u32 v2, {WS_FL + F1*128}, v2')
A(f's_lshl_b32 s16, s13, 3\ns_add_u32 s16, s16, {sSub}\ns_lshl_b32 s16, s16, 13')
poll('v2', 'v3', 4)
A.label(lnh)
stamp('x0')
lds_wait(L_CNT + 4, 4, 'v2', 'v3')
stamp('x1')
A(f's_cmp_lt_u32 s19, 4\ns_cbranch_scc1 {lnh2}')
A(f's_lshl_b32 s17, {sI}, 13\ns_add_u32 s17, s17, {L_K}\ns_mul_i32 s18, {sI}, {2*VT}\ns_add_u32 s18, s18, {L_V}')
for t in range(2):
    for i in range(4):
        A(f's_add_u32 s13, s16, {t*65536 + i*1024}\ns_add_u32 m0, s17, {t*4096 + i*1024}'); dma('v14', SWS, 's13', ' sc1')
for t in range(2):
    for i in range(4):
        A(f's_add_u32 s13, s16, {t*65536 + 4096 + i*1024}\ns_add_u32 m0, s18, {t*VT + i*1040}'); dma('v14', SWS, 's13', ' sc1')
A.label(lnh2)
A(f'ds_write_b128 v15, {v(KF,4)}\nds_write_b128 v15, {v(KF+4,4)} offset:1024\nds_write_b128 v146, {v(VF,4)}\nds_write_b128 v146, {v(VF+4,4)} offset:1040')
A(f's_mov_b32 exec_hi, 0xff\nds_write_b128 v8, v[10:13] offset:{L_V + 1024}\ns_mov_b32 exec_hi, -1')
A('s_waitcnt vmcnt(0) lgkmcnt(0)\ns_branch Latt')

A.label('Lloader')
VX0, VX1, VWQ = 'v240', 'v241', 'v242'
A(f'v_lshrrev_b32 v2, 3, v0\nv_and_b32 v3, 7, v0\nv_lshrrev_b32 v4, 4, v0\nv_xor_b32 v4, v4, v3')
A(f's_lshl_b32 s13, {sI}, 14\nv_lshlrev_b32 v5, 10, v2\nv_add_u32 v5, s13, v5\nv_lshl_add_u32 {VX0}, v4, 4, v5')
A(f'v_xor_b32 v4, 4, v4\nv_add_u32 v5, 8192, v5\nv_lshl_add_u32 {VX1}, v4, 4, v5')
A(f'v_bfe_u32 v4, v0, 4, 1\nv_lshlrev_b32 v4, 2, v4\nv_xor_b32 v4, v4, v3\nv_lshlrev_b32 v4, 4, v4')
A(f's_mul_i32 s13, {sI}, {16*3072}\nv_mul_u32_u24 v5, 3072, v2\nv_add3_u32 {VWQ}, v5, v4, s13')
sXo, sWo, sLo = 's86', 's87', 's88'
A(f's_lshl_b32 {sXo}, {sT}, 16\ns_lshl_b32 {sWo}, {sSub}, 7\ns_lshl_b32 {sLo}, {sI}, 11')
phys = lambda i: (1 + (i + 3) % 5) * SL
def issue_kv(c):
    A(f's_add_u32 s13, {sXo}, {c*128}\ns_add_u32 m0, {sLo}, {RA + c*8192}'); dma(VX0, SX, 's13')
    A(f's_add_u32 m0, {sLo}, {RA + c*8192 + 1024}'); dma(VX1, SX, 's13')
    for b in range(2):
        for e in range(2):
            A(f's_add_u32 s13, {sWo}, {c*64*3072 + (b+1)*1024 + e*24576}\ns_add_u32 m0, {sLo}, {phys(c) + b*8192 + e*1024}'); dma(VWQ, SWQ, 's13')
def issue_q(it):
    for hh in range(2):
        for e in range(2):
            c = (it - 8) * 2 + hh
            A(f's_add_u32 s13, {sWo}, {c*64*3072 + e*24576}\ns_add_u32 m0, {sLo}, {L_WQ + c*8192 + e*1024}'); dma(VWQ, SWQ, 's13')
issue_kv(0); issue_kv(1)
other_srds()
issue_kv(2)
A(f'v_lshrrev_b32 v2, 2, v0\nv_lshlrev_b32 v2, 7, v2\nv_and_b32 v3, 3, v0\nv_lshl_add_u32 v2, v3, 5, v2\ns_add_u32 s13, {sLo}, {RA}\nv_add_u32 v148, s13, v2')
for r in range(150, 154): A(f'v_mov_b32 v{r}, 0')
def xstats(c):
    A(f'ds_read_b128 v[8:11], v148 offset:{c*8192}\nds_read_b128 v[12:15], v148 offset:{c*8192+16}\ns_waitcnt lgkmcnt(1)')
    for j in range(8):
        if j == 4: A('s_waitcnt lgkmcnt(0)')
        A(f'v_lshlrev_b32 v2, 16, v{8+j}\nv_and_b32 v3, 0xffff0000, v{8+j}')
        A(f'v_add_f32 v150, v150, v2\nv_add_f32 v151, v151, v3\nv_fmac_f32 v152, v2, v2\nv_fmac_f32 v153, v3, v3')
later = {0: 12, 1: 12, 2: 12, 3: 12, 4: 12, 5: 12, 6: 10, 7: 8}
for c in range(8):
    A(f's_waitcnt vmcnt({later[c]})\ns_barrier')
    if c == 0: stamp('s1_c0')
    if c + 3 <= 7: issue_kv(c + 3)
    elif c == 5: issue_q(8)
    elif c == 6: issue_q(9)
    else: issue_q(10); issue_q(11)
    xstats(c)
A('v_add_f32 v150, v150, v151\nv_add_f32 v152, v152, v153')
for qp in ('[1,0,3,2]', '[2,3,0,1]'):
    A(f'v_add_f32_dpp v150, v150, v150 quad_perm:{qp} row_mask:0xf bank_mask:0xf\nv_add_f32_dpp v152, v152, v152 quad_perm:{qp} row_mask:0xf bank_mask:0xf')
A(f'v_mul_f32 v150, {f2u(1/512)}, v150\nv_mul_f32 v152, {f2u(1/512)}, v152\nv_fma_f32 v152, -v150, v150, v152\nv_max_f32 v152, 0, v152')
A(f'v_add_f32 v152, {f2u(1e-5)}, v152\nv_rsq_f32 v152, v152\nv_and_b32 v3, 3, v0\nv_cmp_eq_u32 vcc, 0, v3\nv_mul_f32 v150, v150, v152')
A(f'v_cndmask_b32 v150, v150, v152, vcc\nv_lshrrev_b32 v2, 2, v0\nv_lshlrev_b32 v2, 2, v2\nv_lshl_add_u32 v2, v3, 8, v2\ns_lshl_b32 s13, {sI}, 6\nv_add_u32 v2, s13, v2')
A(f's_mov_b32 exec_lo, 0x33333333\ns_mov_b32 exec_hi, 0x33333333\nds_write_b32 v2, v150 offset:{L_STAT}\ns_mov_b64 exec, -1')
stamp('ld_a')
A('s_waitcnt lgkmcnt(0)\ns_barrier')
aQ = 16
QW = lambda p: 80 + 4 * p
x_frag_addrs(AX)
tr_lane_addr(AW, 128, 8, 'v2', True, sB)
A(f'v_add_u32 {AW}, {L_WQ}, {AW}\nv_mov_b32 {ONES}, 0x3f803f80\nv_mov_b32 v128, 0\nv_mov_b32 v129, 0')
for r in range(16, 32): A(f'v_mov_b32 v{r}, 0')
A(f'v_mov_b32 v2, {L_CNT+8}\nds_read_b32 v3, v2\nv_and_b32 v9, 31, v0\nv_lshlrev_b32 v9, 2, v9\ns_lshl_b32 s13, {sA}, 7\nv_add_u32 v9, s13, v9')
A(f'ds_read_b32 v{RS}, v9 offset:{L_STAT}\nds_read_b32 v{MRS}, v9 offset:{L_STAT+256}\ns_waitcnt lgkmcnt(0)\nv_readfirstlane_b32 {sMode}, v3')
A(f'v_mul_f32 v{RS}, {f2u(CSC)}, v{RS}\nv_mul_f32 v{MRS}, {f2u(CSC)}, v{MRS}')
A('s_waitcnt vmcnt(0)')
lds_inc(L_CNT, 'v2', 'v3')
lds_wait(L_CNT, 4, 'v2', 'v3')
stamp('ld_b')
if OPT['pfa']:
    lx, ly = L(), L()
    A(f'v_lshlrev_b32 v245, 7, v0\ns_cmp_ge_u32 {sI}, 2\ns_cbranch_scc1 {lx}\ns_lshl_b32 s26, {sJ}, 14\ns_lshl_b32 s13, {sI}, 13\ns_add_u32 s26, s26, s13')
    touch(SWO, 's26', 1); A(f's_branch {ly}'); A.label(lx)
    if OPT['pfa'] == 2:
        A(f's_mul_i32 s26, {sJ}, 7680\ns_mul_i32 s13, {sA}, {688*1024}\ns_add_u32 s26, s26, s13')
        touch(SW2, 's26', 1)
    A.label(ly)
def q_reads(g, bank):
    out = []
    for p in range(4):
        out.append(f'ds_read_b128 {v(XF(p)+bank*32,4)}, {AX(p)} offset:{g*8192}')
        for i in range(2): out.append(trs(QW(p) + bank * 32 + 2 * i, AW, g * 8192 + p * 2048 + i * 512))
    return out
for x in q_reads(0, 0): A(x)
for g in range(8):
    bk = g & 1
    A('s_waitcnt lgkmcnt(0)')
    nx = q_reads(g + 1, 1 - bk) if g < 7 else []
    for p in range(4):
        mfma(aQ, QW(p) + bk * 32, XF(p) + bk * 32)
        for x in nx[3*p:3*p+3]: A(x)
    if g == 7: lds_inc(L_CNT + 4, 'v2', 'v3')
    for p in range(4):
        for j in range(4): A(f'v_dot2c_f32_bf16 v{128+(j&1)}, v{QW(p)+bk*32+j}, {ONES}')
A('v_add_f32 v128, v128, v129\nv_mov_b32 v129, v128')
half_sum2('v128', 'v129')
A(f's_lshl_b32 s13, {sW}, 8\ns_add_u32 s13, s13, {L_PR}\nv_lshlrev_b32 v6, 2, v0\nv_add_u32 v6, s13, v6\nds_write_b32 v6, v128')
A(f'v_lshrrev_b32 v7, 5, v0\nv_lshlrev_b32 v7, 4, v7\nv_add_u32 v7, s13, v7\ns_waitcnt lgkmcnt(0)')
for q in range(4): A(f'ds_read_b128 {v(64+4*q,4)}, v7 offset:{32*q}')
A(f's_lshl_b32 s13, {sA}, 12\ns_lshl_b32 s14, {sB}, 11\ns_add_u32 s13, s13, s14\ns_add_u32 s13, s13, {L_Q}\nv_lshlrev_b32 v14, 4, v0\nv_add_u32 v14, s13, v14')
A('s_waitcnt lgkmcnt(0)')
pk_norm(64, aQ, RS, MRS, 156)
A(f'ds_write_b128 v14, v[156:159]\nds_write_b128 v14, v[160:163] offset:1024')
att_masks()
stamp('x2')
A('s_waitcnt lgkmcnt(0)')

A.label('Latt')
KFa = lambda t: 16 + 4 * t
QFa, CL, CF = 52, 56, 72
S1 = lambda t: 88 + 16 * t
sTau = 's20'
VWO = 'v243'
wo_voff(VWO)
A(f's_lshr_b32 s13, {sW}, 2\ns_lshl_b32 s21, {sT}, 1\ns_add_u32 s21, s21, s13')
A(f's_sub_u32 {sTau}, 8, s21\ns_max_i32 {sTau}, {sTau}, 0')
A(f's_lshl_b32 s15, s13, 12\ns_lshl_b32 s16, {sI}, 10\ns_add_u32 s16, s16, s15\ns_add_u32 s16, s16, {L_K}')
A(f'v_lshlrev_b32 v232, 4, v0\nv_add_u32 v233, s16, v232')
A(f's_lshl_b32 s16, {sW}, 10\ns_add_u32 s16, s16, {L_Q}\nv_add_u32 v235, s16, v232')
A(f's_mul_i32 s15, s13, {VT}\ns_mul_i32 s16, {sB}, 2080\ns_add_u32 s16, s16, s15\ns_add_u32 s16, s16, {L_V}')
A(f's_lshl_b32 s17, {sA}, 8\nv_or_b32 v236, s17, v232\nv_mov_b32 v237, 1024\nv_and_b32 v238, 16, v0\nv_cmp_eq_u32 vcc, 0, v238\nv_cndmask_b32 v236, v237, v236, vcc')
A(f'v_add_u32 v236, s16, v236')
A(f's_lshl_b32 s22, s21, 5\ns_lshl_b32 s13, {sSub}, 2\ns_add_u32 s22, s22, s13\ns_add_u32 s22, s22, {sI}')
A(f's_lshl_b32 s27, {sI}, 17\ns_lshl_b32 s13, {sSub}, 7\ns_add_u32 s27, s27, s13\ns_lshl_b32 s28, {sI}, 14\ns_add_u32 s28, s28, {RA}')
for ph in range(3):
    A(f'v_add_u32 v2, {64*ph}, v0\nv_mul_u32_u24 v3, 171, v2\nv_lshrrev_b32 v3, 11, v3\nv_mul_u32_u24 v4, 12, v3\nv_sub_u32 v4, v2, v4')
    A(f'v_mul_u32_u24 v3, 2752, v3\nv_lshl_add_u32 v{8+ph}, v4, 4, v3')
A(f'v_lshlrev_b32 v245, 7, v0')
A('s_barrier')
stamp('kv_ready')
A(f'ds_read_b128 {v(QFa,4)}, v235')
for t in range(8, -1, -1): A(f'ds_read_b128 {v(KFa(t),4)}, v233 offset:{t*4096}')
def wo_dma(e): A(f's_add_u32 s13, s27, {e*8192}\ns_add_u32 m0, s28, {e*1024}'); dma(VWO, SWO, 's13')
def smf(t, dst, cmid):
    c = CL if t == 8 else (CF if t == 0 else cmid)
    mfma(dst, KFa(t), QFa, c)
M0_, M1_ = 'v238', 'v237'
A(f'v_mov_b32 {M0_}, 0xff800000\nv_mov_b32 {M1_}, 0xff800000')
def maxgrp(t):
    sk = L()
    if t < 8: A(f's_cmp_gt_u32 {sTau}, {t}\ns_cbranch_scc1 {sk}')
    for j in range(8):
        m = M0_ if j % 2 == 0 else M1_
        A(f'v_max3_f32 {m}, v{S1(t)+2*j}, v{S1(t)+2*j+1}, {m}')
    if t < 8: A.label(sk)
order = list(range(8, -1, -1))
for i, t in enumerate(order):
    A(f's_waitcnt lgkmcnt({8-i})')
    smf(t, S1(t), '0')
    if i < 8:
        lx = L(); A(f's_cmp_ge_u32 {sW}, 4\ns_cbranch_scc1 {lx}'); wo_dma(2 * i); wo_dma(2 * i + 1); A.label(lx)
    if i == 8: lds_inc(L_CNT + 12, 'v2', 'v3')
    if i >= 2: maxgrp(order[i-2])
VB = lambda t: 184 + 8 * (t % 3)
def vread(t): A(f'ds_read_b128 {v(VB(t),4)}, v236 offset:{t*VT}\nds_read_b128 {v(VB(t)+4,4)}, v236 offset:{t*VT+1040}')
maxgrp(1); maxgrp(0)
A(f'v_max_f32 {M0_}, {M0_}, {M1_}\nv_mov_b32 {M1_}, {M0_}\nv_permlane32_swap_b32 {M0_}, {M1_}\nv_max_f32 {M0_}, {M0_}, {M1_}')
stamp('att_p1')
lnd, lnw = L(), L()
A(f's_cmp_ge_u32 {sW}, 4\ns_cbranch_scc1 {lnd}')
A(f's_cmp_eq_u32 {sM}, 15\ns_cbranch_scc1 {lnw}')
lds_wait(L_CNT + 12, 8, 'v2', 'v3')
A(f's_mul_i32 s16, {sI}, {16*2752}\ns_mul_i32 s13, {sM}, 192\ns_add_u32 s16, s16, s13\ns_mul_i32 s18, {sI}, 3072\ns_add_u32 s18, s18, {RB + 6144}')
for gi in range(4):
    if gi == 3: A(f's_cmp_eq_u32 {sI}, 3\ns_cbranch_scc1 {lnw}')
    for ph in range(3):
        A(f's_add_u32 s13, s16, {gi*64*2752}\ns_add_u32 m0, s18, {gi*12288 + ph*1024}'); dma(f'v{8+ph}', SW1, 's13')
A.label(lnw)
A(f's_cmp_eq_u32 {sI}, 3\ns_cbranch_scc1 {lnd}\ns_mul_i32 s26, {sJ}, 23392\ns_lshl_b32 s13, {sI}, 13\ns_add_u32 s26, s26, s13\ns_add_u32 s26, s26, 660480')
touch(SW1, 's26', 1)
A.label(lnd)
NM, OA = 136, 152
SB_ = lambda t: 88 + 16 * (t % 3)
PB = lambda t: 168 + 8 * (t % 2)
for r in range(16): A(f'v_sub_f32 v{CL+r}, v{CL+r}, {M0_}')
smf(8, SB_(8), NM)
for r in range(16): A(f'v_sub_f32 v{NM+r}, 0, {M0_}')
vread(8); vread(7)
smf(7, SB_(7), NM)
for r in range(16): A(f'v_sub_f32 v{CF+r}, v{CF+r}, {M0_}')
def pv(t, a, first): mfma(OA, VB(t) + 4 * a, PB(t) + 4 * a, '0' if first else None)
tails = {}
for t in order:
    if t < 8:
        tails[t] = L('Ltail')
        A(f's_cmp_gt_u32 {sTau}, {t}\ns_cbranch_scc1 {tails[t]}')
    ex = [f'v_exp_f32 v{SB_(t)+r}, v{SB_(t)+r}' for r in range(16)]
    cv = [f'v_cvt_pk_bf16_f32 v{PB(t)+j}, v{SB_(t)+2*j}, v{SB_(t)+2*j+1}' for j in range(8)]
    seq = ex[0:4] + ['PV0'] + ex[4:6] + cv[0:2] + ex[6:8] + ['PV1'] + ex[8:10] + cv[2:4] + ex[10:12] + ['SM'] + ex[12:16] + cv[4:8]
    for x in seq:
        if x == 'PV0':
            if t < 8: A('s_waitcnt lgkmcnt(2)'); pv(t + 1, 0, t + 1 == 8)
        elif x == 'PV1':
            if t < 8: pv(t + 1, 1, False)
            if t < 8 and t - 1 >= 0: vread(t - 1)
        elif x == 'SM':
            if t - 2 >= 0: smf(t - 2, SB_(t - 2), NM)
        else: A(x)
ldone = L('Lattdone')
A('s_waitcnt lgkmcnt(0)')
pv(0, 0, False); pv(0, 1, False)
for t in range(7, -1, -1):
    A(f's_branch {ldone}')
    A.label(tails[t])
    A('s_waitcnt lgkmcnt(0)')
    pv(t + 1, 0, t + 1 == 8); pv(t + 1, 1, False)
A.label(ldone)
A(f's_lshl_b32 s13, s22, 10\ns_add_u32 s13, s13, {WS_O}\ns_add_u32 s22, s22, {F2}')
A(f'v_rcp_f32 v238, v{OA+8}')
for j in range(4): A(f'v_pk_mul_f32 {v(OA+2*j,2)}, {v(OA+2*j,2)}, v[238:239] op_sel_hi:[1,0]')
for j in range(4): A(f'v_cvt_pk_bf16_f32 v{168+j}, v{OA+2*j}, v{OA+2*j+1}')
dual([f'buffer_store_dwordx4 v[168:171], v232, {SWS}, s13 offen'])
A('s_waitcnt vmcnt(0)')
set_flag('s22', 'v6', 'v7')
stamp('att_end')
A(f's_cmp_ge_u32 {sW}, 4\ns_cbranch_scc1 Lloader2')
lds_inc(L_CNT + 16, 'v2', 'v3')
lds_wait(L_CNT + 16, 4, 'v2', 'v3')

AK, AS = 16, 32
OF = lambda i: 48 + 4 * i
WOF = lambda i, c: 112 + 8 * i + 4 * c
tr_lane_addr('v2', 128, 4, 'v4', True, sB)
A(f's_lshl_b32 s13, {sB}, 15\ns_add_u32 s13, s13, {RA}\nv_add_u32 v2, s13, v2\nv_xor_b32 v3, 64, v2')
for i in range(16):
    for c in range(2):
        for ii in range(2): trd(WOF(i, c) + 2 * ii, 'v2' if c == 0 else 'v3', i * 2048 + ii * 1024)
A(f's_lshl_b32 s13, {sTile}, 5\ns_lshl_b32 s14, {sB}, 4\ns_add_u32 s13, s13, s14\nv_add_u32 v5, s13, v0\nv_lshlrev_b32 v5, 7, v5\nv_add_u32 v5, {WS_FL + F2*128}, v5')
A(f's_lshl_b32 s16, s13, 10\ns_add_u32 s16, s16, {WS_O}\nv_lshlrev_b32 v244, 4, v0')
for q in range(4):
    for j in range(2):
        A(f'v_lshlrev_b32 v{AK+4*q+2*j}, 16, v{HRES+2*q+j}\nv_and_b32 v{AK+4*q+2*j+1}, 0xffff0000, v{HRES+2*q+j}')
A(f's_lshl_b32 s13, {sW}, 12\ns_add_u32 s13, s13, {A_SCR3}\nv_add_u32 v12, s13, v244\ns_xor_b32 s13, {sW}, 2\ns_lshl_b32 s13, s13, 12\ns_add_u32 s13, s13, {A_SCR3}\nv_add_u32 v13, s13, v244')
A(f's_lshl_b32 s13, {sSub}, 1\ns_add_u32 s13, s13, {sB}\ns_lshl_b32 s14, {sTile}, 4\ns_add_u32 s14, s14, s13')
A(f's_lshl_b32 s19, s14, 11\ns_add_u32 s19, s19, {WS_H}\ns_lshl_b32 s17, s14, 8\ns_add_u32 s17, s17, {WS_ST}\ns_add_u32 s18, s14, {F3}\nv_lshlrev_b32 v14, 2, v0')
A(f'v_mov_b32 v15, 0x3f803f80\nv_mov_b32 v8, 0\nv_mov_b32 v9, 0\nv_mov_b32 v10, 0\nv_mov_b32 v11, 0')
A('s_waitcnt lgkmcnt(0)\ns_barrier')
poll('v5', 'v6', 16)
stamp('s3_polled')
def oload(i):
    if i % 4 == 0 and i: A('s_add_u32 s16, s16, 4096')
    A(f'buffer_load_dwordx4 {v(OF(i),4)}, v244, {SWS}, s16 offen offset:{(i%4)*1024} sc1')
issued = OPT['la3']
for i in range(issued): oload(i)
for i in range(16):
    A(f's_waitcnt vmcnt({issued-1-i})')
    mfma(AS, WOF(i, 1), OF(i), '0' if i == 0 else None)
    if issued < 16: oload(issued); issued += 1
    mfma(AK, WOF(i, 0), OF(i))
stamp('s3_mfma')
for q in range(4): A(f'ds_write_b128 v12, {v(AS+4*q,4)} offset:{q*1024}')
A('s_waitcnt lgkmcnt(0)\ns_barrier')
for q in range(4): A(f'ds_read_b128 {v(AS+4*q,4)}, v13 offset:{q*1024}')
for q in range(4):
    A(f's_waitcnt lgkmcnt({3-q})')
    for j in range(2): A(f'v_pk_add_f32 {v(AK+4*q+2*j,2)}, {v(AK+4*q+2*j,2)}, {v(AS+4*q+2*j,2)}')
    for j in range(2): A(f'v_cvt_pk_bf16_f32 v{HRES+2*q+j}, v{AK+4*q+2*j}, v{AK+4*q+2*j+1}')
dual([f'buffer_store_dwordx4 {v(HRES,4)}, v244, {SWS}, s19 offen', f'buffer_store_dwordx4 {v(HRES+4,4)}, v244, {SWS}, s19 offen offset:1024'])
for j in range(8): A(f'v_dot2c_f32_bf16 v{8+(j&1)}, v{HRES+j}, v15\nv_dot2c_f32_bf16 v{10+(j&1)}, v{HRES+j}, v{HRES+j}')
A('v_add_f32 v8, v8, v9\nv_add_f32 v10, v10, v11')
half_sum2('v8', 'v10')
dual([f'buffer_store_dword v8, v14, {SWS}, s17 offen'])
A('s_waitcnt vmcnt(0)')
set_flag('s18', 'v6', 'v7')
stamp('s3_flag')
A('s_barrier')
A(f's_cmp_eq_u32 {sM}, 15\ns_cbranch_scc1 Ls4skip')
AC = lambda b: 16 + 16 * b
HF = lambda k: 64 + 4 * k
BF = lambda s, b: 192 + 8 * (s % 3) + 4 * b
B1T = HF(20)
STT = 216
sT4 = 's25'
A(f's_lshl_b32 {sT4}, {sG}, 2\ns_add_u32 {sT4}, {sT4}, {sW}')
A(f's_lshl_b32 s13, {sT4}, 4\nv_add_u32 v5, s13, v0\nv_lshlrev_b32 v5, 7, v5\nv_add_u32 v5, {WS_FL + F3*128}, v5')
A(f'v_lshrrev_b32 v4, 5, v0\nv_lshlrev_b32 v4, 4, v4\nv_add_u32 v4, {RA}, v4')
for b in range(3):
    for q in range(4):
        A(f'ds_read_b128 {v(AC(b)+4*q,4)}, v4 offset:{A_CSF-RA + b*128 + 32*q}')
        A(f'ds_read_b128 {v(B1T+16*b+4*q,4)}, v4 offset:{A_B1F-RA + b*128 + 32*q}')
tr_lane_addr('v2', 192, 4, 'v4', False)
A(f'v_add_u32 v3, 49152, v2')
def w1rd(ks, b, dst):
    kp = (ks + 2) % 32
    a = 'v2' if kp < 16 else 'v3'
    for ii in range(2): trd(dst + 2 * ii, a, (kp % 16) * 3072 + ii * 1536 + b * 64)
for s in range(2):
    for b in range(2): w1rd(s, b, BF(s, b))
A(f's_lshl_b32 s16, {sT4}, 15\ns_add_u32 s16, s16, {WS_H}\ns_lshl_b32 s17, {sT4}, 12\ns_add_u32 s17, s17, {WS_ST}\nv_lshlrev_b32 v7, 2, v0')
poll('v5', 'v6', 16)
stamp('s4_polled')
for i in range(16): A(f'buffer_load_dword v{STT+i}, v7, {SWS}, s17 offen offset:{i*256} sc1')
def hload(k):
    if k % 4 == 0 and k: A('s_add_u32 s16, s16, 4096')
    A(f'buffer_load_dwordx4 {v(HF(k),4)}, v244, {SWS}, s16 offen offset:{(k%4)*1024} sc1')
issued = OPT['la4']
for k in range(issued): hload(k)
A(f's_mul_i32 s17, {sT4}, 86\ns_mul_i32 s13, {sM}, 6\ns_add_u32 s17, s17, s13\ns_lshl_b32 s17, s17, 10\ns_add_u32 s17, s17, {WS_H1}\ns_add_u32 s19, s17, 4096')
A(f's_lshl_b32 s18, {sT4}, 4\ns_add_u32 s18, s18, {sM}\ns_add_u32 s18, s18, {F4}')
A(f's_waitcnt vmcnt({issued}) lgkmcnt(0)')
for st in (8, 4, 2, 1):
    for i in range(st): A(f'v_add_f32 v{STT+i}, v{STT+i}, v{STT+i+st}')
MEAN, STD, RS4 = 232, 234, 236
A(f'v_mov_b32 v{STT+1}, v{STT}\nv_permlane32_swap_b32 v{STT}, v{STT+1}')
A(f'v_mul_f32 v{MEAN}, {f2u(1/512)}, v{STT}\nv_mul_f32 v{STT+1}, {f2u(1/512)}, v{STT+1}')
A(f'v_fma_f32 v{STT+1}, -v{MEAN}, v{MEAN}, v{STT+1}\nv_max_f32 v{STT+1}, 0, v{STT+1}\nv_add_f32 v{STT+1}, {f2u(1e-5)}, v{STT+1}')
A(f'v_rsq_f32 v{RS4}, v{STT+1}\nv_sqrt_f32 v{STD}, v{STT+1}')
for b in range(3):
    for j in range(8): A(f'v_pk_mul_f32 {v(AC(b)+2*j,2)}, {v(AC(b)+2*j,2)}, {v(MEAN,2)} op_sel_hi:[1,0]')
    for j in range(8): A(f'v_pk_fma_f32 {v(AC(b)+2*j,2)}, {v(B1T+16*b+2*j,2)}, {v(STD,2)}, {v(AC(b)+2*j,2)} op_sel_hi:[1,0,1] neg_lo:[0,0,1] neg_hi:[0,0,1]')
for ks in range(32):
    A(f's_waitcnt vmcnt({issued-1-ks}) lgkmcnt({4 if ks > 0 else 0})')
    mfma(AC(0), BF(ks, 0), HF(ks))
    if ks + 2 < 32: w1rd(ks + 2, 0, BF(ks + 2, 0))
    else: w1rd(2 * (ks - 30), 2, 216 + 8 * (ks - 30))
    mfma(AC(1), BF(ks, 1), HF(ks))
    if ks + 2 < 32: w1rd(ks + 2, 1, BF(ks + 2, 1))
    else: w1rd(2 * (ks - 30) + 1, 2, 220 + 8 * (ks - 30))
    if issued < 32:
        hload(issued); issued += 1
        if issued == 32: A('s_barrier')
stamp('s4_phA')
BF2 = lambda s: 216 + 4 * (s % 4)
def epi_ops(b, dst):
    ops = []
    for j in range(8):
        r0, r1 = AC(b) + 2 * j, AC(b) + 2 * j + 1
        ops += [f'v_max_f32 v{r0}, 0, v{r0}', f'v_max_f32 v{r1}, 0, v{r1}', f'v_mul_f32 v{r0}, v{RS4}, v{r0}', f'v_mul_f32 v{r1}, v{RS4}, v{r1}',
                f'v_mul_f32 v{r0}, v{r0}, v{r0}', f'v_mul_f32 v{r1}, v{r1}, v{r1}', f'v_cvt_pk_bf16_f32 v{dst+j}, v{r0}, v{r1}']
    ops.append(('st', b, dst))
    return ops
def h1store(b, src):
    sk = None
    if b > 0:
        sk = L(); A(f's_cmp_eq_u32 {sM}, 14\ns_cbranch_scc1 {sk}')
    sb = 's17' if b < 2 else 's19'; off = (2 * b % 4) * 1024
    dual([f'buffer_store_dwordx4 {v(src,4)}, v244, {SWS}, {sb} offen offset:{off}', f'buffer_store_dwordx4 {v(src+4,4)}, v244, {SWS}, {sb} offen offset:{off+1024}'])
    if sk: A.label(sk)
ep = epi_ops(0, 192) + epi_ops(1, 200)
pos = 0
for ks in range(32):
    A(f's_waitcnt lgkmcnt({min(6, 2*(31-ks))})')
    mfma(AC(2), BF2(ks), HF(ks))
    if ks + 4 < 32: w1rd(ks + 4, 2, BF2(ks + 4))
    if ks >= 1:
        for x in ep[pos:pos+4]:
            if isinstance(x, tuple): h1store(x[1], x[2])
            else: A(x)
        pos += 4
assert pos >= len(ep)
stamp('s4_phB')
A('s_barrier')
for j in range(16): A(f'v_max_f32 v{AC(2)+j}, 0, v{AC(2)+j}')
for j in range(8): A(f'v_pk_mul_f32 {v(AC(2)+2*j,2)}, {v(AC(2)+2*j,2)}, {v(RS4,2)} op_sel_hi:[1,0]')
for j in range(8): A(f'v_pk_mul_f32 {v(AC(2)+2*j,2)}, {v(AC(2)+2*j,2)}, {v(AC(2)+2*j,2)}')
for j in range(8): A(f'v_cvt_pk_bf16_f32 v{208+j}, v{AC(2)+2*j}, v{AC(2)+2*j+1}')
h1store(2, 208)
A('s_waitcnt vmcnt(0)')
set_flag('s18', 'v6', 'v7')
stamp('s4_flag')
A('s_branch Ls5')
A.label('Ls4skip')
A('s_barrier')
A('s_barrier')
A.label('Ls5')
NW = 40
GF = lambda s: 48 + 4 * (s % NW)
B5 = lambda s, c: 208 + 8 * (s % 3) + 4 * c
A(f'v_lshrrev_b32 v4, 5, v0\nv_lshlrev_b32 v4, 3, v4\ns_lshl_b32 s13, {sSub}, 7\ns_lshl_b32 s14, {sB}, 6\ns_add_u32 s13, s13, s14')
for q in range(4): A(f'buffer_load_dwordx2 {v(8+2*q,2)}, v4, {SB2}, s13 offen offset:{16*q}')
A(f's_lshl_b32 s13, {sTile}, 4\ns_mul_i32 s14, {sB}, 7\ns_add_u32 s13, s13, s14\nv_add_u32 v5, s13, v0\nv_lshlrev_b32 v5, 7, v5\nv_add_u32 v5, {WS_FL + F4*128}, v5')
A(f's_mul_i32 s16, {sTile}, 86\ns_mul_i32 s13, {sB}, 43\ns_add_u32 s16, s16, s13\ns_lshl_b32 s16, s16, 10\ns_add_u32 s16, s16, {WS_H1}')
tr_lane_addr('v2', 128, 4, 'v4', True, sB)
A(f's_mul_i32 s13, {sB}, 49152\ns_add_u32 s13, s13, {RB}\nv_add_u32 v234, s13, v2\nv_xor_b32 v235, 64, v234')
A(f's_mul_i32 s13, {sB}, 30720\ns_add_u32 s13, s13, {A_W2}\nv_add_u32 v232, s13, v2\nv_xor_b32 v233, 64, v232')
A(f's_lshl_b32 s14, {sA}, 12\ns_add_u32 s13, s13, s14\ns_add_u32 s13, s13, 8192\nv_add_u32 v236, s13, v244')
A(f's_xor_b32 s15, {sB}, 1\ns_mul_i32 s13, s15, 30720\ns_add_u32 s13, s13, s14\ns_add_u32 s13, s13, {A_W2 + 8192}\nv_add_u32 v237, s13, v244')
def w2rd(s):
    for c in range(2):
        if s < 15: a, off = ('v232', 'v233')[c], s * 2048
        elif s < 39: a, off = ('v234', 'v235')[c], (s - 15) * 2048
        else: a, off = ('v232', 'v233')[c], (s - 39) * 2048
        for ii in range(2): trd(B5(s, c) + 2 * ii, a, off + ii * 1024)
w2rd(0); w2rd(1)
poll('v5', 'v6', 8)
stamp('s5_polled')
def gload(s):
    if s % 4 == 0 and s: A('s_add_u32 s16, s16, 4096')
    A(f'buffer_load_dwordx4 {v(GF(s),4)}, v244, {SWS}, s16 offen offset:{(s%4)*1024} sc1')
for s in range(OPT['la5']): gload(s)
for j in range(8):
    A(f'v_lshlrev_b32 v{AK+2*j}, 16, v{8+j}\nv_and_b32 v{AK+2*j+1}, 0xffff0000, v{8+j}')
    A(f'v_lshlrev_b32 v6, 16, v{HRES+j}\nv_and_b32 v7, 0xffff0000, v{HRES+j}')
    A(f'v_add_f32 v{AK+2*j}, v{AK+2*j}, v6\nv_add_f32 v{AK+2*j+1}, v{AK+2*j+1}, v7')
A(f'v_and_b32 v4, 31, v0\nv_lshlrev_b32 v4, 10, v4\nv_lshrrev_b32 v5, 5, v0\nv_lshl_add_u32 v4, v5, 4, v4')
issued = OPT['la5']
def w2rd1(s, c):
    if s < 15: a, off = ('v232', 'v233')[c], s * 2048
    elif s < 39: a, off = ('v234', 'v235')[c], (s - 15) * 2048
    else: a, off = ('v232', 'v233')[c], (s - 39) * 2048
    for ii in range(2): trd(B5(s, c) + 2 * ii, a, off + ii * 1024)
for s in range(43):
    A(f's_waitcnt vmcnt({issued-1-s}) lgkmcnt({4 if s < 42 else 0})')
    if s == 2: A('s_waitcnt lgkmcnt(0)\ns_barrier')
    if s == 36: A('s_barrier')
    mfma(AS, B5(s, 1), GF(s), '0' if s == 0 else None)
    if s + 2 < 43: w2rd1(s + 2, 0)
    mfma(AK, B5(s, 0), GF(s))
    if s + 2 < 43: w2rd1(s + 2, 1)
    if issued < 43: gload(issued); issued += 1
stamp('s5_mfma')
for q in range(4): A(f'ds_write_b128 v236, {v(AS+4*q,4)} offset:{q*1024}')
A('s_waitcnt lgkmcnt(0)\ns_barrier')
for q in range(4): A(f'ds_read_b128 {v(AS+4*q,4)}, v237 offset:{q*1024}')
for q in range(4):
    A(f's_waitcnt lgkmcnt({3-q})')
    for j in range(2): A(f'v_pk_add_f32 {v(AK+4*q+2*j,2)}, {v(AK+4*q+2*j,2)}, {v(AS+4*q+2*j,2)}')
    for j in range(2): A(f'v_cvt_pk_bf16_f32 v{8+2*q+j}, v{AK+4*q+2*j}, v{AK+4*q+2*j+1}')
    if q % 2:
        b = 8 + 2 * q - 2
        A(f'v_permlane32_swap_b32 v{b}, v{b+2}\nv_permlane32_swap_b32 v{b+1}, v{b+3}')
        A(f'buffer_store_dwordx4 {v(b,4)}, v4, {SOUT}, s24 offen offset:{(q//2)*32}' + (' sc1' if OPT['outsc'] == 1 else (' nt' if OPT['outsc'] == 2 else '')))
stamp('end')
if OPT['until']:
    A.label('Lspin')
    A(f's_memtime s[88:89]\ns_waitcnt lgkmcnt(0)\ns_sub_u32 s88, s88, s84\ns_cmp_lt_u32 s88, {OPT["until"]}\ns_cbranch_scc1 Lspin')
A('s_endpgm')

A.label('Lloader2')
A('s_barrier')
lsk1 = L()
A(f's_cmp_eq_u32 {sM}, 15\ns_cbranch_scc1 {lsk1}')
A(f's_mul_i32 s16, {sI}, {16*2752}\ns_mul_i32 s13, {sM}, 192\ns_add_u32 s16, s16, s13\ns_mul_i32 s18, {sI}, 3072')
for gi in range(3):
    for ph in range(3):
        A(f's_add_u32 s13, s16, {(15+4*gi)*16*2752}\ns_add_u32 m0, s18, {RB + (17+4*gi)*3072 + ph*1024}'); dma(f'v{8+ph}', SW1, 's13')
A(f's_add_u32 s14, {sI}, 29\ns_and_b32 s14, s14, 31\ns_mul_i32 s14, s14, 3072')
for ph in range(3):
    A(f's_add_u32 s13, s16, {27*16*2752}\ns_add_u32 m0, s14, {RB + ph*1024}'); dma(f'v{8+ph}', SW1, 's13')
A(f's_cmp_lg_u32 {sI}, 0\ns_cbranch_scc1 {lsk1}')
for ph in range(3):
    A(f's_add_u32 s13, s16, {31*16*2752}\ns_mov_b32 m0, {RB + 3072 + ph*1024}'); dma(f'v{8+ph}', SW1, 's13')
A.label(lsk1)
A(f's_mul_i32 s13, {sM}, 192\nv_lshlrev_b32 v2, 1, v0\nbuffer_load_ushort v12, v2, {SB1}, s13 offen\nbuffer_load_ushort v13, v2, {SB1}, s13 offen offset:128')
A(f'v_mov_b32 v2, 0\nv_mov_b32 v3, {RA + 3072}\nds_write_b32 v3, v2')
tr_lane_addr('v2', 192, 4, 'v4', False)
A(f's_mul_i32 s13, {sI}, {128*192}\nv_add_u32 v2, s13, v2\nv_mov_b32 v3, 0x3f803f80')
for r in range(16, 22): A(f'v_mov_b32 v{r}, 0')
A('s_waitcnt vmcnt(0) lgkmcnt(0)\ns_barrier')
stamp('ld_c')
for half in range(2):
    for s in range(4):
        for b in range(3):
            for ii in range(2): trd(32 + 12 * s + 4 * b + 2 * ii, 'v2', (4 * half + s) * 3072 + ii * 1536 + b * 64)
    A('s_waitcnt lgkmcnt(0)')
    for s in range(4):
        for j in range(4):
            for b in range(3): A(f'v_dot2c_f32_bf16 v{16+2*b+(j&1)}, v{32+12*s+4*b+j}, v3')
A('v_add_f32 v16, v16, v17\nv_add_f32 v18, v18, v19\nv_add_f32 v20, v20, v21\nv_mov_b32 v21, v20')
half_sum2('v16', 'v18'); half_sum2('v20', 'v21')
A(f's_mul_i32 s13, {sI}, 384\ns_add_u32 s13, s13, {A_PART}\nv_lshlrev_b32 v4, 2, v0\nv_add_u32 v5, s13, v4')
A('ds_write_b32 v5, v16\ns_mov_b32 exec_hi, 0\nds_write_b32 v5, v20 offset:256\ns_mov_b32 exec_hi, -1')
A('s_waitcnt lgkmcnt(0)')
lds_inc(RA + 3072, 'v6', 'v7')
lds_wait(RA + 3072, 4, 'v6', 'v7')
A(f'v_add_u32 v4, {RA}, v4')
for i in range(4): A(f'ds_read_b32 v{16+i}, v4 offset:{i*384}\nds_read_b32 v{20+i}, v4 offset:{i*384+256}')
A('v_lshlrev_b32 v12, 16, v12\nv_lshlrev_b32 v13, 16, v13\ns_waitcnt lgkmcnt(0)')
A('v_add_f32 v16, v16, v17\nv_add_f32 v18, v18, v19\nv_add_f32 v20, v20, v21\nv_add_f32 v22, v22, v23\nv_add_f32 v16, v16, v18\nv_add_f32 v20, v20, v22')
A(f'ds_write_b32 v4, v16 offset:{A_CSF-RA}\nds_write_b32 v4, v12 offset:{A_B1F-RA}\ns_mov_b32 exec_hi, 0')
A(f'ds_write_b32 v4, v20 offset:{A_CSF-RA+256}\nds_write_b32 v4, v13 offset:{A_B1F-RA+256}\ns_mov_b32 exec_hi, -1')
A('s_waitcnt lgkmcnt(0)\ns_barrier')
A(f's_mul_i32 s16, {sB}, {43*16*1024}\ns_lshl_b32 s13, {sA}, 13\ns_add_u32 s16, s16, s13\ns_lshl_b32 s13, {sSub}, 7\ns_add_u32 s16, s16, s13')
def w2loop(n, ldsbase, khstride):
    A(f's_mul_i32 s18, {sB}, {khstride}\ns_lshl_b32 s13, {sA}, 10\ns_add_u32 s18, s18, s13\ns_add_u32 s18, s18, {ldsbase}\ns_mov_b32 s19, {n}')
    lp = L(); A.label(lp)
    A('s_mov_b32 m0, s18'); dma(VWO, SW2, 's16')
    A(f's_add_u32 s16, s16, 16384\ns_add_u32 s18, s18, 2048\ns_sub_u32 s19, s19, 1\ns_cmp_lg_u32 s19, 0\ns_cbranch_scc1 {lp}')
def p2touch(n, start, lbl):
    A(f's_mul_i32 s26, {sA}, {688*1024}\ns_lshl_b32 s13, {sB}, 13\ns_add_u32 s26, s26, s13\ns_and_b32 s13, {sG}, 1\ns_lshl_b32 s13, s13, 14\ns_add_u32 s26, s26, s13')
    A(f's_add_u32 s26, s26, {240*1024 + start}\ns_mov_b32 s19, {n}\nv_lshlrev_b32 v245, 7, v0')
    A.label(lbl)
    A(f'buffer_load_dword v239, v245, {SW2}, s26 offen\ns_add_u32 s26, s26, 32768\ns_sub_u32 s19, s19, 1\ns_cmp_lg_u32 s19, 0\ns_cbranch_scc1 {lbl}')
if OPT['p1pos'] == 0: w2loop(15, A_W2, 30720)
if OPT['pfc']:
    lx = L(); A(f's_cmp_lg_u32 {sM}, 15\ns_cbranch_scc1 {lx}'); p2touch(9 if OPT['pfd'] else 14, 0, L()); A.label(lx)
A('s_barrier')
if OPT['pfd']:
    lx = L(); A(f's_cmp_lg_u32 {sM}, 14\ns_cbranch_scc1 {lx}'); p2touch(5, 9*32768, L()); A.label(lx)
if OPT['p1pos'] == 1: w2loop(15, A_W2, 30720)
A('s_waitcnt vmcnt(0)\ns_barrier')
w2loop(24, RB, 49152)
A('s_waitcnt vmcnt(0)')
stamp('ld_d')
A('s_barrier')
w2loop(4, A_W2, 30720)
def wb(level):
    if OPT['wbl2'] == 1 and level == 2:
        lx = L(); A(f's_cmp_lg_u32 {sI}, 0\ns_cbranch_scc1 {lx}\nbuffer_wbl2 sc1'); A.label(lx)
    if OPT['wbl2'] == 2:
        lx = L(); A(f's_cmp_lg_u32 {sJ}, 15\ns_cbranch_scc1 {lx}\ns_cmp_lg_u32 {sI}, 0\ns_cbranch_scc1 {lx}\nbuffer_wbl2 sc1'); A.label(lx)
wb(2)
A('s_waitcnt vmcnt(0)\ns_barrier')
A('s_barrier')
A.label('Lexit')
A('s_endpgm')
A.label('Lcodeend')

n = A.fix_hazards()
hdr = open('cdna_kernels/' + NAME + '.s.ref').read().split('; Override')[0]
out = hdr + f'; @launch grid=(256,1,1) block=(512,1,1) lds=163840\n.amdgcn_target "amdgcn-amd-amdhsa--gfx950"\n.text\n.globl {NAME}_kernel\n.p2align 8\n.type {NAME}_kernel,@function\n{NAME}_kernel:\n'
out += A.text()
out += f'''.fill 64, 4, 0xbf800000
.section .rodata,"a"
.p2align 6
.amdhsa_kernel {NAME}_kernel
  .amdhsa_next_free_vgpr 256
  .amdhsa_next_free_sgpr 102
  .amdhsa_accum_offset 256
  .amdhsa_group_segment_fixed_size 0
  .amdhsa_kernarg_size 88
  .amdhsa_user_sgpr_count 2
  .amdhsa_user_sgpr_kernarg_segment_ptr 1
  .amdhsa_system_sgpr_workgroup_id_x 1
  .amdhsa_float_denorm_mode_32 3
.end_amdhsa_kernel
'''
open(sys.argv[1], 'w').write(out)
print('nops inserted:', n, 'instructions:', len(A.ins))
```

```python
import re

def _regs(tok):
    tok = tok.strip()
    neg = tok.lstrip('-')
    m = re.fullmatch(r'(?:abs\()?\|?([vsa])(\d+)\|?\)?', neg)
    if m: return {m.group(1) + m.group(2)}
    m = re.fullmatch(r'([vsa])\[(\d+):(\d+)\]', neg)
    if m: return {m.group(1) + str(i) for i in range(int(m.group(2)), int(m.group(3)) + 1)}
    if neg in ('vcc',): return {'vcc_lo', 'vcc_hi'}
    if neg in ('exec',): return {'exec_lo', 'exec_hi'}
    if neg in ('vcc_lo', 'vcc_hi', 'exec_lo', 'exec_hi', 'm0'): return {neg}
    return set()

TRANS = ('v_exp_f32', 'v_log_f32', 'v_rcp_f32', 'v_rsq_f32', 'v_sqrt_f32', 'v_sin_f32', 'v_cos_f32')

class Ins:
    def __init__(self, text):
        self.text = text
        t = text.split(';')[0].strip()
        self.label = None
        self.op = None
        self.w = set(); self.r = set(); self.srcC = set(); self.ab = set(); self.data = set()
        self.kind = 'other'
        if t.endswith(':'):
            self.label = t[:-1]; self.kind = 'label'; return
        if t.startswith('.') or not t:
            self.kind = 'dir'; return
        parts = t.split(None, 1)
        op = self.op = parts[0]
        rest = parts[1] if len(parts) > 1 else ''
        ops = [o.strip() for o in rest.split(',')] if rest else []
        mods = ''
        txt = rest
        txt = re.sub(r'\b(op_sel|op_sel_hi|neg_lo|neg_hi|quad_perm):\[[^\]]*\]', lambda m: m.group(0).replace(',', '|'), txt)
        ops = [o.strip() for o in txt.split(',')] if txt else []
        if ops:
            last = ops[-1].split(None, 1)
            ops[-1] = last[0]
            mods = last[1] if len(last) > 1 else ''
        self.ops = ops; self.mods = mods
        R = _regs
        if op.startswith('v_mfma'):
            self.kind = 'mfma'
            self.w = R(ops[0]); self.ab = R(ops[1]) | R(ops[2]); self.srcC = R(ops[3])
            self.r = self.ab | self.srcC
            self.passes = 8 if '32x32x16' in op else (4 if '16x16x32' in op else 2)
        elif op.startswith('v_cmp'):
            self.kind = 'valu'; self.w = R(ops[0]); self.r = set().union(*[R(o) for o in ops[1:]])
            if op.startswith('v_cmpx'): self.w |= {'exec_lo', 'exec_hi'}
        elif op.startswith('v_readfirstlane') or op.startswith('v_readlane'):
            self.kind = 'valu'; self.w = R(ops[0]); self.r = set().union(*[R(o) for o in ops[1:]])
        elif op.startswith('v_permlane'):
            self.kind = 'valu'; self.w = R(ops[0]) | R(ops[1]); self.r = set(self.w)
        elif op.startswith('v_add_co') or op.startswith('v_addc_co') or op.startswith('v_sub_co'):
            self.kind = 'valu'; self.w = R(ops[0]) | R(ops[1]); self.r = set().union(*[R(o) for o in ops[2:]])
        elif op.startswith('v_'):
            self.kind = 'valu'; self.w = R(ops[0]); self.r = set().union(set(), *[R(o) for o in ops[1:]])
            if op.startswith(('v_fmac', 'v_dot2c', 'v_writelane')): self.r |= self.w
            if op.startswith('v_cndmask') and len(ops) == 3: self.r |= {'vcc_lo', 'vcc_hi'}
            if op == 'v_nop': self.w = set()
        elif op.startswith('ds_read') or op.startswith('ds_bperm') or op.startswith('ds_swizzle'):
            self.kind = 'ds'; self.w = R(ops[0]); self.r = set().union(*[R(o) for o in ops[1:]])
        elif op.startswith('ds_'):
            self.kind = 'ds'; self.r = set().union(*[R(o) for o in ops])
        elif op.startswith('buffer_load') or op.startswith('global_load'):
            self.kind = 'vmem'
            if ' lds' in (' ' + mods) or 'load_lds' in op:
                self.r = set().union(*[R(o) for o in ops]) | {'m0'}; self.ldsdma = True
            else:
                self.w = R(ops[0]); self.r = set().union(*[R(o) for o in ops[1:]])
        elif op.startswith('buffer_store') or op.startswith('buffer_atomic'):
            self.kind = 'vmem'; self.r = set().union(*[R(o) for o in ops]); self.data = R(ops[0])
        elif op.startswith('global_store') or op.startswith('global_atomic'):
            self.kind = 'vmem'; self.r = set().union(*[R(o) for o in ops]); self.data = R(ops[1])
        elif op in ('buffer_wbl2', 'buffer_inv'):
            self.kind = 'vmem'
        elif op.startswith('s_'):
            self.kind = 'salu'
            if op.startswith(('s_cmp', 's_cbranch', 's_branch', 's_waitcnt', 's_barrier', 's_nop', 's_endpgm', 's_sleep', 's_setprio')):
                self.r = set().union(set(), *[R(o) for o in ops])
                if 'vcc' in op: self.r |= {'vcc_lo', 'vcc_hi'}
                if 'exec' in op: self.r |= {'exec_lo', 'exec_hi'}
            else:
                self.w = R(ops[0]); self.r = set().union(set(), *[R(o) for o in ops[1:]])
                if 'saveexec' in op: self.w |= {'exec_lo', 'exec_hi'}
        else:
            raise ValueError('unknown instruction ' + text)
    def states(self):
        if self.kind in ('label', 'dir'): return 0
        if self.op == 's_nop': return int(self.ops[0], 0) + 1
        return 1
    def is_trans(self): return self.op is not None and self.op.split('_e')[0] in TRANS
    def is_dot(self): return self.op is not None and self.op.startswith('v_dot')

def isv(rs): return {x for x in rs if x[0] in 'va' and x[1:].isdigit()}
def iss(rs): return {x for x in rs if (x[0] == 's' and x[1:].isdigit()) or x.startswith('vcc')}

def need(p, c):
    n = 0
    if p.kind == 'valu':
        pw_v = isv(p.w); pw_s = iss(p.w)
        if c.kind == 'mfma' and pw_v & c.r: n = max(n, 2)
        if c.kind == 'mfma' and ({'exec_lo', 'exec_hi'} & p.w): n = max(n, 4)
        if c.kind == 'vmem' and pw_s & c.r: n = max(n, 5)
        if c.kind == 'valu':
            if pw_s & c.r: n = max(n, 4 if c.op.startswith(('v_readlane', 'v_writelane')) else 2)
            if c.op.startswith(('v_readfirstlane', 'v_readlane')) and pw_v & c.r: n = max(n, 1)
            if c.op.startswith('v_permlane') and pw_v & c.r: n = max(n, 2)
            if 'dpp' in c.op or 'row_' in c.mods or 'quad_perm' in c.mods:
                if pw_v & c.r: n = max(n, 2)
            if p.is_trans() and pw_v & c.r: n = max(n, 1)
            if p.is_dot() and (pw_v & (c.r | c.w)):
                same_acc = c.op == p.op and not (pw_v & (_regs(c.ops[1]) | _regs(c.ops[2])))
                if not same_acc: n = max(n, 3)
            if ('op_sel' in p.mods and not p.op.startswith('v_pk')) or 'sdwa' in p.op or 'dst_sel' in p.mods:
                if pw_v & (c.r | c.w): n = max(n, 1)
        if p.is_dot() and c.kind in ('ds', 'vmem', 'mfma') and pw_v & c.r: n = max(n, 3)
        if p.is_trans() and c.kind in ('ds', 'vmem', 'mfma') and pw_v & c.r: n = max(n, 2)
        if c.kind == 'salu' and pw_s & c.r: n = max(n, 1)
    if p.kind == 'mfma':
        P = p.passes
        tab_rd = {2: 5, 4: 8, 8: 12}[P]
        if c.kind == 'mfma':
            if p.w & c.ab: n = max(n, tab_rd)
            if p.w & c.srcC:
                if c.srcC == p.w and c.passes == P: n = max(n, 2 if P == 2 else 0)
                else: n = max(n, {2: 4, 4: 6, 8: 10}[P])
            if (p.w & c.w) and not (p.w & c.srcC): n = max(n, tab_rd)
        elif c.kind in ('valu', 'ds', 'vmem'):
            if p.w & (c.r | c.w): n = max(n, tab_rd)
            if c.kind == 'valu' and (p.srcC & c.w): n = max(n, {2: 1, 4: 3, 8: 7}[P])
            if c.kind in ('ds', 'vmem') and (p.srcC & c.w): n = max(n, {2: 1, 4: 3, 8: 7}[P])
    if p.kind == 'vmem' and len(p.data) >= 3:
        if c.w & p.data: n = max(n, 2 if c.kind == 'valu' else 1)
    if p.kind == 'salu' and 'm0' in p.w and c.kind == 'vmem' and getattr(c, 'ldsdma', False): n = max(n, 1)
    if p.kind == 'salu' and ({'exec_lo', 'exec_hi'} & p.w) and c.kind == 'valu' and c.op.startswith('v_permlane'): n = max(n, 1)
    return n

class Asm:
    def __init__(self): self.ins = []
    def __call__(self, text):
        for line in text.split('\n'):
            line = line.strip()
            if line and not line.startswith(';'): self.ins.append(Ins(line))
    def label(self, l): self.ins.append(Ins(l + ':'))
    def fix_hazards(self, maxd=20):
        changed = True; total = 0
        while changed:
            changed = False
            ins = self.ins
            labels = {x.label: i for i, x in enumerate(ins) if x.label}
            preds = [[] for _ in ins]
            for i, x in enumerate(ins):
                if i + 1 < len(ins) and not (x.op in ('s_branch', 's_endpgm')): preds[i + 1].append(i)
                if x.op and (x.op.startswith('s_cbranch') or x.op == 's_branch'):
                    preds[labels[x.ops[0]]].append(i)
            for i, c in enumerate(ins):
                if c.kind in ('label', 'dir'): continue
                short = 0
                stack = [(p, 0) for p in preds[i]]; seen = {}
                while stack:
                    j, d = stack.pop()
                    if d >= maxd or seen.get(j, 99) <= d: continue
                    seen[j] = d
                    p = ins[j]
                    if p.kind not in ('label', 'dir'):
                        nn = need(p, c)
                        if nn > d: short = max(short, nn - d)
                    for q in preds[j]: stack.append((q, d + p.states()))
                if short:
                    k = short
                    new = []
                    while k > 0:
                        t = min(k, 16); new.append(Ins(f's_nop {t-1}')); k -= t
                    self.ins[i:i] = new; total += short
                    changed = True
                    break
        return total
    def text(self):
        out = []
        for x in self.ins:
            out.append(x.text if x.kind == 'label' else '    ' + x.text)
        return '\n'.join(out) + '\n'

def check_async(asm, ignore=frozenset()):
    import sys
    sys.setrecursionlimit(100000)
    ins = asm.ins
    labels = {x.label: i for i, x in enumerate(ins) if x.label}
    seen = set(); problems = {}
    stack = [(0, (), ())]
    while stack:
        i, vm, lg = stack.pop()
        while i < len(ins):
            key = (i, vm, lg)
            if key in seen: break
            seen.add(key)
            x = ins[i]
            if x.kind in ('label', 'dir'): i += 1; continue
            if x.op == 's_waitcnt':
                t = x.text
                m = re.search(r'vmcnt\((\d+)\)', t)
                if m: n = int(m.group(1)); vm = vm[len(vm) - n:] if n < len(vm) else vm; vm = vm if n else ()
                m = re.search(r'lgkmcnt\((\d+)\)', t)
                if m:
                    n = int(m.group(1))
                    if n == 0: lg = ()
                    elif not any(e[0] == 's' for e in lg): lg = lg[len(lg) - n:] if n < len(lg) else lg
                i += 1; continue
            touched = (x.r | x.w) - ignore
            for q in (vm, lg):
                for e in q:
                    if e[1] & touched and e[2] != i:
                        problems.setdefault((i, e[2]), (x.text, ins[e[2]].text))
            if x.kind == 'vmem': vm = (vm + (('v', frozenset(x.w), i),))[-64:]
            elif x.kind == 'ds': lg = (lg + (('d', frozenset(x.w), i),))[-40:]
            elif x.op.startswith(('s_load', 's_memtime')): lg = lg + (('s', frozenset(x.w), i),)
            if x.op == 's_endpgm': break
            if x.op == 's_branch': i = labels[x.ops[0]]; continue
            if x.op.startswith('s_cbranch'): stack.append((labels[x.ops[0]], vm, lg))
            i += 1
        if len(seen) > 3000000: print('check_async: state explosion'); break
    for (i, j), (a, b) in sorted(problems.items())[:12]: print(f'ASYNC HAZARD: [{i}] {a}   <- pending [{j}] {b}')
    return len(problems)
```

```python
import sys, math, struct
from emit import Asm, check_async
NAME = "sequential_preLN__sliding_block__dense_activation_squared_relu__prompt"
OPT = dict(stamps=0, until=0, fast=1, pf=1, wbl2=0, outsc=0, la3=8, la4=8, la5=10, pfa=2, pfc=1, pfd=1, p1pos=0, nt=0)
for a in sys.argv[2:]:
    k, v_ = a.split('='); assert k in OPT, k; OPT[k] = int(v_)

WS_KV, WS_O, WS_H, WS_ST, WS_H1, WS_FL = 0x0, 0x400000, 0x600000, 0x800000, 0x900000, 0x1000000
WS_STAMP = 0x2000000
F1, F2, F3, F4 = 0, 64*16, 64*48, 64*64
RB, RA = 0, 98304
SL = 16384
L_STAT, L_CNT, L_PR = 0, 512, 1024
L_Q, L_K, L_V, VT = 4096, 12288, 53248, 4160
L_WQ = 2 * SL
A_PART, A_CSF, A_B1F, A_W2, A_SCR3 = RA, RA + 1536, RA + 2048, RA + 4096, RA + 4096
TIMEOUT = 400000
CSC = 0.25 * math.log2(math.e)
def f2u(x): return hex(struct.unpack('<I', struct.pack('<f', x))[0])

sW, sT, sSub, sG, sM = 's3', 's4', 's5', 's6', 's7'
SX, SWQ, SWO, SW1, SB1, SW2, SB2, SOUT, SWS, SDBG = [f's[{b}:{b+3}]' for b in range(40, 80, 4)]
sA, sB, sI, sMode, sJ = 's80', 's81', 's82', 's83', 's38'
def v(a, n=1): return f'v{a}' if n == 1 else f'v[{a}:{a+n-1}]'

A = Asm()
uid = [0]
def L(p='L'):
    uid[0] += 1; return f'{p}{uid[0]}'
STAMP_NAMES = ['start', 's1_c0', 's1_loop_end', 's1_bs1', 's1_stored', 's1_flag', 'kv_ready', 'att_p1', 'att_end', 'o_flag',
               's3_polled', 's3_mfma', 's3_flag', 's4_polled', 's4_phA', 's4_phB', 's4_flag', 's5_polled', 's5_mfma', 'end',
               'ld_a', 'ld_b', 'ld_c', 'ld_d', 'x0', 'x1', 'x2', 'x3', 'x4', 'x5', 'x6', 'x7']
SID = {n: i for i, n in enumerate(STAMP_NAMES)}
def stamp(name):
    if not OPT['stamps']: return
    A(f's_memtime s[98:99]\ns_waitcnt lgkmcnt(0)\nv_mov_b32 v247, s98\nv_mov_b32 v246, s97\ns_mov_b64 s[94:95], exec\ns_mov_b64 exec, 1')
    A(f'buffer_store_dword v247, v246, {SWS}, 0 offen offset:{4*SID[name]}\ns_mov_b64 exec, s[94:95]')

def poll(vaddr, vtmp, nlanes):
    lp, dn = L('Lpoll'), L('Lpd')
    A(f's_mov_b32 exec_lo, {hex((1 << nlanes) - 1)}\ns_mov_b32 exec_hi, 0\ns_mov_b32 s8, 0')
    A.label(lp)
    A(f'buffer_load_dword {vtmp}, {vaddr}, {SWS}, 0 offen sc1\ns_add_u32 s8, s8, 1\ns_waitcnt vmcnt(0)')
    A(f'v_cmp_eq_u32 vcc, 0, {vtmp}\ns_cmp_gt_u32 s8, {TIMEOUT}\ns_cbranch_scc1 {dn}\ns_cbranch_vccnz {lp}')
    A.label(dn)
    A('s_mov_b64 exec, -1')
def lds_wait(off, want, va, vt):
    lp, dn = L('Llw'), L('Llwd')
    A(f'v_mov_b32 {va}, {off}\ns_mov_b32 s8, 0')
    A.label(lp)
    A(f'ds_read_b32 {vt}, {va}\ns_add_u32 s8, s8, 1\ns_waitcnt lgkmcnt(0)\nv_readfirstlane_b32 s9, {vt}')
    A(f's_cmp_gt_u32 s8, {TIMEOUT*4}\ns_cbranch_scc1 {dn}\ns_cmp_lt_u32 s9, {want}\ns_cbranch_scc1 {lp}')
    A.label(dn)
def lds_inc(off, va, vt):
    A(f'v_mov_b32 {va}, {off}\nv_mov_b32 {vt}, 1\ns_mov_b64 exec, 1\nds_add_u32 {va}, {vt}\ns_mov_b64 exec, -1')
def dual(lines, always_slow=False):
    if always_slow or not OPT['fast']:
        for x in lines: A(x + ' sc1')
        return
    ls, ld = L('Lsl'), L('Lsd')
    A(f's_cmp_eq_u32 {sMode}, 0\ns_cbranch_scc1 {ls}')
    for x in lines: A(x + ['', ' nt', ' sc0', ' sc0 nt'][OPT['nt']])
    A(f's_branch {ld}'); A.label(ls)
    for x in lines: A(x + ' sc1')
    A.label(ld)
def set_flag(sidx, vt0, vt1, slow=False):
    A(f's_lshl_b32 s9, {sidx}, 7\ns_add_u32 s9, s9, {WS_FL}\nv_mov_b32 {vt0}, s9\nv_mov_b32 {vt1}, 1\ns_mov_b64 exec, 1')
    dual([f'buffer_store_dword {vt1}, {vt0}, {SWS}, 0 offen'], slow)
    A('s_mov_b64 exec, -1')
def tr_lane_addr(dst, rowstride, hrows, tmp, swz=True, flip=None):
    A(f'v_lshrrev_b32 {dst}, 5, v0\nv_mul_u32_u24 {dst}, {hrows}, {dst}\nv_bfe_u32 {tmp}, v0, 2, 2\nv_add_u32 {dst}, {dst}, {tmp}')
    A(f'v_mul_u32_u24 {dst}, {rowstride}, {dst}')
    if swz:
        A(f'v_bfe_u32 {tmp}, v0, 3, 1')
        if flip: A(f'v_xor_b32 {tmp}, {flip}, {tmp}')
        A(f'v_lshl_add_u32 {dst}, {tmp}, 6, {dst}')
    A(f'v_bfe_u32 {tmp}, v0, 4, 1\nv_lshl_add_u32 {dst}, {tmp}, 5, {dst}')
    A(f'v_and_b32 {tmp}, 3, v0\nv_lshl_add_u32 {dst}, {tmp}, 3, {dst}')
MF = 'v_mfma_f32_32x32x16_bf16'
def mfs(d, a, b, c=None):
    cs = v(d, 16) if c is None else (c if isinstance(c, str) else v(c, 16))
    return f'{MF} {v(d,16)}, {v(a,4)}, {v(b,4)}, {cs}'
def mfma(d, a, b, c=None): A(mfs(d, a, b, c))
def trs(d, addr, off): return f'ds_read_b64_tr_b16 {v(d,2)}, {addr} offset:{off}'
def trd(d, addr, off): A(trs(d, addr, off))
def dma(voff, srd, soff, sc=''): A(f'buffer_load_dwordx4 {voff}, {srd}, {soff} offen{sc} lds')
def half_sum2(a, b): A(f'v_permlane32_swap_b32 {a}, {b}\nv_add_f32 {a}, {a}, {b}')
def att_masks():
    A('v_and_b32 v232, 31, v0\nv_lshrrev_b32 v233, 5, v0\nv_lshlrev_b32 v233, 2, v233\nv_sub_u32 v232, v232, v233')
    A('v_mov_b32 v234, 0xff800000\nv_mov_b32 v235, 0')
    for r in range(16):
        key = (r & 3) + 8 * (r >> 2)
        A(f'v_cmp_le_i32 vcc, {key}, v232\nv_cndmask_b32 v{56+r}, v234, v235, vcc\nv_cndmask_b32 v{72+r}, v235, v234, vcc')
def x_frag_addrs(AX):
    A(f'v_and_b32 v2, 31, v0\nv_bfe_u32 v3, v0, 1, 3\nv_lshrrev_b32 v4, 5, v0\nv_xor_b32 v3, v3, v4')
    A(f's_lshl_b32 s13, {sA}, 12\ns_add_u32 s13, s13, {RA}\nv_lshlrev_b32 v2, 7, v2\nv_add_u32 v2, s13, v2')
    for p in range(4): A(f'v_xor_b32 v4, {2*p}, v3\nv_lshl_add_u32 {AX(p)}, v4, 4, v2')
def wo_voff(dst):
    A(f'v_lshrrev_b32 v2, 3, v0\nv_and_b32 v3, 7, v0\nv_bfe_u32 v4, v0, 4, 1\nv_lshlrev_b32 v4, 2, v4\nv_xor_b32 v4, v4, v3\nv_lshlrev_b32 v4, 4, v4\nv_lshl_add_u32 {dst}, v2, 10, v4')
def pk_norm(t, acc, rs, mul, out, per_reg_rs=False):
    for j in range(8): A(f'v_pk_mul_f32 {v(t+2*j,2)}, {v(t+2*j,2)}, {v(mul,2)} op_sel_hi:[1,0]')
    for j in range(8):
        if per_reg_rs: A(f'v_pk_fma_f32 {v(t+2*j,2)}, {v(acc+2*j,2)}, {v(rs+2*j,2)}, {v(t+2*j,2)} neg_lo:[0,0,1] neg_hi:[0,0,1]')
        else: A(f'v_pk_fma_f32 {v(t+2*j,2)}, {v(acc+2*j,2)}, {v(rs,2)}, {v(t+2*j,2)} op_sel_hi:[1,0,1] neg_lo:[0,0,1] neg_hi:[0,0,1]')
    for j in range(8): A(f'v_cvt_pk_bf16_f32 v{out+j}, v{t+2*j}, v{t+2*j+1}')
def touch(srd, sbase, n, first=0):
    for i in range(first, first + n):
        A(f's_add_u32 s13, {sbase}, {i*8192}\nbuffer_load_dword v239, v245, {srd}, s13 offen')

A(f's_cmp_ge_u32 s2, 256\ns_cbranch_scc1 Lexit')
if OPT['until']: A('s_memtime s[84:85]')
A('s_load_dwordx16 s[16:31], s[0:1], 0\ns_load_dwordx4 s[32:35], s[0:1], 64\ns_load_dwordx2 s[36:37], s[0:1], 80')
A(f'v_lshrrev_b32 v1, 6, v0\nv_and_b32 v0, 63, v0\nv_readfirstlane_b32 {sW}, v1')
A(f's_and_b32 s8, s2, 7\ns_lshr_b32 {sJ}, s2, 3\ns_and_b32 {sM}, {sJ}, 15\ns_lshr_b32 s9, {sJ}, 4\ns_lshl_b32 {sG}, s8, 1\ns_add_u32 {sG}, {sG}, s9')
A(f's_lshr_b32 s9, {sM}, 3\ns_lshl_b32 {sT}, {sG}, 1\ns_add_u32 {sT}, {sT}, s9\ns_and_b32 {sSub}, {sM}, 7')
A(f's_and_b32 {sA}, {sW}, 1\ns_bfe_u32 {sB}, {sW}, 0x10001\ns_and_b32 {sI}, {sW}, 3\ns_mov_b32 {sMode}, 0')
A('s_waitcnt lgkmcnt(0)')
def srd(b, p, sz): A(f's_mov_b32 s{b}, s{p}\ns_and_b32 s{b+1}, s{p+1}, 0xffff\ns_mov_b32 s{b+2}, {sz}\ns_mov_b32 s{b+3}, 0x20000')
srd(40, 16, 2097152); srd(44, 18, 1572864)
A(f's_cmp_ge_u32 {sW}, 4\ns_cbranch_scc1 Lloader')
def other_srds():
    for (b, p, sz) in ((72, 36, 268435456), (76, 34, 256), (48, 20, 524288), (52, 24, 1409024), (56, 26, 2752), (60, 28, 1409024),
                       (64, 30, 1024), (68, 32, 2097152)): srd(b, p, sz)
    if OPT['stamps']:
        A(f's_lshl_b32 s97, s2, 3\ns_add_u32 s97, s97, {sW}\ns_lshl_b32 s97, s97, 7\ns_add_u32 s97, s97, {WS_STAMP}')
other_srds()
stamp('start')
aK_, aV = 16, 32
XF = lambda p: 64 + 4 * p
WF = lambda p, b: 80 + 8 * p + 4 * b
CK, CV_ = 128, 130
ONES = 'v138'
AX = lambda p: f'v{140+p}'
AW = 'v144'
A(f's_getreg_b32 s39, hwreg(HW_REG_XCC_ID)\ns_and_b32 s39, s39, 15\ns_or_b32 s39, s39, 0x80')
lpf, lgo = L(), L()
A(f's_cmp_lg_u32 {sW}, 0\ns_cbranch_scc1 {lpf}')
A(f's_mul_i32 s8, s2, 20\nv_add_u32 v2, s8, v0\nv_lshlrev_b32 v2, 7, v2\nv_add_u32 v2, {WS_FL}, v2\nv_mov_b32 v3, 0')
A(f's_mov_b32 exec_lo, 0xfffff\ns_mov_b32 exec_hi, 0\nbuffer_store_dword v3, v2, {SWS}, 0 offen sc1')
A(f'v_lshlrev_b32 v4, 2, v0\nds_write_b32 v4, v3 offset:{L_CNT}')
A(f's_lshl_b32 s8, {sG}, 4\ns_and_b32 s9, {sM}, 12\ns_add_u32 s8, s8, s9\ns_and_b32 s9, {sM}, 3\ns_lshl_b32 s9, s9, 3\ns_lshl_b32 s9, s39, s9')
A(f'v_mov_b32 v2, s8\nv_mov_b32 v3, s9\ns_mov_b64 exec, 1\ns_waitcnt vmcnt(0) lgkmcnt(0)')
A(f'buffer_atomic_or v3, v2, {SDBG}, 0 offen sc1\ns_mov_b64 exec, -1\ns_branch {lgo}')
A.label(lpf)
A(f's_cmp_eq_u32 {sW}, 3\ns_cbranch_scc1 {lgo}')
A('s_getpc_b64 s[10:11]')
A.label('Lpc')
A(f's_lshl_b32 s9, {sW}, 4\ns_add_u32 s8, {sJ}, s9\ns_and_b32 s8, s8, 31\ns_lshl_b32 s8, s8, 10')
A(f's_min_u32 s8, s8, Lcodeend-Lpc-1024\ns_add_u32 s10, s10, s8\ns_addc_u32 s11, s11, 0\ns_and_b32 s10, s10, -16\nv_lshlrev_b32 v2, 4, v0')
A('global_load_dwordx4 v[200:203], v2, s[10:11]')
A.label(lgo)
for r in list(range(16, 48)) + list(range(WF(2, 0), WF(4, 0))) + list(range(128, 132)): A(f'v_mov_b32 v{r}, 0')
A(f'v_mov_b32 {ONES}, 0x3f803f80')
x_frag_addrs(AX)
tr_lane_addr(AW, 128, 8, 'v2', True, sB)
A(f'v_add_u32 {AW}, {4*SL}, {AW}\ns_mov_b32 s15, 0\nv_lshlrev_b32 v146, 2, v0')
def p1_reads(p):
    out = [f'ds_read_b128 {v(XF(p),4)}, {AX(p)}']
    for b in range(2):
        for i in range(2): out.append(trs(WF(p, b) + 2 * i, AW, p * 2048 + i * 512 + b * 8192))
    return out
def p1_mf(p): return [mfs(aK_, WF(p, 0), XF(p)), mfs(aV, XF(p), WF(p, 1))]
def p1_dots(ps):
    for p in ps:
        for j in range(4):
            A(f'v_dot2c_f32_bf16 v{CK+(j&1)}, v{WF(p,0)+j}, {ONES}\nv_dot2c_f32_bf16 v{CV_+(j&1)}, v{WF(p,1)+j}, {ONES}')
A.label('Ls1')
A('s_barrier')
for x in p1_reads(0) + p1_reads(1): A(x)
ldb = L()
A(f's_cmp_lg_u32 s15, 4\ns_cbranch_scc1 {ldb}\nbuffer_load_dword v147, v146, {SDBG}, 0 offen sc1')
A.label(ldb)
p1_dots((2, 3))
A('s_waitcnt lgkmcnt(0)')
rd = p1_reads(2) + p1_reads(3); mm = p1_mf(0) + p1_mf(1); k = 0
for i, m in enumerate(mm):
    A(m); n = (3, 3, 2, 2)[i]
    for x in rd[k:k+n]: A(x)
    k += n
A(f's_mov_b32 s13, {SL}\ns_cmp_eq_u32 s15, 1\ns_cselect_b32 s13, {-4*SL}, s13\ns_cmp_eq_u32 s15, 6\ns_cselect_b32 s13, {-4*SL}, s13\ns_add_u32 s15, s15, 1')
A('s_waitcnt lgkmcnt(5)')
m2 = p1_mf(2)
A(m2[0]); A(f'v_add_u32 {AX(0)}, 8192, {AX(0)}\nv_add_u32 {AX(1)}, 8192, {AX(1)}\nv_add_u32 {AX(2)}, 8192, {AX(2)}')
A(m2[1]); A(f'v_add_u32 {AX(3)}, 8192, {AX(3)}\nv_add_u32 {AW}, s13, {AW}')
A('s_waitcnt lgkmcnt(0)')
for m in p1_mf(3): A(m)
p1_dots((0, 1))
A('s_cmp_lt_u32 s15, 8\ns_cbranch_scc1 Ls1')
stamp('s1_loop_end')
p1_dots((2, 3))
CSV = 152
A(f'v_add_f32 v{CK}, v{CK}, v{CK+1}\nv_add_f32 v{CV_}, v{CV_}, v{CV_+1}')
half_sum2(f'v{CK}', f'v{CV_}')
A(f's_lshl_b32 s13, {sW}, 8\ns_add_u32 s13, s13, {L_PR}\nv_add_u32 v6, s13, v146\nds_write_b32 v6, v{CK}')
A(f'v_lshrrev_b32 v7, 5, v0\nv_lshlrev_b32 v7, 4, v7\nv_add_u32 v8, s13, v7\nv_and_b32 v9, 31, v0\nv_lshlrev_b32 v9, 2, v9\nv_add_u32 v10, s13, v9')
tK, tRS, tMRS = 64, 80, 96
A('s_waitcnt lgkmcnt(0)')
for q in range(4): A(f'ds_read_b128 {v(tK+4*q,4)}, v8 offset:{32*q}')
A(f'ds_read_b32 v{CSV}, v10 offset:128')
lchk, lok = L(), L()
A('s_mov_b32 s8, 0')
A.label(lchk)
A(f's_waitcnt vmcnt(0)\nv_and_b32 v2, 0x80808080, v147\nv_cmp_ne_u32 vcc, 0x80808080, v2\ns_add_u32 s8, s8, 1')
A(f's_cbranch_vccz {lok}\ns_cmp_gt_u32 s8, {TIMEOUT}\ns_cbranch_scc1 {lok}')
A(f'buffer_load_dword v147, v146, {SDBG}, 0 offen sc1\ns_branch {lchk}')
A.label(lok)
A(f's_mul_i32 s9, s39, 0x01010101\nv_cmp_eq_u32 vcc, s9, v147\ns_lshl_b32 s9, {sG}, 2\ns_lshr_b64 s[10:11], vcc, s9\ns_and_b32 s10, s10, 15')
A(f's_cmp_eq_u32 s10, 15\ns_cselect_b32 {sMode}, 1, 0\nv_mov_b32 v2, {L_CNT+8}\nv_mov_b32 v3, {sMode}\nds_write_b32 v2, v3')
A(f's_lshl_b32 s13, {sA}, 7\nv_add_u32 v7, s13, v7\nv_add_u32 v9, s13, v9')
A(f's_lshl_b32 s13, {sT}, 1\ns_add_u32 s13, s13, {sA}\ns_lshl_b32 s16, s13, 3\ns_add_u32 s16, s16, {sSub}\ns_lshl_b32 s16, s16, 13')
A(f's_lshl_b32 s14, {sB}, 11\ns_add_u32 s16, s16, s14\ns_add_u32 s17, s16, 4096')
A(f's_lshl_b32 s18, s13, 4\ns_lshl_b32 s14, {sSub}, 1\ns_add_u32 s18, s18, s14\ns_add_u32 s18, s18, {sB}\nv_lshlrev_b32 v14, 4, v0')
A('s_waitcnt lgkmcnt(0)\ns_barrier')
stamp('s1_bs1')
RS, MRS = 148, 150
A(f'ds_read_b32 v{RS}, v9 offset:{L_STAT}\nds_read_b32 v{MRS}, v9 offset:{L_STAT+256}')
for q in range(4): A(f'ds_read_b128 {v(tMRS+4*q,4)}, v7 offset:{L_STAT+256+32*q}')
for q in range(4): A(f'ds_read_b128 {v(tRS+4*q,4)}, v7 offset:{L_STAT+32*q}')
KF, VF = 156, 164
A('s_waitcnt lgkmcnt(8)')
pk_norm(tK, aK_, RS, MRS, KF)
A(f'buffer_store_dwordx4 {v(KF,4)}, v14, {SWS}, s16 offen sc1\nbuffer_store_dwordx4 {v(KF+4,4)}, v14, {SWS}, s16 offen offset:1024 sc1')
A('s_waitcnt lgkmcnt(0)')
pk_norm(tMRS, aV, tRS, CSV, VF, True)
A(f'buffer_store_dwordx4 {v(VF,4)}, v14, {SWS}, s17 offen sc1\nbuffer_store_dwordx4 {v(VF+4,4)}, v14, {SWS}, s17 offen offset:1024 sc1')
stamp('s1_stored')
att_masks()
A(f's_lshl_b32 s13, {sA}, 12\ns_lshl_b32 s14, {sB}, 11\ns_add_u32 s13, s13, s14\ns_add_u32 s13, s13, {L_K + 8*4096}\nv_add_u32 v15, s13, v14')
A(f's_mul_i32 s13, {sA}, {VT}\ns_mul_i32 s14, {sB}, 2080\ns_add_u32 s13, s13, s14\ns_add_u32 s13, s13, {L_V + 8*VT}\nv_add_u32 v146, s13, v14')
A(f'v_lshrrev_b32 v8, 2, v0\nv_mul_u32_u24 v8, {VT}, v8\nv_and_b32 v9, 3, v0\nv_mul_u32_u24 v9, 1040, v9\nv_add_u32 v8, v8, v9')
for r in range(10, 14): A(f'v_mov_b32 v{r}, 0x3f803f80')
A('s_waitcnt vmcnt(0)')
set_flag('s18', 'v2', 'v3', slow=True)
stamp('s1_flag')
sTile = 's23'
HRES = 248
A(f's_lshl_b32 {sTile}, {sT}, 1\ns_add_u32 {sTile}, {sTile}, {sA}')
A(f'v_and_b32 v4, 31, v0\nv_lshlrev_b32 v4, 10, v4\nv_lshrrev_b32 v5, 5, v0\nv_lshl_add_u32 v4, v5, 3, v4')
A(f's_lshl_b32 s24, {sTile}, 15\ns_lshl_b32 s13, {sSub}, 7\ns_add_u32 s24, s24, s13\ns_lshl_b32 s13, {sB}, 6\ns_add_u32 s24, s24, s13')
for q in range(4): A(f'buffer_load_dwordx2 {v(HRES+2*q,2)}, v4, {SX}, s24 offen offset:{16*q}')
lnh, lnh2 = L(), L()
A(f's_add_u32 s19, {sT}, {sI}\ns_cmp_lt_u32 s19, 4\ns_cbranch_scc1 {lnh}')
A(f's_sub_u32 s13, s19, 4\ns_lshl_b32 s13, s13, 1')
A(f's_lshl_b32 s14, s13, 4\ns_lshl_b32 s15, {sSub}, 1\ns_add_u32 s14, s14, s15')
A(f'v_lshrrev_b32 v2, 1, v0\nv_lshlrev_b32 v2, 4, v2\nv_and_b32 v3, 1, v0\nv_add3_u32 v2, v2, v3, s14\nv_lshlrev_b32 v2, 7, v2\nv_add_u32 v2, {WS_FL + F1*128}, v2')
A(f's_lshl_b32 s16, s13, 3\ns_add_u32 s16, s16, {sSub}\ns_lshl_b32 s16, s16, 13')
poll('v2', 'v3', 4)
A.label(lnh)
stamp('x0')
lds_wait(L_CNT + 4, 4, 'v2', 'v3')
stamp('x1')
A(f's_cmp_lt_u32 s19, 4\ns_cbranch_scc1 {lnh2}')
A(f's_lshl_b32 s17, {sI}, 13\ns_add_u32 s17, s17, {L_K}\ns_mul_i32 s18, {sI}, {2*VT}\ns_add_u32 s18, s18, {L_V}')
for t in range(2):
    for i in range(4):
        A(f's_add_u32 s13, s16, {t*65536 + i*1024}\ns_add_u32 m0, s17, {t*4096 + i*1024}'); dma('v14', SWS, 's13', ' sc1')
for t in range(2):
    for i in range(4):
        A(f's_add_u32 s13, s16, {t*65536 + 4096 + i*1024}\ns_add_u32 m0, s18, {t*VT + i*1040}'); dma('v14', SWS, 's13', ' sc1')
A.label(lnh2)
A(f'ds_write_b128 v15, {v(KF,4)}\nds_write_b128 v15, {v(KF+4,4)} offset:1024\nds_write_b128 v146, {v(VF,4)}\nds_write_b128 v146, {v(VF+4,4)} offset:1040')
A(f's_mov_b32 exec_hi, 0xff\nds_write_b128 v8, v[10:13] offset:{L_V + 1024}\ns_mov_b32 exec_hi, -1')
A('s_waitcnt vmcnt(0) lgkmcnt(0)\ns_branch Latt')

A.label('Lloader')
VX0, VX1, VWQ = 'v240', 'v241', 'v242'
A(f'v_lshrrev_b32 v2, 3, v0\nv_and_b32 v3, 7, v0\nv_lshrrev_b32 v4, 4, v0\nv_xor_b32 v4, v4, v3')
A(f's_lshl_b32 s13, {sI}, 14\nv_lshlrev_b32 v5, 10, v2\nv_add_u32 v5, s13, v5\nv_lshl_add_u32 {VX0}, v4, 4, v5')
A(f'v_xor_b32 v4, 4, v4\nv_add_u32 v5, 8192, v5\nv_lshl_add_u32 {VX1}, v4, 4, v5')
A(f'v_bfe_u32 v4, v0, 4, 1\nv_lshlrev_b32 v4, 2, v4\nv_xor_b32 v4, v4, v3\nv_lshlrev_b32 v4, 4, v4')
A(f's_mul_i32 s13, {sI}, {16*3072}\nv_mul_u32_u24 v5, 3072, v2\nv_add3_u32 {VWQ}, v5, v4, s13')
sXo, sWo, sLo = 's86', 's87', 's88'
A(f's_lshl_b32 {sXo}, {sT}, 16\ns_lshl_b32 {sWo}, {sSub}, 7\ns_lshl_b32 {sLo}, {sI}, 11')
phys = lambda i: (1 + (i + 3) % 5) * SL
def issue_kv(c):
    A(f's_add_u32 s13, {sXo}, {c*128}\ns_add_u32 m0, {sLo}, {RA + c*8192}'); dma(VX0, SX, 's13')
    A(f's_add_u32 m0, {sLo}, {RA + c*8192 + 1024}'); dma(VX1, SX, 's13')
    for b in range(2):
        for e in range(2):
            A(f's_add_u32 s13, {sWo}, {c*64*3072 + (b+1)*1024 + e*24576}\ns_add_u32 m0, {sLo}, {phys(c) + b*8192 + e*1024}'); dma(VWQ, SWQ, 's13')
def issue_q(it):
    for hh in range(2):
        for e in range(2):
            c = (it - 8) * 2 + hh
            A(f's_add_u32 s13, {sWo}, {c*64*3072 + e*24576}\ns_add_u32 m0, {sLo}, {L_WQ + c*8192 + e*1024}'); dma(VWQ, SWQ, 's13')
issue_kv(0); issue_kv(1)
other_srds()
issue_kv(2)
A(f'v_lshrrev_b32 v2, 2, v0\nv_lshlrev_b32 v2, 7, v2\nv_and_b32 v3, 3, v0\nv_lshl_add_u32 v2, v3, 5, v2\ns_add_u32 s13, {sLo}, {RA}\nv_add_u32 v148, s13, v2')
for r in range(150, 154): A(f'v_mov_b32 v{r}, 0')
def xstats(c):
    A(f'ds_read_b128 v[8:11], v148 offset:{c*8192}\nds_read_b128 v[12:15], v148 offset:{c*8192+16}\ns_waitcnt lgkmcnt(1)')
    for j in range(8):
        if j == 4: A('s_waitcnt lgkmcnt(0)')
        A(f'v_lshlrev_b32 v2, 16, v{8+j}\nv_and_b32 v3, 0xffff0000, v{8+j}')
        A(f'v_add_f32 v150, v150, v2\nv_add_f32 v151, v151, v3\nv_fmac_f32 v152, v2, v2\nv_fmac_f32 v153, v3, v3')
later = {0: 12, 1: 12, 2: 12, 3: 12, 4: 12, 5: 12, 6: 10, 7: 8}
for c in range(8):
    A(f's_waitcnt vmcnt({later[c]})\ns_barrier')
    if c == 0: stamp('s1_c0')
    if c + 3 <= 7: issue_kv(c + 3)
    elif c == 5: issue_q(8)
    elif c == 6: issue_q(9)
    else: issue_q(10); issue_q(11)
    xstats(c)
A('v_add_f32 v150, v150, v151\nv_add_f32 v152, v152, v153')
for qp in ('[1,0,3,2]', '[2,3,0,1]'):
    A(f'v_add_f32_dpp v150, v150, v150 quad_perm:{qp} row_mask:0xf bank_mask:0xf\nv_add_f32_dpp v152, v152, v152 quad_perm:{qp} row_mask:0xf bank_mask:0xf')
A(f'v_mul_f32 v150, {f2u(1/512)}, v150\nv_mul_f32 v152, {f2u(1/512)}, v152\nv_fma_f32 v152, -v150, v150, v152\nv_max_f32 v152, 0, v152')
A(f'v_add_f32 v152, {f2u(1e-5)}, v152\nv_rsq_f32 v152, v152\nv_and_b32 v3, 3, v0\nv_cmp_eq_u32 vcc, 0, v3\nv_mul_f32 v150, v150, v152')
A(f'v_cndmask_b32 v150, v150, v152, vcc\nv_lshrrev_b32 v2, 2, v0\nv_lshlrev_b32 v2, 2, v2\nv_lshl_add_u32 v2, v3, 8, v2\ns_lshl_b32 s13, {sI}, 6\nv_add_u32 v2, s13, v2')
A(f's_mov_b32 exec_lo, 0x33333333\ns_mov_b32 exec_hi, 0x33333333\nds_write_b32 v2, v150 offset:{L_STAT}\ns_mov_b64 exec, -1')
stamp('ld_a')
A('s_waitcnt lgkmcnt(0)\ns_barrier')
aQ = 16
QW = lambda p: 80 + 4 * p
x_frag_addrs(AX)
tr_lane_addr(AW, 128, 8, 'v2', True, sB)
A(f'v_add_u32 {AW}, {L_WQ}, {AW}\nv_mov_b32 {ONES}, 0x3f803f80\nv_mov_b32 v128, 0\nv_mov_b32 v129, 0')
for r in range(16, 32): A(f'v_mov_b32 v{r}, 0')
A(f'v_mov_b32 v2, {L_CNT+8}\nds_read_b32 v3, v2\nv_and_b32 v9, 31, v0\nv_lshlrev_b32 v9, 2, v9\ns_lshl_b32 s13, {sA}, 7\nv_add_u32 v9, s13, v9')
A(f'ds_read_b32 v{RS}, v9 offset:{L_STAT}\nds_read_b32 v{MRS}, v9 offset:{L_STAT+256}\ns_waitcnt lgkmcnt(0)\nv_readfirstlane_b32 {sMode}, v3')
A(f'v_mul_f32 v{RS}, {f2u(CSC)}, v{RS}\nv_mul_f32 v{MRS}, {f2u(CSC)}, v{MRS}')
A('s_waitcnt vmcnt(0)')
lds_inc(L_CNT, 'v2', 'v3')
lds_wait(L_CNT, 4, 'v2', 'v3')
stamp('ld_b')
if OPT['pfa']:
    lx, ly = L(), L()
    A(f'v_lshlrev_b32 v245, 7, v0\ns_cmp_ge_u32 {sI}, 2\ns_cbranch_scc1 {lx}\ns_lshl_b32 s26, {sJ}, 14\ns_lshl_b32 s13, {sI}, 13\ns_add_u32 s26, s26, s13')
    touch(SWO, 's26', 1); A(f's_branch {ly}'); A.label(lx)
    if OPT['pfa'] == 2:
        A(f's_mul_i32 s26, {sJ}, 7680\ns_mul_i32 s13, {sA}, {688*1024}\ns_add_u32 s26, s26, s13')
        touch(SW2, 's26', 1)
    A.label(ly)
def q_reads(g, bank):
    out = []
    for p in range(4):
        out.append(f'ds_read_b128 {v(XF(p)+bank*32,4)}, {AX(p)} offset:{g*8192}')
        for i in range(2): out.append(trs(QW(p) + bank * 32 + 2 * i, AW, g * 8192 + p * 2048 + i * 512))
    return out
for x in q_reads(0, 0): A(x)
for g in range(8):
    bk = g & 1
    A('s_waitcnt lgkmcnt(0)')
    nx = q_reads(g + 1, 1 - bk) if g < 7 else []
    for p in range(4):
        mfma(aQ, QW(p) + bk * 32, XF(p) + bk * 32)
        for x in nx[3*p:3*p+3]: A(x)
    if g == 7: lds_inc(L_CNT + 4, 'v2', 'v3')
    for p in range(4):
        for j in range(4): A(f'v_dot2c_f32_bf16 v{128+(j&1)}, v{QW(p)+bk*32+j}, {ONES}')
A('v_add_f32 v128, v128, v129\nv_mov_b32 v129, v128')
half_sum2('v128', 'v129')
A(f's_lshl_b32 s13, {sW}, 8\ns_add_u32 s13, s13, {L_PR}\nv_lshlrev_b32 v6, 2, v0\nv_add_u32 v6, s13, v6\nds_write_b32 v6, v128')
A(f'v_lshrrev_b32 v7, 5, v0\nv_lshlrev_b32 v7, 4, v7\nv_add_u32 v7, s13, v7\ns_waitcnt lgkmcnt(0)')
for q in range(4): A(f'ds_read_b128 {v(64+4*q,4)}, v7 offset:{32*q}')
A(f's_lshl_b32 s13, {sA}, 12\ns_lshl_b32 s14, {sB}, 11\ns_add_u32 s13, s13, s14\ns_add_u32 s13, s13, {L_Q}\nv_lshlrev_b32 v14, 4, v0\nv_add_u32 v14, s13, v14')
A('s_waitcnt lgkmcnt(0)')
pk_norm(64, aQ, RS, MRS, 156)
A(f'ds_write_b128 v14, v[156:159]\nds_write_b128 v14, v[160:163] offset:1024')
att_masks()
stamp('x2')
A('s_waitcnt lgkmcnt(0)')

A.label('Latt')
KFa = lambda t: 16 + 4 * t
QFa, CL, CF = 52, 56, 72
S1 = lambda t: 88 + 16 * t
sTau = 's20'
VWO = 'v243'
wo_voff(VWO)
A(f's_lshr_b32 s13, {sW}, 2\ns_lshl_b32 s21, {sT}, 1\ns_add_u32 s21, s21, s13')
A(f's_sub_u32 {sTau}, 8, s21\ns_max_i32 {sTau}, {sTau}, 0')
A(f's_lshl_b32 s15, s13, 12\ns_lshl_b32 s16, {sI}, 10\ns_add_u32 s16, s16, s15\ns_add_u32 s16, s16, {L_K}')
A(f'v_lshlrev_b32 v232, 4, v0\nv_add_u32 v233, s16, v232')
A(f's_lshl_b32 s16, {sW}, 10\ns_add_u32 s16, s16, {L_Q}\nv_add_u32 v235, s16, v232')
A(f's_mul_i32 s15, s13, {VT}\ns_mul_i32 s16, {sB}, 2080\ns_add_u32 s16, s16, s15\ns_add_u32 s16, s16, {L_V}')
A(f's_lshl_b32 s17, {sA}, 8\nv_or_b32 v236, s17, v232\nv_mov_b32 v237, 1024\nv_and_b32 v238, 16, v0\nv_cmp_eq_u32 vcc, 0, v238\nv_cndmask_b32 v236, v237, v236, vcc')
A(f'v_add_u32 v236, s16, v236')
A(f's_lshl_b32 s22, s21, 5\ns_lshl_b32 s13, {sSub}, 2\ns_add_u32 s22, s22, s13\ns_add_u32 s22, s22, {sI}')
A(f's_lshl_b32 s27, {sI}, 17\ns_lshl_b32 s13, {sSub}, 7\ns_add_u32 s27, s27, s13\ns_lshl_b32 s28, {sI}, 14\ns_add_u32 s28, s28, {RA}')
for ph in range(3):
    A(f'v_add_u32 v2, {64*ph}, v0\nv_mul_u32_u24 v3, 171, v2\nv_lshrrev_b32 v3, 11, v3\nv_mul_u32_u24 v4, 12, v3\nv_sub_u32 v4, v2, v4')
    A(f'v_mul_u32_u24 v3, 2752, v3\nv_lshl_add_u32 v{8+ph}, v4, 4, v3')
A(f'v_lshlrev_b32 v245, 7, v0')
A('s_barrier')
stamp('kv_ready')
A(f'ds_read_b128 {v(QFa,4)}, v235')
for t in range(8, -1, -1): A(f'ds_read_b128 {v(KFa(t),4)}, v233 offset:{t*4096}')
def wo_dma(e): A(f's_add_u32 s13, s27, {e*8192}\ns_add_u32 m0, s28, {e*1024}'); dma(VWO, SWO, 's13')
def smf(t, dst, cmid):
    c = CL if t == 8 else (CF if t == 0 else cmid)
    mfma(dst, KFa(t), QFa, c)
M0_, M1_ = 'v238', 'v237'
A(f'v_mov_b32 {M0_}, 0xff800000\nv_mov_b32 {M1_}, 0xff800000')
def maxgrp(t):
    sk = L()
    if t < 8: A(f's_cmp_gt_u32 {sTau}, {t}\ns_cbranch_scc1 {sk}')
    for j in range(8):
        m = M0_ if j % 2 == 0 else M1_
        A(f'v_max3_f32 {m}, v{S1(t)+2*j}, v{S1(t)+2*j+1}, {m}')
    if t < 8: A.label(sk)
order = list(range(8, -1, -1))
for i, t in enumerate(order):
    A(f's_waitcnt lgkmcnt({8-i})')
    smf(t, S1(t), '0')
    if i < 8:
        lx = L(); A(f's_cmp_ge_u32 {sW}, 4\ns_cbranch_scc1 {lx}'); wo_dma(2 * i); wo_dma(2 * i + 1); A.label(lx)
    if i == 8: lds_inc(L_CNT + 12, 'v2', 'v3')
    if i >= 2: maxgrp(order[i-2])
VB = lambda t: 184 + 8 * (t % 3)
def vread(t): A(f'ds_read_b128 {v(VB(t),4)}, v236 offset:{t*VT}\nds_read_b128 {v(VB(t)+4,4)}, v236 offset:{t*VT+1040}')
maxgrp(1); maxgrp(0)
A(f'v_max_f32 {M0_}, {M0_}, {M1_}\nv_mov_b32 {M1_}, {M0_}\nv_permlane32_swap_b32 {M0_}, {M1_}\nv_max_f32 {M0_}, {M0_}, {M1_}')
stamp('att_p1')
lnd, lnw = L(), L()
A(f's_cmp_ge_u32 {sW}, 4\ns_cbranch_scc1 {lnd}')
A(f's_cmp_eq_u32 {sM}, 15\ns_cbranch_scc1 {lnw}')
lds_wait(L_CNT + 12, 8, 'v2', 'v3')
A(f's_mul_i32 s16, {sI}, {16*2752}\ns_mul_i32 s13, {sM}, 192\ns_add_u32 s16, s16, s13\ns_mul_i32 s18, {sI}, 3072\ns_add_u32 s18, s18, {RB + 6144}')
for gi in range(4):
    if gi == 3: A(f's_cmp_eq_u32 {sI}, 3\ns_cbranch_scc1 {lnw}')
    for ph in range(3):
        A(f's_add_u32 s13, s16, {gi*64*2752}\ns_add_u32 m0, s18, {gi*12288 + ph*1024}'); dma(f'v{8+ph}', SW1, 's13')
A.label(lnw)
A(f's_cmp_eq_u32 {sI}, 3\ns_cbranch_scc1 {lnd}\ns_mul_i32 s26, {sJ}, 23392\ns_lshl_b32 s13, {sI}, 13\ns_add_u32 s26, s26, s13\ns_add_u32 s26, s26, 660480')
touch(SW1, 's26', 1)
A.label(lnd)
NM, OA = 136, 152
SB_ = lambda t: 88 + 16 * (t % 3)
PB = lambda t: 168 + 8 * (t % 2)
for r in range(16): A(f'v_sub_f32 v{CL+r}, v{CL+r}, {M0_}')
smf(8, SB_(8), NM)
for r in range(16): A(f'v_sub_f32 v{NM+r}, 0, {M0_}')
vread(8); vread(7)
smf(7, SB_(7), NM)
for r in range(16): A(f'v_sub_f32 v{CF+r}, v{CF+r}, {M0_}')
def pv(t, a, first): mfma(OA, VB(t) + 4 * a, PB(t) + 4 * a, '0' if first else None)
tails = {}
for t in order:
    if t < 8:
        tails[t] = L('Ltail')
        A(f's_cmp_gt_u32 {sTau}, {t}\ns_cbranch_scc1 {tails[t]}')
    ex = [f'v_exp_f32 v{SB_(t)+r}, v{SB_(t)+r}' for r in range(16)]
    cv = [f'v_cvt_pk_bf16_f32 v{PB(t)+j}, v{SB_(t)+2*j}, v{SB_(t)+2*j+1}' for j in range(8)]
    seq = ex[0:4] + ['PV0'] + ex[4:6] + cv[0:2] + ex[6:8] + ['PV1'] + ex[8:10] + cv[2:4] + ex[10:12] + ['SM'] + ex[12:16] + cv[4:8]
    for x in seq:
        if x == 'PV0':
            if t < 8: A('s_waitcnt lgkmcnt(2)'); pv(t + 1, 0, t + 1 == 8)
        elif x == 'PV1':
            if t < 8: pv(t + 1, 1, False)
            if t < 8 and t - 1 >= 0: vread(t - 1)
        elif x == 'SM':
            if t - 2 >= 0: smf(t - 2, SB_(t - 2), NM)
        else: A(x)
ldone = L('Lattdone')
A('s_waitcnt lgkmcnt(0)')
pv(0, 0, False); pv(0, 1, False)
for t in range(7, -1, -1):
    A(f's_branch {ldone}')
    A.label(tails[t])
    A('s_waitcnt lgkmcnt(0)')
    pv(t + 1, 0, t + 1 == 8); pv(t + 1, 1, False)
A.label(ldone)
A(f's_lshl_b32 s13, s22, 10\ns_add_u32 s13, s13, {WS_O}\ns_add_u32 s22, s22, {F2}')
A(f'v_rcp_f32 v238, v{OA+8}')
for j in range(4): A(f'v_pk_mul_f32 {v(OA+2*j,2)}, {v(OA+2*j,2)}, v[238:239] op_sel_hi:[1,0]')
for j in range(4): A(f'v_cvt_pk_bf16_f32 v{168+j}, v{OA+2*j}, v{OA+2*j+1}')
dual([f'buffer_store_dwordx4 v[168:171], v232, {SWS}, s13 offen'])
A('s_waitcnt vmcnt(0)')
set_flag('s22', 'v6', 'v7')
stamp('att_end')
A(f's_cmp_ge_u32 {sW}, 4\ns_cbranch_scc1 Lloader2')
lds_inc(L_CNT + 16, 'v2', 'v3')
lds_wait(L_CNT + 16, 4, 'v2', 'v3')

AK, AS = 16, 32
OF = lambda i: 48 + 4 * i
WOF = lambda i, c: 112 + 8 * i + 4 * c
tr_lane_addr('v2', 128, 4, 'v4', True, sB)
A(f's_lshl_b32 s13, {sB}, 15\ns_add_u32 s13, s13, {RA}\nv_add_u32 v2, s13, v2\nv_xor_b32 v3, 64, v2')
for i in range(16):
    for c in range(2):
        for ii in range(2): trd(WOF(i, c) + 2 * ii, 'v2' if c == 0 else 'v3', i * 2048 + ii * 1024)
A(f's_lshl_b32 s13, {sTile}, 5\ns_lshl_b32 s14, {sB}, 4\ns_add_u32 s13, s13, s14\nv_add_u32 v5, s13, v0\nv_lshlrev_b32 v5, 7, v5\nv_add_u32 v5, {WS_FL + F2*128}, v5')
A(f's_lshl_b32 s16, s13, 10\ns_add_u32 s16, s16, {WS_O}\nv_lshlrev_b32 v244, 4, v0')
for q in range(4):
    for j in range(2):
        A(f'v_lshlrev_b32 v{AK+4*q+2*j}, 16, v{HRES+2*q+j}\nv_and_b32 v{AK+4*q+2*j+1}, 0xffff0000, v{HRES+2*q+j}')
A(f's_lshl_b32 s13, {sW}, 12\ns_add_u32 s13, s13, {A_SCR3}\nv_add_u32 v12, s13, v244\ns_xor_b32 s13, {sW}, 2\ns_lshl_b32 s13, s13, 12\ns_add_u32 s13, s13, {A_SCR3}\nv_add_u32 v13, s13, v244')
A(f's_lshl_b32 s13, {sSub}, 1\ns_add_u32 s13, s13, {sB}\ns_lshl_b32 s14, {sTile}, 4\ns_add_u32 s14, s14, s13')
A(f's_lshl_b32 s19, s14, 11\ns_add_u32 s19, s19, {WS_H}\ns_lshl_b32 s17, s14, 8\ns_add_u32 s17, s17, {WS_ST}\ns_add_u32 s18, s14, {F3}\nv_lshlrev_b32 v14, 2, v0')
A(f'v_mov_b32 v15, 0x3f803f80\nv_mov_b32 v8, 0\nv_mov_b32 v9, 0\nv_mov_b32 v10, 0\nv_mov_b32 v11, 0')
A('s_waitcnt lgkmcnt(0)\ns_barrier')
poll('v5', 'v6', 16)
stamp('s3_polled')
def oload(i):
    if i % 4 == 0 and i: A('s_add_u32 s16, s16, 4096')
    A(f'buffer_load_dwordx4 {v(OF(i),4)}, v244, {SWS}, s16 offen offset:{(i%4)*1024} sc1')
issued = OPT['la3']
for i in range(issued): oload(i)
for i in range(16):
    A(f's_waitcnt vmcnt({issued-1-i})')
    mfma(AS, WOF(i, 1), OF(i), '0' if i == 0 else None)
    if issued < 16: oload(issued); issued += 1
    mfma(AK, WOF(i, 0), OF(i))
stamp('s3_mfma')
for q in range(4): A(f'ds_write_b128 v12, {v(AS+4*q,4)} offset:{q*1024}')
A('s_waitcnt lgkmcnt(0)\ns_barrier')
for q in range(4): A(f'ds_read_b128 {v(AS+4*q,4)}, v13 offset:{q*1024}')
for q in range(4):
    A(f's_waitcnt lgkmcnt({3-q})')
    for j in range(2): A(f'v_pk_add_f32 {v(AK+4*q+2*j,2)}, {v(AK+4*q+2*j,2)}, {v(AS+4*q+2*j,2)}')
    for j in range(2): A(f'v_cvt_pk_bf16_f32 v{HRES+2*q+j}, v{AK+4*q+2*j}, v{AK+4*q+2*j+1}')
dual([f'buffer_store_dwordx4 {v(HRES,4)}, v244, {SWS}, s19 offen', f'buffer_store_dwordx4 {v(HRES+4,4)}, v244, {SWS}, s19 offen offset:1024'])
for j in range(8): A(f'v_dot2c_f32_bf16 v{8+(j&1)}, v{HRES+j}, v15\nv_dot2c_f32_bf16 v{10+(j&1)}, v{HRES+j}, v{HRES+j}')
A('v_add_f32 v8, v8, v9\nv_add_f32 v10, v10, v11')
half_sum2('v8', 'v10')
dual([f'buffer_store_dword v8, v14, {SWS}, s17 offen'])
A('s_waitcnt vmcnt(0)')
set_flag('s18', 'v6', 'v7')
stamp('s3_flag')
A('s_barrier')
A(f's_cmp_eq_u32 {sM}, 15\ns_cbranch_scc1 Ls4skip')
AC = lambda b: 16 + 16 * b
HF = lambda k: 64 + 4 * k
BF = lambda s, b: 192 + 8 * (s % 3) + 4 * b
B1T = HF(20)
STT = 216
sT4 = 's25'
A(f's_lshl_b32 {sT4}, {sG}, 2\ns_add_u32 {sT4}, {sT4}, {sW}')
A(f's_lshl_b32 s13, {sT4}, 4\nv_add_u32 v5, s13, v0\nv_lshlrev_b32 v5, 7, v5\nv_add_u32 v5, {WS_FL + F3*128}, v5')
A(f'v_lshrrev_b32 v4, 5, v0\nv_lshlrev_b32 v4, 4, v4\nv_add_u32 v4, {RA}, v4')
for b in range(3):
    for q in range(4):
        A(f'ds_read_b128 {v(AC(b)+4*q,4)}, v4 offset:{A_CSF-RA + b*128 + 32*q}')
        A(f'ds_read_b128 {v(B1T+16*b+4*q,4)}, v4 offset:{A_B1F-RA + b*128 + 32*q}')
tr_lane_addr('v2', 192, 4, 'v4', False)
A(f'v_add_u32 v3, 49152, v2')
def w1rd(ks, b, dst):
    kp = (ks + 2) % 32
    a = 'v2' if kp < 16 else 'v3'
    for ii in range(2): trd(dst + 2 * ii, a, (kp % 16) * 3072 + ii * 1536 + b * 64)
for s in range(2):
    for b in range(2): w1rd(s, b, BF(s, b))
A(f's_lshl_b32 s16, {sT4}, 15\ns_add_u32 s16, s16, {WS_H}\ns_lshl_b32 s17, {sT4}, 12\ns_add_u32 s17, s17, {WS_ST}\nv_lshlrev_b32 v7, 2, v0')
poll('v5', 'v6', 16)
stamp('s4_polled')
for i in range(16): A(f'buffer_load_dword v{STT+i}, v7, {SWS}, s17 offen offset:{i*256} sc1')
def hload(k):
    if k % 4 == 0 and k: A('s_add_u32 s16, s16, 4096')
    A(f'buffer_load_dwordx4 {v(HF(k),4)}, v244, {SWS}, s16 offen offset:{(k%4)*1024} sc1')
issued = OPT['la4']
for k in range(issued): hload(k)
A(f's_mul_i32 s17, {sT4}, 86\ns_mul_i32 s13, {sM}, 6\ns_add_u32 s17, s17, s13\ns_lshl_b32 s17, s17, 10\ns_add_u32 s17, s17, {WS_H1}\ns_add_u32 s19, s17, 4096')
A(f's_lshl_b32 s18, {sT4}, 4\ns_add_u32 s18, s18, {sM}\ns_add_u32 s18, s18, {F4}')
A(f's_waitcnt vmcnt({issued}) lgkmcnt(0)')
for st in (8, 4, 2, 1):
    for i in range(st): A(f'v_add_f32 v{STT+i}, v{STT+i}, v{STT+i+st}')
MEAN, STD, RS4 = 232, 234, 236
A(f'v_mov_b32 v{STT+1}, v{STT}\nv_permlane32_swap_b32 v{STT}, v{STT+1}')
A(f'v_mul_f32 v{MEAN}, {f2u(1/512)}, v{STT}\nv_mul_f32 v{STT+1}, {f2u(1/512)}, v{STT+1}')
A(f'v_fma_f32 v{STT+1}, -v{MEAN}, v{MEAN}, v{STT+1}\nv_max_f32 v{STT+1}, 0, v{STT+1}\nv_add_f32 v{STT+1}, {f2u(1e-5)}, v{STT+1}')
A(f'v_rsq_f32 v{RS4}, v{STT+1}\nv_sqrt_f32 v{STD}, v{STT+1}')
for b in range(3):
    for j in range(8): A(f'v_pk_mul_f32 {v(AC(b)+2*j,2)}, {v(AC(b)+2*j,2)}, {v(MEAN,2)} op_sel_hi:[1,0]')
    for j in range(8): A(f'v_pk_fma_f32 {v(AC(b)+2*j,2)}, {v(B1T+16*b+2*j,2)}, {v(STD,2)}, {v(AC(b)+2*j,2)} op_sel_hi:[1,0,1] neg_lo:[0,0,1] neg_hi:[0,0,1]')
for ks in range(32):
    A(f's_waitcnt vmcnt({issued-1-ks}) lgkmcnt({4 if ks > 0 else 0})')
    mfma(AC(0), BF(ks, 0), HF(ks))
    if ks + 2 < 32: w1rd(ks + 2, 0, BF(ks + 2, 0))
    else: w1rd(2 * (ks - 30), 2, 216 + 8 * (ks - 30))
    mfma(AC(1), BF(ks, 1), HF(ks))
    if ks + 2 < 32: w1rd(ks + 2, 1, BF(ks + 2, 1))
    else: w1rd(2 * (ks - 30) + 1, 2, 220 + 8 * (ks - 30))
    if issued < 32:
        hload(issued); issued += 1
        if issued == 32: A('s_barrier')
stamp('s4_phA')
BF2 = lambda s: 216 + 4 * (s % 4)
def epi_ops(b, dst):
    ops = []
    for j in range(8):
        r0, r1 = AC(b) + 2 * j, AC(b) + 2 * j + 1
        ops += [f'v_max_f32 v{r0}, 0, v{r0}', f'v_max_f32 v{r1}, 0, v{r1}', f'v_mul_f32 v{r0}, v{RS4}, v{r0}', f'v_mul_f32 v{r1}, v{RS4}, v{r1}',
                f'v_mul_f32 v{r0}, v{r0}, v{r0}', f'v_mul_f32 v{r1}, v{r1}, v{r1}', f'v_cvt_pk_bf16_f32 v{dst+j}, v{r0}, v{r1}']
    ops.append(('st', b, dst))
    return ops
def h1store(b, src):
    sk = None
    if b > 0:
        sk = L(); A(f's_cmp_eq_u32 {sM}, 14\ns_cbranch_scc1 {sk}')
    sb = 's17' if b < 2 else 's19'; off = (2 * b % 4) * 1024
    dual([f'buffer_store_dwordx4 {v(src,4)}, v244, {SWS}, {sb} offen offset:{off}', f'buffer_store_dwordx4 {v(src+4,4)}, v244, {SWS}, {sb} offen offset:{off+1024}'])
    if sk: A.label(sk)
ep = epi_ops(0, 192) + epi_ops(1, 200)
pos = 0
for ks in range(32):
    A(f's_waitcnt lgkmcnt({min(6, 2*(31-ks))})')
    mfma(AC(2), BF2(ks), HF(ks))
    if ks + 4 < 32: w1rd(ks + 4, 2, BF2(ks + 4))
    if ks >= 1:
        for x in ep[pos:pos+4]:
            if isinstance(x, tuple): h1store(x[1], x[2])
            else: A(x)
        pos += 4
assert pos >= len(ep)
stamp('s4_phB')
A('s_barrier')
for j in range(16): A(f'v_max_f32 v{AC(2)+j}, 0, v{AC(2)+j}')
for j in range(8): A(f'v_pk_mul_f32 {v(AC(2)+2*j,2)}, {v(AC(2)+2*j,2)}, {v(RS4,2)} op_sel_hi:[1,0]')
for j in range(8): A(f'v_pk_mul_f32 {v(AC(2)+2*j,2)}, {v(AC(2)+2*j,2)}, {v(AC(2)+2*j,2)}')
for j in range(8): A(f'v_cvt_pk_bf16_f32 v{208+j}, v{AC(2)+2*j}, v{AC(2)+2*j+1}')
h1store(2, 208)
A('s_waitcnt vmcnt(0)')
set_flag('s18', 'v6', 'v7')
stamp('s4_flag')
A('s_branch Ls5')
A.label('Ls4skip')
A('s_barrier')
A('s_barrier')
A.label('Ls5')
NW = 40
GF = lambda s: 48 + 4 * (s % NW)
B5 = lambda s, c: 208 + 8 * (s % 3) + 4 * c
A(f'v_lshrrev_b32 v4, 5, v0\nv_lshlrev_b32 v4, 3, v4\ns_lshl_b32 s13, {sSub}, 7\ns_lshl_b32 s14, {sB}, 6\ns_add_u32 s13, s13, s14')
for q in range(4): A(f'buffer_load_dwordx2 {v(8+2*q,2)}, v4, {SB2}, s13 offen offset:{16*q}')
A(f's_lshl_b32 s13, {sTile}, 4\ns_mul_i32 s14, {sB}, 7\ns_add_u32 s13, s13, s14\nv_add_u32 v5, s13, v0\nv_lshlrev_b32 v5, 7, v5\nv_add_u32 v5, {WS_FL + F4*128}, v5')
A(f's_mul_i32 s16, {sTile}, 86\ns_mul_i32 s13, {sB}, 43\ns_add_u32 s16, s16, s13\ns_lshl_b32 s16, s16, 10\ns_add_u32 s16, s16, {WS_H1}')
tr_lane_addr('v2', 128, 4, 'v4', True, sB)
A(f's_mul_i32 s13, {sB}, 49152\ns_add_u32 s13, s13, {RB}\nv_add_u32 v234, s13, v2\nv_xor_b32 v235, 64, v234')
A(f's_mul_i32 s13, {sB}, 30720\ns_add_u32 s13, s13, {A_W2}\nv_add_u32 v232, s13, v2\nv_xor_b32 v233, 64, v232')
A(f's_lshl_b32 s14, {sA}, 12\ns_add_u32 s13, s13, s14\ns_add_u32 s13, s13, 8192\nv_add_u32 v236, s13, v244')
A(f's_xor_b32 s15, {sB}, 1\ns_mul_i32 s13, s15, 30720\ns_add_u32 s13, s13, s14\ns_add_u32 s13, s13, {A_W2 + 8192}\nv_add_u32 v237, s13, v244')
def w2rd(s):
    for c in range(2):
        if s < 15: a, off = ('v232', 'v233')[c], s * 2048
        elif s < 39: a, off = ('v234', 'v235')[c], (s - 15) * 2048
        else: a, off = ('v232', 'v233')[c], (s - 39) * 2048
        for ii in range(2): trd(B5(s, c) + 2 * ii, a, off + ii * 1024)
w2rd(0); w2rd(1)
poll('v5', 'v6', 8)
stamp('s5_polled')
def gload(s):
    if s % 4 == 0 and s: A('s_add_u32 s16, s16, 4096')
    A(f'buffer_load_dwordx4 {v(GF(s),4)}, v244, {SWS}, s16 offen offset:{(s%4)*1024} sc1')
for s in range(OPT['la5']): gload(s)
for j in range(8):
    A(f'v_lshlrev_b32 v{AK+2*j}, 16, v{8+j}\nv_and_b32 v{AK+2*j+1}, 0xffff0000, v{8+j}')
    A(f'v_lshlrev_b32 v6, 16, v{HRES+j}\nv_and_b32 v7, 0xffff0000, v{HRES+j}')
    A(f'v_add_f32 v{AK+2*j}, v{AK+2*j}, v6\nv_add_f32 v{AK+2*j+1}, v{AK+2*j+1}, v7')
A(f'v_and_b32 v4, 31, v0\nv_lshlrev_b32 v4, 10, v4\nv_lshrrev_b32 v5, 5, v0\nv_lshl_add_u32 v4, v5, 4, v4')
issued = OPT['la5']
def w2rd1(s, c):
    if s < 15: a, off = ('v232', 'v233')[c], s * 2048
    elif s < 39: a, off = ('v234', 'v235')[c], (s - 15) * 2048
    else: a, off = ('v232', 'v233')[c], (s - 39) * 2048
    for ii in range(2): trd(B5(s, c) + 2 * ii, a, off + ii * 1024)
for s in range(43):
    A(f's_waitcnt vmcnt({issued-1-s}) lgkmcnt({4 if s < 42 else 0})')
    if s == 2: A('s_waitcnt lgkmcnt(0)\ns_barrier')
    if s == 36: A('s_barrier')
    mfma(AS, B5(s, 1), GF(s), '0' if s == 0 else None)
    if s + 2 < 43: w2rd1(s + 2, 0)
    mfma(AK, B5(s, 0), GF(s))
    if s + 2 < 43: w2rd1(s + 2, 1)
    if issued < 43: gload(issued); issued += 1
stamp('s5_mfma')
for q in range(4): A(f'ds_write_b128 v236, {v(AS+4*q,4)} offset:{q*1024}')
A('s_waitcnt lgkmcnt(0)\ns_barrier')
for q in range(4): A(f'ds_read_b128 {v(AS+4*q,4)}, v237 offset:{q*1024}')
for q in range(4):
    A(f's_waitcnt lgkmcnt({3-q})')
    for j in range(2): A(f'v_pk_add_f32 {v(AK+4*q+2*j,2)}, {v(AK+4*q+2*j,2)}, {v(AS+4*q+2*j,2)}')
    for j in range(2): A(f'v_cvt_pk_bf16_f32 v{8+2*q+j}, v{AK+4*q+2*j}, v{AK+4*q+2*j+1}')
    if q % 2:
        b = 8 + 2 * q - 2
        A(f'v_permlane32_swap_b32 v{b}, v{b+2}\nv_permlane32_swap_b32 v{b+1}, v{b+3}')
        A(f'buffer_store_dwordx4 {v(b,4)}, v4, {SOUT}, s24 offen offset:{(q//2)*32}' + (' sc1' if OPT['outsc'] == 1 else (' nt' if OPT['outsc'] == 2 else '')))
stamp('end')
if OPT['until']:
    A.label('Lspin')
    A(f's_memtime s[88:89]\ns_waitcnt lgkmcnt(0)\ns_sub_u32 s88, s88, s84\ns_cmp_lt_u32 s88, {OPT["until"]}\ns_cbranch_scc1 Lspin')
A('s_endpgm')

def wb(level):
    if OPT['wbl2'] == 1 and level == 2:
        lx = L(); A(f's_cmp_lg_u32 {sI}, 0\ns_cbranch_scc1 {lx}\nbuffer_wbl2 sc1'); A.label(lx)
    if (OPT['wbl2'] == 2 and level == 2) or OPT['wbl2'] == 3:
        lx = L(); A(f's_cmp_lg_u32 {sJ}, 15\ns_cbranch_scc1 {lx}\ns_cmp_lg_u32 {sI}, 0\ns_cbranch_scc1 {lx}\nbuffer_wbl2 sc1'); A.label(lx)
A.label('Lloader2')
A('s_barrier')
lsk1 = L()
A(f's_cmp_eq_u32 {sM}, 15\ns_cbranch_scc1 {lsk1}')
A(f's_mul_i32 s16, {sI}, {16*2752}\ns_mul_i32 s13, {sM}, 192\ns_add_u32 s16, s16, s13\ns_mul_i32 s18, {sI}, 3072')
for gi in range(3):
    for ph in range(3):
        A(f's_add_u32 s13, s16, {(15+4*gi)*16*2752}\ns_add_u32 m0, s18, {RB + (17+4*gi)*3072 + ph*1024}'); dma(f'v{8+ph}', SW1, 's13')
A(f's_add_u32 s14, {sI}, 29\ns_and_b32 s14, s14, 31\ns_mul_i32 s14, s14, 3072')
for ph in range(3):
    A(f's_add_u32 s13, s16, {27*16*2752}\ns_add_u32 m0, s14, {RB + ph*1024}'); dma(f'v{8+ph}', SW1, 's13')
A(f's_cmp_lg_u32 {sI}, 0\ns_cbranch_scc1 {lsk1}')
for ph in range(3):
    A(f's_add_u32 s13, s16, {31*16*2752}\ns_mov_b32 m0, {RB + 3072 + ph*1024}'); dma(f'v{8+ph}', SW1, 's13')
A.label(lsk1)
A(f's_mul_i32 s13, {sM}, 192\nv_lshlrev_b32 v2, 1, v0\nbuffer_load_ushort v12, v2, {SB1}, s13 offen\nbuffer_load_ushort v13, v2, {SB1}, s13 offen offset:128')
A(f'v_mov_b32 v2, 0\nv_mov_b32 v3, {RA + 3072}\nds_write_b32 v3, v2')
tr_lane_addr('v2', 192, 4, 'v4', False)
A(f's_mul_i32 s13, {sI}, {128*192}\nv_add_u32 v2, s13, v2\nv_mov_b32 v3, 0x3f803f80')
for r in range(16, 22): A(f'v_mov_b32 v{r}, 0')
A('s_waitcnt vmcnt(0) lgkmcnt(0)\ns_barrier')
stamp('ld_c')
for half in range(2):
    for s in range(4):
        for b in range(3):
            for ii in range(2): trd(32 + 12 * s + 4 * b + 2 * ii, 'v2', (4 * half + s) * 3072 + ii * 1536 + b * 64)
    A('s_waitcnt lgkmcnt(0)')
    for s in range(4):
        for j in range(4):
            for b in range(3): A(f'v_dot2c_f32_bf16 v{16+2*b+(j&1)}, v{32+12*s+4*b+j}, v3')
A('v_add_f32 v16, v16, v17\nv_add_f32 v18, v18, v19\nv_add_f32 v20, v20, v21\nv_mov_b32 v21, v20')
half_sum2('v16', 'v18'); half_sum2('v20', 'v21')
A(f's_mul_i32 s13, {sI}, 384\ns_add_u32 s13, s13, {A_PART}\nv_lshlrev_b32 v4, 2, v0\nv_add_u32 v5, s13, v4')
A('ds_write_b32 v5, v16\ns_mov_b32 exec_hi, 0\nds_write_b32 v5, v20 offset:256\ns_mov_b32 exec_hi, -1')
A('s_waitcnt lgkmcnt(0)')
lds_inc(RA + 3072, 'v6', 'v7')
lds_wait(RA + 3072, 4, 'v6', 'v7')
A(f'v_add_u32 v4, {RA}, v4')
for i in range(4): A(f'ds_read_b32 v{16+i}, v4 offset:{i*384}\nds_read_b32 v{20+i}, v4 offset:{i*384+256}')
A('v_lshlrev_b32 v12, 16, v12\nv_lshlrev_b32 v13, 16, v13\ns_waitcnt lgkmcnt(0)')
A('v_add_f32 v16, v16, v17\nv_add_f32 v18, v18, v19\nv_add_f32 v20, v20, v21\nv_add_f32 v22, v22, v23\nv_add_f32 v16, v16, v18\nv_add_f32 v20, v20, v22')
A(f'ds_write_b32 v4, v16 offset:{A_CSF-RA}\nds_write_b32 v4, v12 offset:{A_B1F-RA}\ns_mov_b32 exec_hi, 0')
A(f'ds_write_b32 v4, v20 offset:{A_CSF-RA+256}\nds_write_b32 v4, v13 offset:{A_B1F-RA+256}\ns_mov_b32 exec_hi, -1')
A('s_waitcnt lgkmcnt(0)\ns_barrier')
A(f's_mul_i32 s16, {sB}, {43*16*1024}\ns_lshl_b32 s13, {sA}, 13\ns_add_u32 s16, s16, s13\ns_lshl_b32 s13, {sSub}, 7\ns_add_u32 s16, s16, s13')
def w2loop(n, ldsbase, khstride):
    A(f's_mul_i32 s18, {sB}, {khstride}\ns_lshl_b32 s13, {sA}, 10\ns_add_u32 s18, s18, s13\ns_add_u32 s18, s18, {ldsbase}\ns_mov_b32 s19, {n}')
    lp = L(); A.label(lp)
    A('s_mov_b32 m0, s18'); dma(VWO, SW2, 's16')
    A(f's_add_u32 s16, s16, 16384\ns_add_u32 s18, s18, 2048\ns_sub_u32 s19, s19, 1\ns_cmp_lg_u32 s19, 0\ns_cbranch_scc1 {lp}')
def p2touch(n, start, lbl):
    A(f's_mul_i32 s26, {sA}, {688*1024}\ns_lshl_b32 s13, {sB}, 13\ns_add_u32 s26, s26, s13\ns_and_b32 s13, {sG}, 1\ns_lshl_b32 s13, s13, 14\ns_add_u32 s26, s26, s13')
    A(f's_add_u32 s26, s26, {240*1024 + start}\ns_mov_b32 s19, {n}\nv_lshlrev_b32 v245, 7, v0')
    A.label(lbl)
    A(f'buffer_load_dword v239, v245, {SW2}, s26 offen\ns_add_u32 s26, s26, 32768\ns_sub_u32 s19, s19, 1\ns_cmp_lg_u32 s19, 0\ns_cbranch_scc1 {lbl}')
if OPT['p1pos'] == 0: w2loop(15, A_W2, 30720)
if OPT['pfc']:
    lx = L(); A(f's_cmp_lg_u32 {sM}, 15\ns_cbranch_scc1 {lx}'); p2touch(9 if OPT['pfd'] else 14, 0, L()); A.label(lx)
wb(1)
A('s_barrier')
if OPT['pfd']:
    lx = L(); A(f's_cmp_lg_u32 {sM}, 14\ns_cbranch_scc1 {lx}'); p2touch(5, 9*32768, L()); A.label(lx)
if OPT['p1pos'] == 1: w2loop(15, A_W2, 30720)
A('s_waitcnt vmcnt(0)\ns_barrier')
w2loop(24, RB, 49152)
A('s_waitcnt vmcnt(0)')
stamp('ld_d')
A('s_barrier')
w2loop(4, A_W2, 30720)
wb(2)
A('s_waitcnt vmcnt(0)\ns_barrier')
A('s_barrier')
A.label('Lexit')
A('s_endpgm')
A.label('Lcodeend')

n = A.fix_hazards()
assert check_async(A, frozenset({'v239'})) == 0
hdr = open('cdna_kernels/' + NAME + '.s.ref').read().split('; Override')[0]
out = hdr + f'; @launch grid=(256,1,1) block=(512,1,1) lds=163840\n.amdgcn_target "amdgcn-amd-amdhsa--gfx950"\n.text\n.globl {NAME}_kernel\n.p2align 8\n.type {NAME}_kernel,@function\n{NAME}_kernel:\n'
out += A.text()
out += f'''.fill 64, 4, 0xbf800000
.section .rodata,"a"
.p2align 6
.amdhsa_kernel {NAME}_kernel
  .amdhsa_next_free_vgpr 256
  .amdhsa_next_free_sgpr 102
  .amdhsa_accum_offset 256
  .amdhsa_group_segment_fixed_size 0
  .amdhsa_kernarg_size 88
  .amdhsa_user_sgpr_count 2
  .amdhsa_user_sgpr_kernarg_segment_ptr 1
  .amdhsa_system_sgpr_workgroup_id_x 1
  .amdhsa_float_denorm_mode_32 3
.end_amdhsa_kernel
'''
open(sys.argv[1], 'w').write(out)
print('nops inserted:', n, 'instructions:', len(A.ins))
```

```python
import sys, math, struct
from emit import Asm, check_async
NAME = "sequential_preLN__sliding_block__dense_activation_squared_relu__prompt"
OPT = dict(stamps=0, until=0, fast=1, pf=1, wbl2=0, outsc=0, la3=8, la4=8, la5=10, pfa=2, pfc=1, pfd=1, p1pos=0, nt=0, hold=-1, holdt=40000, impure=0)
for a in sys.argv[2:]:
    k, v_ = a.split('='); assert k in OPT, k; OPT[k] = int(v_)

WS_KV, WS_O, WS_H, WS_ST, WS_H1, WS_FL = 0x0, 0x400000, 0x600000, 0x800000, 0x900000, 0x1000000
WS_STAMP = 0x2000000
F1, F2, F3, F4 = 0, 64*16, 64*48, 64*64
RB, RA = 0, 98304
SL = 16384
L_STAT, L_CNT, L_PR = 0, 512, 1024
L_Q, L_K, L_V, VT = 4096, 12288, 53248, 4160
L_WQ = 2 * SL
A_PART, A_CSF, A_B1F, A_W2, A_SCR3 = RA, RA + 1536, RA + 2048, RA + 4096, RA + 4096
TIMEOUT = 400000
CSC = 0.25 * math.log2(math.e)
def f2u(x): return hex(struct.unpack('<I', struct.pack('<f', x))[0])

sW, sT, sSub, sG, sM = 's3', 's4', 's5', 's6', 's7'
SX, SWQ, SWO, SW1, SB1, SW2, SB2, SOUT, SWS, SDBG = [f's[{b}:{b+3}]' for b in range(40, 80, 4)]
sA, sB, sI, sMode, sJ = 's80', 's81', 's82', 's83', 's38'
def v(a, n=1): return f'v{a}' if n == 1 else f'v[{a}:{a+n-1}]'

A = Asm()
uid = [0]
def L(p='L'):
    uid[0] += 1; return f'{p}{uid[0]}'
STAMP_NAMES = ['start', 's1_c0', 's1_loop_end', 's1_bs1', 's1_stored', 's1_flag', 'kv_ready', 'att_p1', 'att_end', 'o_flag',
               's3_polled', 's3_mfma', 's3_flag', 's4_polled', 's4_phA', 's4_phB', 's4_flag', 's5_polled', 's5_mfma', 'end',
               'ld_a', 'ld_b', 'ld_c', 'ld_d', 'x0', 'x1', 'x2', 'x3', 'x4', 'x5', 'x6', 'x7']
SID = {n: i for i, n in enumerate(STAMP_NAMES)}
def stamp(name):
    if OPT['hold'] == SID[name]:
        lb = L('Lhold'); A.label(lb)
        A(f's_memtime s[92:93]\ns_waitcnt lgkmcnt(0)\ns_sub_u32 s92, s92, s84\ns_cmp_lt_u32 s92, {OPT["holdt"]}\ns_cbranch_scc1 {lb}')
    if not OPT['stamps']: return
    A(f's_memtime s[98:99]\ns_waitcnt lgkmcnt(0)\nv_mov_b32 v247, s98\nv_mov_b32 v246, s97\ns_mov_b64 s[94:95], exec\ns_mov_b64 exec, 1')
    A(f'buffer_store_dword v247, v246, {SWS}, 0 offen offset:{4*SID[name]}\ns_mov_b64 exec, s[94:95]')

def poll(vaddr, vtmp, nlanes):
    lp, dn = L('Lpoll'), L('Lpd')
    A(f's_mov_b32 exec_lo, {hex((1 << nlanes) - 1)}\ns_mov_b32 exec_hi, 0\ns_mov_b32 s8, 0')
    A.label(lp)
    A(f'buffer_load_dword {vtmp}, {vaddr}, {SWS}, 0 offen sc1\ns_add_u32 s8, s8, 1\ns_waitcnt vmcnt(0)')
    A(f'v_cmp_eq_u32 vcc, 0, {vtmp}\ns_cmp_gt_u32 s8, {TIMEOUT}\ns_cbranch_scc1 {dn}\ns_cbranch_vccnz {lp}')
    A.label(dn)
    A('s_mov_b64 exec, -1')
def lds_wait(off, want, va, vt):
    lp, dn = L('Llw'), L('Llwd')
    A(f'v_mov_b32 {va}, {off}\ns_mov_b32 s8, 0')
    A.label(lp)
    A(f'ds_read_b32 {vt}, {va}\ns_add_u32 s8, s8, 1\ns_waitcnt lgkmcnt(0)\nv_readfirstlane_b32 s9, {vt}')
    A(f's_cmp_gt_u32 s8, {TIMEOUT*4}\ns_cbranch_scc1 {dn}\ns_cmp_lt_u32 s9, {want}\ns_cbranch_scc1 {lp}')
    A.label(dn)
def lds_inc(off, va, vt):
    A(f'v_mov_b32 {va}, {off}\nv_mov_b32 {vt}, 1\ns_mov_b64 exec, 1\nds_add_u32 {va}, {vt}\ns_mov_b64 exec, -1')
def dual(lines, always_slow=False):
    if always_slow or not OPT['fast']:
        for x in lines: A(x + ' sc1')
        return
    ls, ld = L('Lsl'), L('Lsd')
    A(f's_cmp_eq_u32 {sMode}, 0\ns_cbranch_scc1 {ls}')
    for x in lines: A(x + ['', ' nt', ' sc0', ' sc0 nt'][OPT['nt']])
    A(f's_branch {ld}'); A.label(ls)
    for x in lines: A(x + ' sc1')
    A.label(ld)
def set_flag(sidx, vt0, vt1, slow=False):
    A(f's_lshl_b32 s9, {sidx}, 7\ns_add_u32 s9, s9, {WS_FL}\nv_mov_b32 {vt0}, s9\nv_mov_b32 {vt1}, 1\ns_mov_b64 exec, 1')
    dual([f'buffer_store_dword {vt1}, {vt0}, {SWS}, 0 offen'], slow)
    A('s_mov_b64 exec, -1')
def tr_lane_addr(dst, rowstride, hrows, tmp, swz=True, flip=None):
    A(f'v_lshrrev_b32 {dst}, 5, v0\nv_mul_u32_u24 {dst}, {hrows}, {dst}\nv_bfe_u32 {tmp}, v0, 2, 2\nv_add_u32 {dst}, {dst}, {tmp}')
    A(f'v_mul_u32_u24 {dst}, {rowstride}, {dst}')
    if swz:
        A(f'v_bfe_u32 {tmp}, v0, 3, 1')
        if flip: A(f'v_xor_b32 {tmp}, {flip}, {tmp}')
        A(f'v_lshl_add_u32 {dst}, {tmp}, 6, {dst}')
    A(f'v_bfe_u32 {tmp}, v0, 4, 1\nv_lshl_add_u32 {dst}, {tmp}, 5, {dst}')
    A(f'v_and_b32 {tmp}, 3, v0\nv_lshl_add_u32 {dst}, {tmp}, 3, {dst}')
MF = 'v_mfma_f32_32x32x16_bf16'
def mfs(d, a, b, c=None):
    cs = v(d, 16) if c is None else (c if isinstance(c, str) else v(c, 16))
    return f'{MF} {v(d,16)}, {v(a,4)}, {v(b,4)}, {cs}'
def mfma(d, a, b, c=None): A(mfs(d, a, b, c))
def trs(d, addr, off): return f'ds_read_b64_tr_b16 {v(d,2)}, {addr} offset:{off}'
def trd(d, addr, off): A(trs(d, addr, off))
def dma(voff, srd, soff, sc=''): A(f'buffer_load_dwordx4 {voff}, {srd}, {soff} offen{sc} lds')
def half_sum2(a, b): A(f'v_permlane32_swap_b32 {a}, {b}\nv_add_f32 {a}, {a}, {b}')
def att_masks():
    A('v_and_b32 v232, 31, v0\nv_lshrrev_b32 v233, 5, v0\nv_lshlrev_b32 v233, 2, v233\nv_sub_u32 v232, v232, v233')
    A('v_mov_b32 v234, 0xff800000\nv_mov_b32 v235, 0')
    for r in range(16):
        key = (r & 3) + 8 * (r >> 2)
        A(f'v_cmp_le_i32 vcc, {key}, v232\nv_cndmask_b32 v{56+r}, v234, v235, vcc\nv_cndmask_b32 v{72+r}, v235, v234, vcc')
def x_frag_addrs(AX):
    A(f'v_and_b32 v2, 31, v0\nv_bfe_u32 v3, v0, 1, 3\nv_lshrrev_b32 v4, 5, v0\nv_xor_b32 v3, v3, v4')
    A(f's_lshl_b32 s13, {sA}, 12\ns_add_u32 s13, s13, {RA}\nv_lshlrev_b32 v2, 7, v2\nv_add_u32 v2, s13, v2')
    for p in range(4): A(f'v_xor_b32 v4, {2*p}, v3\nv_lshl_add_u32 {AX(p)}, v4, 4, v2')
def wo_voff(dst):
    A(f'v_lshrrev_b32 v2, 3, v0\nv_and_b32 v3, 7, v0\nv_bfe_u32 v4, v0, 4, 1\nv_lshlrev_b32 v4, 2, v4\nv_xor_b32 v4, v4, v3\nv_lshlrev_b32 v4, 4, v4\nv_lshl_add_u32 {dst}, v2, 10, v4')
def pk_norm(t, acc, rs, mul, out, per_reg_rs=False):
    for j in range(8): A(f'v_pk_mul_f32 {v(t+2*j,2)}, {v(t+2*j,2)}, {v(mul,2)} op_sel_hi:[1,0]')
    for j in range(8):
        if per_reg_rs: A(f'v_pk_fma_f32 {v(t+2*j,2)}, {v(acc+2*j,2)}, {v(rs+2*j,2)}, {v(t+2*j,2)} neg_lo:[0,0,1] neg_hi:[0,0,1]')
        else: A(f'v_pk_fma_f32 {v(t+2*j,2)}, {v(acc+2*j,2)}, {v(rs,2)}, {v(t+2*j,2)} op_sel_hi:[1,0,1] neg_lo:[0,0,1] neg_hi:[0,0,1]')
    for j in range(8): A(f'v_cvt_pk_bf16_f32 v{out+j}, v{t+2*j}, v{t+2*j+1}')
def touch(srd, sbase, n, first=0):
    for i in range(first, first + n):
        A(f's_add_u32 s13, {sbase}, {i*8192}\nbuffer_load_dword v239, v245, {srd}, s13 offen')

A(f's_cmp_ge_u32 s2, 256\ns_cbranch_scc1 Lexit')
if OPT['until'] or OPT['hold'] >= 0 or OPT['impure']: A('s_memtime s[84:85]')
A('s_load_dwordx16 s[16:31], s[0:1], 0\ns_load_dwordx4 s[32:35], s[0:1], 64\ns_load_dwordx2 s[36:37], s[0:1], 80')
A(f'v_lshrrev_b32 v1, 6, v0\nv_and_b32 v0, 63, v0\nv_readfirstlane_b32 {sW}, v1')
A(f's_and_b32 s8, s2, 7\ns_lshr_b32 {sJ}, s2, 3\ns_and_b32 {sM}, {sJ}, 15\ns_lshr_b32 s9, {sJ}, 4\ns_lshl_b32 {sG}, s8, 1\ns_add_u32 {sG}, {sG}, s9')
A(f's_lshr_b32 s9, {sM}, 3\ns_lshl_b32 {sT}, {sG}, 1\ns_add_u32 {sT}, {sT}, s9\ns_and_b32 {sSub}, {sM}, 7')
A(f's_and_b32 {sA}, {sW}, 1\ns_bfe_u32 {sB}, {sW}, 0x10001\ns_and_b32 {sI}, {sW}, 3\ns_mov_b32 {sMode}, 0')
A('s_waitcnt lgkmcnt(0)')
def srd(b, p, sz): A(f's_mov_b32 s{b}, s{p}\ns_and_b32 s{b+1}, s{p+1}, 0xffff\ns_mov_b32 s{b+2}, {sz}\ns_mov_b32 s{b+3}, 0x20000')
srd(40, 16, 2097152); srd(44, 18, 1572864)
A(f's_cmp_ge_u32 {sW}, 4\ns_cbranch_scc1 Lloader')
def other_srds():
    for (b, p, sz) in ((72, 36, 268435456), (76, 34, 256), (48, 20, 524288), (52, 24, 1409024), (56, 26, 2752), (60, 28, 1409024),
                       (64, 30, 1024), (68, 32, 2097152)): srd(b, p, sz)
    if OPT['stamps']:
        A(f's_lshl_b32 s97, s2, 3\ns_add_u32 s97, s97, {sW}\ns_lshl_b32 s97, s97, 7\ns_add_u32 s97, s97, {WS_STAMP}')
other_srds()
stamp('start')
aK_, aV = 16, 32
XF = lambda p: 64 + 4 * p
WF = lambda p, b: 80 + 8 * p + 4 * b
CK, CV_ = 128, 130
ONES = 'v138'
AX = lambda p: f'v{140+p}'
AW = 'v144'
A(f's_getreg_b32 s39, hwreg(HW_REG_XCC_ID)\ns_and_b32 s39, s39, 15\ns_or_b32 s39, s39, 0x80')
lpf, lgo = L(), L()
A(f's_cmp_lg_u32 {sW}, 0\ns_cbranch_scc1 {lpf}')
A(f's_mul_i32 s8, s2, 20\nv_add_u32 v2, s8, v0\nv_lshlrev_b32 v2, 7, v2\nv_add_u32 v2, {WS_FL}, v2\nv_mov_b32 v3, 0')
A(f's_mov_b32 exec_lo, 0xfffff\ns_mov_b32 exec_hi, 0\nbuffer_store_dword v3, v2, {SWS}, 0 offen sc1')
A(f'v_lshlrev_b32 v4, 2, v0\nds_write_b32 v4, v3 offset:{L_CNT}')
A(f's_lshl_b32 s8, {sG}, 4\ns_and_b32 s9, {sM}, 12\ns_add_u32 s8, s8, s9\ns_and_b32 s9, {sM}, 3\ns_lshl_b32 s9, s9, 3\ns_lshl_b32 s9, s39, s9')
A(f'v_mov_b32 v2, s8\nv_mov_b32 v3, s9\ns_mov_b64 exec, 1\ns_waitcnt vmcnt(0) lgkmcnt(0)')
A(f'buffer_atomic_or v3, v2, {SDBG}, 0 offen sc1\ns_mov_b64 exec, -1\ns_branch {lgo}')
A.label(lpf)
A(f's_cmp_eq_u32 {sW}, 3\ns_cbranch_scc1 {lgo}')
A('s_getpc_b64 s[10:11]')
A.label('Lpc')
A(f's_lshl_b32 s9, {sW}, 4\ns_add_u32 s8, {sJ}, s9\ns_and_b32 s8, s8, 31\ns_lshl_b32 s8, s8, 10')
A(f's_min_u32 s8, s8, Lcodeend-Lpc-1024\ns_add_u32 s10, s10, s8\ns_addc_u32 s11, s11, 0\ns_and_b32 s10, s10, -16\nv_lshlrev_b32 v2, 4, v0')
A('global_load_dwordx4 v[200:203], v2, s[10:11]')
A.label(lgo)
for r in list(range(16, 48)) + list(range(WF(2, 0), WF(4, 0))) + list(range(128, 132)): A(f'v_mov_b32 v{r}, 0')
A(f'v_mov_b32 {ONES}, 0x3f803f80')
x_frag_addrs(AX)
tr_lane_addr(AW, 128, 8, 'v2', True, sB)
A(f'v_add_u32 {AW}, {4*SL}, {AW}\ns_mov_b32 s15, 0\nv_lshlrev_b32 v146, 2, v0')
def p1_reads(p):
    out = [f'ds_read_b128 {v(XF(p),4)}, {AX(p)}']
    for b in range(2):
        for i in range(2): out.append(trs(WF(p, b) + 2 * i, AW, p * 2048 + i * 512 + b * 8192))
    return out
def p1_mf(p): return [mfs(aK_, WF(p, 0), XF(p)), mfs(aV, XF(p), WF(p, 1))]
def p1_dots(ps):
    for p in ps:
        for j in range(4):
            A(f'v_dot2c_f32_bf16 v{CK+(j&1)}, v{WF(p,0)+j}, {ONES}\nv_dot2c_f32_bf16 v{CV_+(j&1)}, v{WF(p,1)+j}, {ONES}')
A.label('Ls1')
A('s_barrier')
for x in p1_reads(0) + p1_reads(1): A(x)
ldb = L()
A(f's_cmp_lg_u32 s15, 4\ns_cbranch_scc1 {ldb}\nbuffer_load_dword v147, v146, {SDBG}, 0 offen sc1')
A.label(ldb)
p1_dots((2, 3))
A('s_waitcnt lgkmcnt(0)')
rd = p1_reads(2) + p1_reads(3); mm = p1_mf(0) + p1_mf(1); k = 0
for i, m in enumerate(mm):
    A(m); n = (3, 3, 2, 2)[i]
    for x in rd[k:k+n]: A(x)
    k += n
A(f's_mov_b32 s13, {SL}\ns_cmp_eq_u32 s15, 1\ns_cselect_b32 s13, {-4*SL}, s13\ns_cmp_eq_u32 s15, 6\ns_cselect_b32 s13, {-4*SL}, s13\ns_add_u32 s15, s15, 1')
A('s_waitcnt lgkmcnt(5)')
m2 = p1_mf(2)
A(m2[0]); A(f'v_add_u32 {AX(0)}, 8192, {AX(0)}\nv_add_u32 {AX(1)}, 8192, {AX(1)}\nv_add_u32 {AX(2)}, 8192, {AX(2)}')
A(m2[1]); A(f'v_add_u32 {AX(3)}, 8192, {AX(3)}\nv_add_u32 {AW}, s13, {AW}')
A('s_waitcnt lgkmcnt(0)')
for m in p1_mf(3): A(m)
p1_dots((0, 1))
A('s_cmp_lt_u32 s15, 8\ns_cbranch_scc1 Ls1')
stamp('s1_loop_end')
p1_dots((2, 3))
CSV = 152
A(f'v_add_f32 v{CK}, v{CK}, v{CK+1}\nv_add_f32 v{CV_}, v{CV_}, v{CV_+1}')
half_sum2(f'v{CK}', f'v{CV_}')
A(f's_lshl_b32 s13, {sW}, 8\ns_add_u32 s13, s13, {L_PR}\nv_add_u32 v6, s13, v146\nds_write_b32 v6, v{CK}')
A(f'v_lshrrev_b32 v7, 5, v0\nv_lshlrev_b32 v7, 4, v7\nv_add_u32 v8, s13, v7\nv_and_b32 v9, 31, v0\nv_lshlrev_b32 v9, 2, v9\nv_add_u32 v10, s13, v9')
tK, tRS, tMRS = 64, 80, 96
A('s_waitcnt lgkmcnt(0)')
for q in range(4): A(f'ds_read_b128 {v(tK+4*q,4)}, v8 offset:{32*q}')
A(f'ds_read_b32 v{CSV}, v10 offset:128')
lchk, lok = L(), L()
A('s_mov_b32 s8, 0')
A.label(lchk)
A(f's_waitcnt vmcnt(0)\nv_and_b32 v2, 0x80808080, v147\nv_cmp_ne_u32 vcc, 0x80808080, v2\ns_add_u32 s8, s8, 1')
A(f's_cbranch_vccz {lok}\ns_cmp_gt_u32 s8, {TIMEOUT}\ns_cbranch_scc1 {lok}')
A(f'buffer_load_dword v147, v146, {SDBG}, 0 offen sc1\ns_branch {lchk}')
A.label(lok)
A(f's_mul_i32 s9, s39, 0x01010101\nv_cmp_eq_u32 vcc, s9, v147\ns_lshl_b32 s9, {sG}, 2\ns_lshr_b64 s[10:11], vcc, s9\ns_and_b32 s10, s10, 15')
A(f's_cmp_eq_u32 s10, 15\ns_cselect_b32 {sMode}, 1, 0\nv_mov_b32 v2, {L_CNT+8}\nv_mov_b32 v3, {sMode}\nds_write_b32 v2, v3')
A(f's_lshl_b32 s13, {sA}, 7\nv_add_u32 v7, s13, v7\nv_add_u32 v9, s13, v9')
A(f's_lshl_b32 s13, {sT}, 1\ns_add_u32 s13, s13, {sA}\ns_lshl_b32 s16, s13, 3\ns_add_u32 s16, s16, {sSub}\ns_lshl_b32 s16, s16, 13')
A(f's_lshl_b32 s14, {sB}, 11\ns_add_u32 s16, s16, s14\ns_add_u32 s17, s16, 4096')
A(f's_lshl_b32 s18, s13, 4\ns_lshl_b32 s14, {sSub}, 1\ns_add_u32 s18, s18, s14\ns_add_u32 s18, s18, {sB}\nv_lshlrev_b32 v14, 4, v0')
A('s_waitcnt lgkmcnt(0)\ns_barrier')
stamp('s1_bs1')
RS, MRS = 148, 150
A(f'ds_read_b32 v{RS}, v9 offset:{L_STAT}\nds_read_b32 v{MRS}, v9 offset:{L_STAT+256}')
for q in range(4): A(f'ds_read_b128 {v(tMRS+4*q,4)}, v7 offset:{L_STAT+256+32*q}')
for q in range(4): A(f'ds_read_b128 {v(tRS+4*q,4)}, v7 offset:{L_STAT+32*q}')
KF, VF = 156, 164
A('s_waitcnt lgkmcnt(8)')
pk_norm(tK, aK_, RS, MRS, KF)
A(f'buffer_store_dwordx4 {v(KF,4)}, v14, {SWS}, s16 offen sc1\nbuffer_store_dwordx4 {v(KF+4,4)}, v14, {SWS}, s16 offen offset:1024 sc1')
A('s_waitcnt lgkmcnt(0)')
pk_norm(tMRS, aV, tRS, CSV, VF, True)
A(f'buffer_store_dwordx4 {v(VF,4)}, v14, {SWS}, s17 offen sc1\nbuffer_store_dwordx4 {v(VF+4,4)}, v14, {SWS}, s17 offen offset:1024 sc1')
stamp('s1_stored')
att_masks()
A(f's_lshl_b32 s13, {sA}, 12\ns_lshl_b32 s14, {sB}, 11\ns_add_u32 s13, s13, s14\ns_add_u32 s13, s13, {L_K + 8*4096}\nv_add_u32 v15, s13, v14')
A(f's_mul_i32 s13, {sA}, {VT}\ns_mul_i32 s14, {sB}, 2080\ns_add_u32 s13, s13, s14\ns_add_u32 s13, s13, {L_V + 8*VT}\nv_add_u32 v146, s13, v14')
A(f'v_lshrrev_b32 v8, 2, v0\nv_mul_u32_u24 v8, {VT}, v8\nv_and_b32 v9, 3, v0\nv_mul_u32_u24 v9, 1040, v9\nv_add_u32 v8, v8, v9')
for r in range(10, 14): A(f'v_mov_b32 v{r}, 0x3f803f80')
A('s_waitcnt vmcnt(0)')
set_flag('s18', 'v2', 'v3', slow=True)
stamp('s1_flag')
sTile = 's23'
HRES = 248
A(f's_lshl_b32 {sTile}, {sT}, 1\ns_add_u32 {sTile}, {sTile}, {sA}')
A(f'v_and_b32 v4, 31, v0\nv_lshlrev_b32 v4, 10, v4\nv_lshrrev_b32 v5, 5, v0\nv_lshl_add_u32 v4, v5, 3, v4')
A(f's_lshl_b32 s24, {sTile}, 15\ns_lshl_b32 s13, {sSub}, 7\ns_add_u32 s24, s24, s13\ns_lshl_b32 s13, {sB}, 6\ns_add_u32 s24, s24, s13')
for q in range(4): A(f'buffer_load_dwordx2 {v(HRES+2*q,2)}, v4, {SX}, s24 offen offset:{16*q}')
lnh, lnh2 = L(), L()
A(f's_add_u32 s19, {sT}, {sI}\ns_cmp_lt_u32 s19, 4\ns_cbranch_scc1 {lnh}')
A(f's_sub_u32 s13, s19, 4\ns_lshl_b32 s13, s13, 1')
A(f's_lshl_b32 s14, s13, 4\ns_lshl_b32 s15, {sSub}, 1\ns_add_u32 s14, s14, s15')
A(f'v_lshrrev_b32 v2, 1, v0\nv_lshlrev_b32 v2, 4, v2\nv_and_b32 v3, 1, v0\nv_add3_u32 v2, v2, v3, s14\nv_lshlrev_b32 v2, 7, v2\nv_add_u32 v2, {WS_FL + F1*128}, v2')
A(f's_lshl_b32 s16, s13, 3\ns_add_u32 s16, s16, {sSub}\ns_lshl_b32 s16, s16, 13')
poll('v2', 'v3', 4)
A.label(lnh)
stamp('x0')
lds_wait(L_CNT + 4, 4, 'v2', 'v3')
stamp('x1')
A(f's_cmp_lt_u32 s19, 4\ns_cbranch_scc1 {lnh2}')
A(f's_lshl_b32 s17, {sI}, 13\ns_add_u32 s17, s17, {L_K}\ns_mul_i32 s18, {sI}, {2*VT}\ns_add_u32 s18, s18, {L_V}')
for t in range(2):
    for i in range(4):
        A(f's_add_u32 s13, s16, {t*65536 + i*1024}\ns_add_u32 m0, s17, {t*4096 + i*1024}'); dma('v14', SWS, 's13', ' sc1')
for t in range(2):
    for i in range(4):
        A(f's_add_u32 s13, s16, {t*65536 + 4096 + i*1024}\ns_add_u32 m0, s18, {t*VT + i*1040}'); dma('v14', SWS, 's13', ' sc1')
A.label(lnh2)
A(f'ds_write_b128 v15, {v(KF,4)}\nds_write_b128 v15, {v(KF+4,4)} offset:1024\nds_write_b128 v146, {v(VF,4)}\nds_write_b128 v146, {v(VF+4,4)} offset:1040')
A(f's_mov_b32 exec_hi, 0xff\nds_write_b128 v8, v[10:13] offset:{L_V + 1024}\ns_mov_b32 exec_hi, -1')
A('s_waitcnt vmcnt(0) lgkmcnt(0)\ns_branch Latt')

A.label('Lloader')
VX0, VX1, VWQ = 'v240', 'v241', 'v242'
A(f'v_lshrrev_b32 v2, 3, v0\nv_and_b32 v3, 7, v0\nv_lshrrev_b32 v4, 4, v0\nv_xor_b32 v4, v4, v3')
A(f's_lshl_b32 s13, {sI}, 14\nv_lshlrev_b32 v5, 10, v2\nv_add_u32 v5, s13, v5\nv_lshl_add_u32 {VX0}, v4, 4, v5')
A(f'v_xor_b32 v4, 4, v4\nv_add_u32 v5, 8192, v5\nv_lshl_add_u32 {VX1}, v4, 4, v5')
A(f'v_bfe_u32 v4, v0, 4, 1\nv_lshlrev_b32 v4, 2, v4\nv_xor_b32 v4, v4, v3\nv_lshlrev_b32 v4, 4, v4')
A(f's_mul_i32 s13, {sI}, {16*3072}\nv_mul_u32_u24 v5, 3072, v2\nv_add3_u32 {VWQ}, v5, v4, s13')
sXo, sWo, sLo = 's86', 's87', 's88'
A(f's_lshl_b32 {sXo}, {sT}, 16\ns_lshl_b32 {sWo}, {sSub}, 7\ns_lshl_b32 {sLo}, {sI}, 11')
phys = lambda i: (1 + (i + 3) % 5) * SL
def issue_kv(c):
    A(f's_add_u32 s13, {sXo}, {c*128}\ns_add_u32 m0, {sLo}, {RA + c*8192}'); dma(VX0, SX, 's13')
    A(f's_add_u32 m0, {sLo}, {RA + c*8192 + 1024}'); dma(VX1, SX, 's13')
    for b in range(2):
        for e in range(2):
            A(f's_add_u32 s13, {sWo}, {c*64*3072 + (b+1)*1024 + e*24576}\ns_add_u32 m0, {sLo}, {phys(c) + b*8192 + e*1024}'); dma(VWQ, SWQ, 's13')
def issue_q(it):
    for hh in range(2):
        for e in range(2):
            c = (it - 8) * 2 + hh
            A(f's_add_u32 s13, {sWo}, {c*64*3072 + e*24576}\ns_add_u32 m0, {sLo}, {L_WQ + c*8192 + e*1024}'); dma(VWQ, SWQ, 's13')
issue_kv(0); issue_kv(1)
other_srds()
issue_kv(2)
A(f'v_lshrrev_b32 v2, 2, v0\nv_lshlrev_b32 v2, 7, v2\nv_and_b32 v3, 3, v0\nv_lshl_add_u32 v2, v3, 5, v2\ns_add_u32 s13, {sLo}, {RA}\nv_add_u32 v148, s13, v2')
for r in range(150, 154): A(f'v_mov_b32 v{r}, 0')
def xstats(c):
    A(f'ds_read_b128 v[8:11], v148 offset:{c*8192}\nds_read_b128 v[12:15], v148 offset:{c*8192+16}\ns_waitcnt lgkmcnt(1)')
    for j in range(8):
        if j == 4: A('s_waitcnt lgkmcnt(0)')
        A(f'v_lshlrev_b32 v2, 16, v{8+j}\nv_and_b32 v3, 0xffff0000, v{8+j}')
        A(f'v_add_f32 v150, v150, v2\nv_add_f32 v151, v151, v3\nv_fmac_f32 v152, v2, v2\nv_fmac_f32 v153, v3, v3')
later = {0: 12, 1: 12, 2: 12, 3: 12, 4: 12, 5: 12, 6: 10, 7: 8}
for c in range(8):
    A(f's_waitcnt vmcnt({later[c]})\ns_barrier')
    if c == 0: stamp('s1_c0')
    if c + 3 <= 7: issue_kv(c + 3)
    elif c == 5: issue_q(8)
    elif c == 6: issue_q(9)
    else: issue_q(10); issue_q(11)
    xstats(c)
A('v_add_f32 v150, v150, v151\nv_add_f32 v152, v152, v153')
for qp in ('[1,0,3,2]', '[2,3,0,1]'):
    A(f'v_add_f32_dpp v150, v150, v150 quad_perm:{qp} row_mask:0xf bank_mask:0xf\nv_add_f32_dpp v152, v152, v152 quad_perm:{qp} row_mask:0xf bank_mask:0xf')
A(f'v_mul_f32 v150, {f2u(1/512)}, v150\nv_mul_f32 v152, {f2u(1/512)}, v152\nv_fma_f32 v152, -v150, v150, v152\nv_max_f32 v152, 0, v152')
A(f'v_add_f32 v152, {f2u(1e-5)}, v152\nv_rsq_f32 v152, v152\nv_and_b32 v3, 3, v0\nv_cmp_eq_u32 vcc, 0, v3\nv_mul_f32 v150, v150, v152')
A(f'v_cndmask_b32 v150, v150, v152, vcc\nv_lshrrev_b32 v2, 2, v0\nv_lshlrev_b32 v2, 2, v2\nv_lshl_add_u32 v2, v3, 8, v2\ns_lshl_b32 s13, {sI}, 6\nv_add_u32 v2, s13, v2')
A(f's_mov_b32 exec_lo, 0x33333333\ns_mov_b32 exec_hi, 0x33333333\nds_write_b32 v2, v150 offset:{L_STAT}\ns_mov_b64 exec, -1')
stamp('ld_a')
A('s_waitcnt lgkmcnt(0)\ns_barrier')
aQ = 16
QW = lambda p: 80 + 4 * p
x_frag_addrs(AX)
tr_lane_addr(AW, 128, 8, 'v2', True, sB)
A(f'v_add_u32 {AW}, {L_WQ}, {AW}\nv_mov_b32 {ONES}, 0x3f803f80\nv_mov_b32 v128, 0\nv_mov_b32 v129, 0')
for r in range(16, 32): A(f'v_mov_b32 v{r}, 0')
A(f'v_mov_b32 v2, {L_CNT+8}\nds_read_b32 v3, v2\nv_and_b32 v9, 31, v0\nv_lshlrev_b32 v9, 2, v9\ns_lshl_b32 s13, {sA}, 7\nv_add_u32 v9, s13, v9')
A(f'ds_read_b32 v{RS}, v9 offset:{L_STAT}\nds_read_b32 v{MRS}, v9 offset:{L_STAT+256}\ns_waitcnt lgkmcnt(0)\nv_readfirstlane_b32 {sMode}, v3')
A(f'v_mul_f32 v{RS}, {f2u(CSC)}, v{RS}\nv_mul_f32 v{MRS}, {f2u(CSC)}, v{MRS}')
A('s_waitcnt vmcnt(0)')
lds_inc(L_CNT, 'v2', 'v3')
lds_wait(L_CNT, 4, 'v2', 'v3')
stamp('ld_b')
if OPT['pfa']:
    lx, ly = L(), L()
    A(f'v_lshlrev_b32 v245, 7, v0\ns_cmp_ge_u32 {sI}, 2\ns_cbranch_scc1 {lx}\ns_lshl_b32 s26, {sJ}, 14\ns_lshl_b32 s13, {sI}, 13\ns_add_u32 s26, s26, s13')
    touch(SWO, 's26', 1); A(f's_branch {ly}'); A.label(lx)
    if OPT['pfa'] == 2:
        A(f's_mul_i32 s26, {sJ}, 7680\ns_mul_i32 s13, {sA}, {688*1024}\ns_add_u32 s26, s26, s13')
        touch(SW2, 's26', 1)
    A.label(ly)
def q_reads(g, bank):
    out = []
    for p in range(4):
        out.append(f'ds_read_b128 {v(XF(p)+bank*32,4)}, {AX(p)} offset:{g*8192}')
        for i in range(2): out.append(trs(QW(p) + bank * 32 + 2 * i, AW, g * 8192 + p * 2048 + i * 512))
    return out
for x in q_reads(0, 0): A(x)
for g in range(8):
    bk = g & 1
    A('s_waitcnt lgkmcnt(0)')
    nx = q_reads(g + 1, 1 - bk) if g < 7 else []
    for p in range(4):
        mfma(aQ, QW(p) + bk * 32, XF(p) + bk * 32)
        for x in nx[3*p:3*p+3]: A(x)
    if g == 7: lds_inc(L_CNT + 4, 'v2', 'v3')
    for p in range(4):
        for j in range(4): A(f'v_dot2c_f32_bf16 v{128+(j&1)}, v{QW(p)+bk*32+j}, {ONES}')
A('v_add_f32 v128, v128, v129\nv_mov_b32 v129, v128')
half_sum2('v128', 'v129')
A(f's_lshl_b32 s13, {sW}, 8\ns_add_u32 s13, s13, {L_PR}\nv_lshlrev_b32 v6, 2, v0\nv_add_u32 v6, s13, v6\nds_write_b32 v6, v128')
A(f'v_lshrrev_b32 v7, 5, v0\nv_lshlrev_b32 v7, 4, v7\nv_add_u32 v7, s13, v7\ns_waitcnt lgkmcnt(0)')
for q in range(4): A(f'ds_read_b128 {v(64+4*q,4)}, v7 offset:{32*q}')
A(f's_lshl_b32 s13, {sA}, 12\ns_lshl_b32 s14, {sB}, 11\ns_add_u32 s13, s13, s14\ns_add_u32 s13, s13, {L_Q}\nv_lshlrev_b32 v14, 4, v0\nv_add_u32 v14, s13, v14')
A('s_waitcnt lgkmcnt(0)')
pk_norm(64, aQ, RS, MRS, 156)
A(f'ds_write_b128 v14, v[156:159]\nds_write_b128 v14, v[160:163] offset:1024')
att_masks()
stamp('x2')
A('s_waitcnt lgkmcnt(0)')

A.label('Latt')
KFa = lambda t: 16 + 4 * t
QFa, CL, CF = 52, 56, 72
S1 = lambda t: 88 + 16 * t
sTau = 's20'
VWO = 'v243'
wo_voff(VWO)
A(f's_lshr_b32 s13, {sW}, 2\ns_lshl_b32 s21, {sT}, 1\ns_add_u32 s21, s21, s13')
A(f's_sub_u32 {sTau}, 8, s21\ns_max_i32 {sTau}, {sTau}, 0')
A(f's_lshl_b32 s15, s13, 12\ns_lshl_b32 s16, {sI}, 10\ns_add_u32 s16, s16, s15\ns_add_u32 s16, s16, {L_K}')
A(f'v_lshlrev_b32 v232, 4, v0\nv_add_u32 v233, s16, v232')
A(f's_lshl_b32 s16, {sW}, 10\ns_add_u32 s16, s16, {L_Q}\nv_add_u32 v235, s16, v232')
A(f's_mul_i32 s15, s13, {VT}\ns_mul_i32 s16, {sB}, 2080\ns_add_u32 s16, s16, s15\ns_add_u32 s16, s16, {L_V}')
A(f's_lshl_b32 s17, {sA}, 8\nv_or_b32 v236, s17, v232\nv_mov_b32 v237, 1024\nv_and_b32 v238, 16, v0\nv_cmp_eq_u32 vcc, 0, v238\nv_cndmask_b32 v236, v237, v236, vcc')
A(f'v_add_u32 v236, s16, v236')
A(f's_lshl_b32 s22, s21, 5\ns_lshl_b32 s13, {sSub}, 2\ns_add_u32 s22, s22, s13\ns_add_u32 s22, s22, {sI}')
A(f's_lshl_b32 s27, {sI}, 17\ns_lshl_b32 s13, {sSub}, 7\ns_add_u32 s27, s27, s13\ns_lshl_b32 s28, {sI}, 14\ns_add_u32 s28, s28, {RA}')
for ph in range(3):
    A(f'v_add_u32 v2, {64*ph}, v0\nv_mul_u32_u24 v3, 171, v2\nv_lshrrev_b32 v3, 11, v3\nv_mul_u32_u24 v4, 12, v3\nv_sub_u32 v4, v2, v4')
    A(f'v_mul_u32_u24 v3, 2752, v3\nv_lshl_add_u32 v{8+ph}, v4, 4, v3')
A(f'v_lshlrev_b32 v245, 7, v0')
A('s_barrier')
stamp('kv_ready')
A(f'ds_read_b128 {v(QFa,4)}, v235')
for t in range(8, -1, -1): A(f'ds_read_b128 {v(KFa(t),4)}, v233 offset:{t*4096}')
def wo_dma(e): A(f's_add_u32 s13, s27, {e*8192}\ns_add_u32 m0, s28, {e*1024}'); dma(VWO, SWO, 's13')
def smf(t, dst, cmid):
    c = CL if t == 8 else (CF if t == 0 else cmid)
    mfma(dst, KFa(t), QFa, c)
M0_, M1_ = 'v238', 'v237'
A(f'v_mov_b32 {M0_}, 0xff800000\nv_mov_b32 {M1_}, 0xff800000')
def maxgrp(t):
    sk = L()
    if t < 8: A(f's_cmp_gt_u32 {sTau}, {t}\ns_cbranch_scc1 {sk}')
    for j in range(8):
        m = M0_ if j % 2 == 0 else M1_
        A(f'v_max3_f32 {m}, v{S1(t)+2*j}, v{S1(t)+2*j+1}, {m}')
    if t < 8: A.label(sk)
order = list(range(8, -1, -1))
for i, t in enumerate(order):
    A(f's_waitcnt lgkmcnt({8-i})')
    smf(t, S1(t), '0')
    if i < 8:
        lx = L(); A(f's_cmp_ge_u32 {sW}, 4\ns_cbranch_scc1 {lx}'); wo_dma(2 * i); wo_dma(2 * i + 1); A.label(lx)
    if i == 8: lds_inc(L_CNT + 12, 'v2', 'v3')
    if i >= 2: maxgrp(order[i-2])
VB = lambda t: 184 + 8 * (t % 3)
def vread(t): A(f'ds_read_b128 {v(VB(t),4)}, v236 offset:{t*VT}\nds_read_b128 {v(VB(t)+4,4)}, v236 offset:{t*VT+1040}')
maxgrp(1); maxgrp(0)
A(f'v_max_f32 {M0_}, {M0_}, {M1_}\nv_mov_b32 {M1_}, {M0_}\nv_permlane32_swap_b32 {M0_}, {M1_}\nv_max_f32 {M0_}, {M0_}, {M1_}')
stamp('att_p1')
lnd, lnw = L(), L()
A(f's_cmp_ge_u32 {sW}, 4\ns_cbranch_scc1 {lnd}')
A(f's_cmp_eq_u32 {sM}, 15\ns_cbranch_scc1 {lnw}')
lds_wait(L_CNT + 12, 8, 'v2', 'v3')
A(f's_mul_i32 s16, {sI}, {16*2752}\ns_mul_i32 s13, {sM}, 192\ns_add_u32 s16, s16, s13\ns_mul_i32 s18, {sI}, 3072\ns_add_u32 s18, s18, {RB + 6144}')
for gi in range(4):
    if gi == 3: A(f's_cmp_eq_u32 {sI}, 3\ns_cbranch_scc1 {lnw}')
    for ph in range(3):
        A(f's_add_u32 s13, s16, {gi*64*2752}\ns_add_u32 m0, s18, {gi*12288 + ph*1024}'); dma(f'v{8+ph}', SW1, 's13')
A.label(lnw)
A(f's_cmp_eq_u32 {sI}, 3\ns_cbranch_scc1 {lnd}\ns_mul_i32 s26, {sJ}, 23392\ns_lshl_b32 s13, {sI}, 13\ns_add_u32 s26, s26, s13\ns_add_u32 s26, s26, 660480')
touch(SW1, 's26', 1)
A.label(lnd)
NM, OA = 136, 152
SB_ = lambda t: 88 + 16 * (t % 3)
PB = lambda t: 168 + 8 * (t % 2)
for r in range(16): A(f'v_sub_f32 v{CL+r}, v{CL+r}, {M0_}')
smf(8, SB_(8), NM)
for r in range(16): A(f'v_sub_f32 v{NM+r}, 0, {M0_}')
vread(8); vread(7)
smf(7, SB_(7), NM)
for r in range(16): A(f'v_sub_f32 v{CF+r}, v{CF+r}, {M0_}')
def pv(t, a, first): mfma(OA, VB(t) + 4 * a, PB(t) + 4 * a, '0' if first else None)
tails = {}
for t in order:
    if t < 8:
        tails[t] = L('Ltail')
        A(f's_cmp_gt_u32 {sTau}, {t}\ns_cbranch_scc1 {tails[t]}')
    ex = [f'v_exp_f32 v{SB_(t)+r}, v{SB_(t)+r}' for r in range(16)]
    cv = [f'v_cvt_pk_bf16_f32 v{PB(t)+j}, v{SB_(t)+2*j}, v{SB_(t)+2*j+1}' for j in range(8)]
    seq = ex[0:4] + ['PV0'] + ex[4:6] + cv[0:2] + ex[6:8] + ['PV1'] + ex[8:10] + cv[2:4] + ex[10:12] + ['SM'] + ex[12:16] + cv[4:8]
    for x in seq:
        if x == 'PV0':
            if t < 8: A('s_waitcnt lgkmcnt(2)'); pv(t + 1, 0, t + 1 == 8)
        elif x == 'PV1':
            if t < 8: pv(t + 1, 1, False)
            if t < 8 and t - 1 >= 0: vread(t - 1)
        elif x == 'SM':
            if t - 2 >= 0: smf(t - 2, SB_(t - 2), NM)
        else: A(x)
ldone = L('Lattdone')
A('s_waitcnt lgkmcnt(0)')
pv(0, 0, False); pv(0, 1, False)
for t in range(7, -1, -1):
    A(f's_branch {ldone}')
    A.label(tails[t])
    A('s_waitcnt lgkmcnt(0)')
    pv(t + 1, 0, t + 1 == 8); pv(t + 1, 1, False)
A.label(ldone)
A(f's_lshl_b32 s13, s22, 10\ns_add_u32 s13, s13, {WS_O}\ns_add_u32 s22, s22, {F2}')
A(f'v_rcp_f32 v238, v{OA+8}')
for j in range(4): A(f'v_pk_mul_f32 {v(OA+2*j,2)}, {v(OA+2*j,2)}, v[238:239] op_sel_hi:[1,0]')
for j in range(4): A(f'v_cvt_pk_bf16_f32 v{168+j}, v{OA+2*j}, v{OA+2*j+1}')
dual([f'buffer_store_dwordx4 v[168:171], v232, {SWS}, s13 offen'])
A('s_waitcnt vmcnt(0)')
set_flag('s22', 'v6', 'v7')
stamp('att_end')
A(f's_cmp_ge_u32 {sW}, 4\ns_cbranch_scc1 Lloader2')
lds_inc(L_CNT + 16, 'v2', 'v3')
lds_wait(L_CNT + 16, 4, 'v2', 'v3')

AK, AS = 16, 32
OF = lambda i: 48 + 4 * i
WOF = lambda i, c: 112 + 8 * i + 4 * c
tr_lane_addr('v2', 128, 4, 'v4', True, sB)
A(f's_lshl_b32 s13, {sB}, 15\ns_add_u32 s13, s13, {RA}\nv_add_u32 v2, s13, v2\nv_xor_b32 v3, 64, v2')
for i in range(16):
    for c in range(2):
        for ii in range(2): trd(WOF(i, c) + 2 * ii, 'v2' if c == 0 else 'v3', i * 2048 + ii * 1024)
A(f's_lshl_b32 s13, {sTile}, 5\ns_lshl_b32 s14, {sB}, 4\ns_add_u32 s13, s13, s14\nv_add_u32 v5, s13, v0\nv_lshlrev_b32 v5, 7, v5\nv_add_u32 v5, {WS_FL + F2*128}, v5')
A(f's_lshl_b32 s16, s13, 10\ns_add_u32 s16, s16, {WS_O}\nv_lshlrev_b32 v244, 4, v0')
for q in range(4):
    for j in range(2):
        A(f'v_lshlrev_b32 v{AK+4*q+2*j}, 16, v{HRES+2*q+j}\nv_and_b32 v{AK+4*q+2*j+1}, 0xffff0000, v{HRES+2*q+j}')
A(f's_lshl_b32 s13, {sW}, 12\ns_add_u32 s13, s13, {A_SCR3}\nv_add_u32 v12, s13, v244\ns_xor_b32 s13, {sW}, 2\ns_lshl_b32 s13, s13, 12\ns_add_u32 s13, s13, {A_SCR3}\nv_add_u32 v13, s13, v244')
A(f's_lshl_b32 s13, {sSub}, 1\ns_add_u32 s13, s13, {sB}\ns_lshl_b32 s14, {sTile}, 4\ns_add_u32 s14, s14, s13')
A(f's_lshl_b32 s19, s14, 11\ns_add_u32 s19, s19, {WS_H}\ns_lshl_b32 s17, s14, 8\ns_add_u32 s17, s17, {WS_ST}\ns_add_u32 s18, s14, {F3}\nv_lshlrev_b32 v14, 2, v0')
A(f'v_mov_b32 v15, 0x3f803f80\nv_mov_b32 v8, 0\nv_mov_b32 v9, 0\nv_mov_b32 v10, 0\nv_mov_b32 v11, 0')
A('s_waitcnt lgkmcnt(0)\ns_barrier')
poll('v5', 'v6', 16)
stamp('s3_polled')
def oload(i):
    if i % 4 == 0 and i: A('s_add_u32 s16, s16, 4096')
    A(f'buffer_load_dwordx4 {v(OF(i),4)}, v244, {SWS}, s16 offen offset:{(i%4)*1024} sc1')
issued = OPT['la3']
for i in range(issued): oload(i)
for i in range(16):
    A(f's_waitcnt vmcnt({issued-1-i})')
    mfma(AS, WOF(i, 1), OF(i), '0' if i == 0 else None)
    if issued < 16: oload(issued); issued += 1
    mfma(AK, WOF(i, 0), OF(i))
stamp('s3_mfma')
for q in range(4): A(f'ds_write_b128 v12, {v(AS+4*q,4)} offset:{q*1024}')
A('s_waitcnt lgkmcnt(0)\ns_barrier')
for q in range(4): A(f'ds_read_b128 {v(AS+4*q,4)}, v13 offset:{q*1024}')
for q in range(4):
    A(f's_waitcnt lgkmcnt({3-q})')
    for j in range(2): A(f'v_pk_add_f32 {v(AK+4*q+2*j,2)}, {v(AK+4*q+2*j,2)}, {v(AS+4*q+2*j,2)}')
    for j in range(2): A(f'v_cvt_pk_bf16_f32 v{HRES+2*q+j}, v{AK+4*q+2*j}, v{AK+4*q+2*j+1}')
dual([f'buffer_store_dwordx4 {v(HRES,4)}, v244, {SWS}, s19 offen', f'buffer_store_dwordx4 {v(HRES+4,4)}, v244, {SWS}, s19 offen offset:1024'])
for j in range(8): A(f'v_dot2c_f32_bf16 v{8+(j&1)}, v{HRES+j}, v15\nv_dot2c_f32_bf16 v{10+(j&1)}, v{HRES+j}, v{HRES+j}')
A('v_add_f32 v8, v8, v9\nv_add_f32 v10, v10, v11')
half_sum2('v8', 'v10')
dual([f'buffer_store_dword v8, v14, {SWS}, s17 offen'])
A('s_waitcnt vmcnt(0)')
set_flag('s18', 'v6', 'v7')
stamp('s3_flag')
A('s_barrier')
A(f's_cmp_eq_u32 {sM}, 15\ns_cbranch_scc1 Ls4skip')
AC = lambda b: 16 + 16 * b
HF = lambda k: 64 + 4 * k
BF = lambda s, b: 192 + 8 * (s % 3) + 4 * b
B1T = HF(20)
STT = 216
sT4 = 's25'
A(f's_lshl_b32 {sT4}, {sG}, 2\ns_add_u32 {sT4}, {sT4}, {sW}')
A(f's_lshl_b32 s13, {sT4}, 4\nv_add_u32 v5, s13, v0\nv_lshlrev_b32 v5, 7, v5\nv_add_u32 v5, {WS_FL + F3*128}, v5')
A(f'v_lshrrev_b32 v4, 5, v0\nv_lshlrev_b32 v4, 4, v4\nv_add_u32 v4, {RA}, v4')
for b in range(3):
    for q in range(4):
        A(f'ds_read_b128 {v(AC(b)+4*q,4)}, v4 offset:{A_CSF-RA + b*128 + 32*q}')
        A(f'ds_read_b128 {v(B1T+16*b+4*q,4)}, v4 offset:{A_B1F-RA + b*128 + 32*q}')
tr_lane_addr('v2', 192, 4, 'v4', False)
A(f'v_add_u32 v3, 49152, v2')
def w1rd(ks, b, dst):
    kp = (ks + 2) % 32
    a = 'v2' if kp < 16 else 'v3'
    for ii in range(2): trd(dst + 2 * ii, a, (kp % 16) * 3072 + ii * 1536 + b * 64)
for s in range(2):
    for b in range(2): w1rd(s, b, BF(s, b))
A(f's_lshl_b32 s16, {sT4}, 15\ns_add_u32 s16, s16, {WS_H}\ns_lshl_b32 s17, {sT4}, 12\ns_add_u32 s17, s17, {WS_ST}\nv_lshlrev_b32 v7, 2, v0')
poll('v5', 'v6', 16)
stamp('s4_polled')
for i in range(16): A(f'buffer_load_dword v{STT+i}, v7, {SWS}, s17 offen offset:{i*256} sc1')
def hload(k):
    if k % 4 == 0 and k: A('s_add_u32 s16, s16, 4096')
    A(f'buffer_load_dwordx4 {v(HF(k),4)}, v244, {SWS}, s16 offen offset:{(k%4)*1024} sc1')
issued = OPT['la4']
for k in range(issued): hload(k)
A(f's_mul_i32 s17, {sT4}, 86\ns_mul_i32 s13, {sM}, 6\ns_add_u32 s17, s17, s13\ns_lshl_b32 s17, s17, 10\ns_add_u32 s17, s17, {WS_H1}\ns_add_u32 s19, s17, 4096')
A(f's_lshl_b32 s18, {sT4}, 4\ns_add_u32 s18, s18, {sM}\ns_add_u32 s18, s18, {F4}')
A(f's_waitcnt vmcnt({issued}) lgkmcnt(0)')
for st in (8, 4, 2, 1):
    for i in range(st): A(f'v_add_f32 v{STT+i}, v{STT+i}, v{STT+i+st}')
MEAN, STD, RS4 = 232, 234, 236
A(f'v_mov_b32 v{STT+1}, v{STT}\nv_permlane32_swap_b32 v{STT}, v{STT+1}')
A(f'v_mul_f32 v{MEAN}, {f2u(1/512)}, v{STT}\nv_mul_f32 v{STT+1}, {f2u(1/512)}, v{STT+1}')
A(f'v_fma_f32 v{STT+1}, -v{MEAN}, v{MEAN}, v{STT+1}\nv_max_f32 v{STT+1}, 0, v{STT+1}\nv_add_f32 v{STT+1}, {f2u(1e-5)}, v{STT+1}')
A(f'v_rsq_f32 v{RS4}, v{STT+1}\nv_sqrt_f32 v{STD}, v{STT+1}')
for b in range(3):
    for j in range(8): A(f'v_pk_mul_f32 {v(AC(b)+2*j,2)}, {v(AC(b)+2*j,2)}, {v(MEAN,2)} op_sel_hi:[1,0]')
    for j in range(8): A(f'v_pk_fma_f32 {v(AC(b)+2*j,2)}, {v(B1T+16*b+2*j,2)}, {v(STD,2)}, {v(AC(b)+2*j,2)} op_sel_hi:[1,0,1] neg_lo:[0,0,1] neg_hi:[0,0,1]')
for ks in range(32):
    A(f's_waitcnt vmcnt({issued-1-ks}) lgkmcnt({4 if ks > 0 else 0})')
    mfma(AC(0), BF(ks, 0), HF(ks))
    if ks + 2 < 32: w1rd(ks + 2, 0, BF(ks + 2, 0))
    else: w1rd(2 * (ks - 30), 2, 216 + 8 * (ks - 30))
    mfma(AC(1), BF(ks, 1), HF(ks))
    if ks + 2 < 32: w1rd(ks + 2, 1, BF(ks + 2, 1))
    else: w1rd(2 * (ks - 30) + 1, 2, 220 + 8 * (ks - 30))
    if issued < 32:
        hload(issued); issued += 1
        if issued == 32: A('s_barrier')
stamp('s4_phA')
BF2 = lambda s: 216 + 4 * (s % 4)
def epi_ops(b, dst):
    ops = []
    for j in range(8):
        r0, r1 = AC(b) + 2 * j, AC(b) + 2 * j + 1
        ops += [f'v_max_f32 v{r0}, 0, v{r0}', f'v_max_f32 v{r1}, 0, v{r1}', f'v_mul_f32 v{r0}, v{RS4}, v{r0}', f'v_mul_f32 v{r1}, v{RS4}, v{r1}',
                f'v_mul_f32 v{r0}, v{r0}, v{r0}', f'v_mul_f32 v{r1}, v{r1}, v{r1}', f'v_cvt_pk_bf16_f32 v{dst+j}, v{r0}, v{r1}']
    ops.append(('st', b, dst))
    return ops
def h1store(b, src):
    sk = None
    if b > 0:
        sk = L(); A(f's_cmp_eq_u32 {sM}, 14\ns_cbranch_scc1 {sk}')
    sb = 's17' if b < 2 else 's19'; off = (2 * b % 4) * 1024
    dual([f'buffer_store_dwordx4 {v(src,4)}, v244, {SWS}, {sb} offen offset:{off}', f'buffer_store_dwordx4 {v(src+4,4)}, v244, {SWS}, {sb} offen offset:{off+1024}'])
    if sk: A.label(sk)
ep = epi_ops(0, 192) + epi_ops(1, 200)
pos = 0
for ks in range(32):
    A(f's_waitcnt lgkmcnt({min(6, 2*(31-ks))})')
    mfma(AC(2), BF2(ks), HF(ks))
    if ks + 4 < 32: w1rd(ks + 4, 2, BF2(ks + 4))
    if ks >= 1:
        for x in ep[pos:pos+4]:
            if isinstance(x, tuple): h1store(x[1], x[2])
            else: A(x)
        pos += 4
assert pos >= len(ep)
stamp('s4_phB')
A('s_barrier')
for j in range(16): A(f'v_max_f32 v{AC(2)+j}, 0, v{AC(2)+j}')
for j in range(8): A(f'v_pk_mul_f32 {v(AC(2)+2*j,2)}, {v(AC(2)+2*j,2)}, {v(RS4,2)} op_sel_hi:[1,0]')
for j in range(8): A(f'v_pk_mul_f32 {v(AC(2)+2*j,2)}, {v(AC(2)+2*j,2)}, {v(AC(2)+2*j,2)}')
for j in range(8): A(f'v_cvt_pk_bf16_f32 v{208+j}, v{AC(2)+2*j}, v{AC(2)+2*j+1}')
h1store(2, 208)
A('s_waitcnt vmcnt(0)')
set_flag('s18', 'v6', 'v7')
stamp('s4_flag')
A('s_branch Ls5')
A.label('Ls4skip')
A('s_barrier')
A('s_barrier')
A.label('Ls5')
NW = 40
GF = lambda s: 48 + 4 * (s % NW)
B5 = lambda s, c: 208 + 8 * (s % 3) + 4 * c
A(f'v_lshrrev_b32 v4, 5, v0\nv_lshlrev_b32 v4, 3, v4\ns_lshl_b32 s13, {sSub}, 7\ns_lshl_b32 s14, {sB}, 6\ns_add_u32 s13, s13, s14')
for q in range(4): A(f'buffer_load_dwordx2 {v(8+2*q,2)}, v4, {SB2}, s13 offen offset:{16*q}')
A(f's_lshl_b32 s13, {sTile}, 4\ns_mul_i32 s14, {sB}, 7\ns_add_u32 s13, s13, s14\nv_add_u32 v5, s13, v0\nv_lshlrev_b32 v5, 7, v5\nv_add_u32 v5, {WS_FL + F4*128}, v5')
A(f's_mul_i32 s16, {sTile}, 86\ns_mul_i32 s13, {sB}, 43\ns_add_u32 s16, s16, s13\ns_lshl_b32 s16, s16, 10\ns_add_u32 s16, s16, {WS_H1}')
tr_lane_addr('v2', 128, 4, 'v4', True, sB)
A(f's_mul_i32 s13, {sB}, 49152\ns_add_u32 s13, s13, {RB}\nv_add_u32 v234, s13, v2\nv_xor_b32 v235, 64, v234')
A(f's_mul_i32 s13, {sB}, 30720\ns_add_u32 s13, s13, {A_W2}\nv_add_u32 v232, s13, v2\nv_xor_b32 v233, 64, v232')
A(f's_lshl_b32 s14, {sA}, 12\ns_add_u32 s13, s13, s14\ns_add_u32 s13, s13, 8192\nv_add_u32 v236, s13, v244')
A(f's_xor_b32 s15, {sB}, 1\ns_mul_i32 s13, s15, 30720\ns_add_u32 s13, s13, s14\ns_add_u32 s13, s13, {A_W2 + 8192}\nv_add_u32 v237, s13, v244')
def w2rd(s):
    for c in range(2):
        if s < 15: a, off = ('v232', 'v233')[c], s * 2048
        elif s < 39: a, off = ('v234', 'v235')[c], (s - 15) * 2048
        else: a, off = ('v232', 'v233')[c], (s - 39) * 2048
        for ii in range(2): trd(B5(s, c) + 2 * ii, a, off + ii * 1024)
w2rd(0); w2rd(1)
poll('v5', 'v6', 8)
stamp('s5_polled')
def gload(s):
    if s % 4 == 0 and s: A('s_add_u32 s16, s16, 4096')
    A(f'buffer_load_dwordx4 {v(GF(s),4)}, v244, {SWS}, s16 offen offset:{(s%4)*1024} sc1')
for s in range(OPT['la5']): gload(s)
for j in range(8):
    A(f'v_lshlrev_b32 v{AK+2*j}, 16, v{8+j}\nv_and_b32 v{AK+2*j+1}, 0xffff0000, v{8+j}')
    A(f'v_lshlrev_b32 v6, 16, v{HRES+j}\nv_and_b32 v7, 0xffff0000, v{HRES+j}')
    A(f'v_add_f32 v{AK+2*j}, v{AK+2*j}, v6\nv_add_f32 v{AK+2*j+1}, v{AK+2*j+1}, v7')
A(f'v_and_b32 v4, 31, v0\nv_lshlrev_b32 v4, 10, v4\nv_lshrrev_b32 v5, 5, v0\nv_lshl_add_u32 v4, v5, 4, v4')
issued = OPT['la5']
def w2rd1(s, c):
    if s < 15: a, off = ('v232', 'v233')[c], s * 2048
    elif s < 39: a, off = ('v234', 'v235')[c], (s - 15) * 2048
    else: a, off = ('v232', 'v233')[c], (s - 39) * 2048
    for ii in range(2): trd(B5(s, c) + 2 * ii, a, off + ii * 1024)
for s in range(43):
    A(f's_waitcnt vmcnt({issued-1-s}) lgkmcnt({4 if s < 42 else 0})')
    if s == 2: A('s_waitcnt lgkmcnt(0)\ns_barrier')
    if s == 36: A('s_barrier')
    mfma(AS, B5(s, 1), GF(s), '0' if s == 0 else None)
    if s + 2 < 43: w2rd1(s + 2, 0)
    mfma(AK, B5(s, 0), GF(s))
    if s + 2 < 43: w2rd1(s + 2, 1)
    if issued < 43: gload(issued); issued += 1
stamp('s5_mfma')
for q in range(4): A(f'ds_write_b128 v236, {v(AS+4*q,4)} offset:{q*1024}')
A('s_waitcnt lgkmcnt(0)\ns_barrier')
for q in range(4): A(f'ds_read_b128 {v(AS+4*q,4)}, v237 offset:{q*1024}')
for q in range(4):
    A(f's_waitcnt lgkmcnt({3-q})')
    for j in range(2): A(f'v_pk_add_f32 {v(AK+4*q+2*j,2)}, {v(AK+4*q+2*j,2)}, {v(AS+4*q+2*j,2)}')
    for j in range(2): A(f'v_cvt_pk_bf16_f32 v{8+2*q+j}, v{AK+4*q+2*j}, v{AK+4*q+2*j+1}')
    if q % 2:
        b = 8 + 2 * q - 2
        A(f'v_permlane32_swap_b32 v{b}, v{b+2}\nv_permlane32_swap_b32 v{b+1}, v{b+3}')
        A(f'buffer_store_dwordx4 {v(b,4)}, v4, {SOUT}, s24 offen offset:{(q//2)*32}' + (' sc1' if OPT['outsc'] == 1 else (' nt' if OPT['outsc'] == 2 else '')))
stamp('end')
if OPT['impure']:
    A(f's_cmp_lg_u32 {sMode}, 0\ns_cbranch_scc1 Lexit')
    OPT['until'] = 150000
if OPT['until']:
    A.label('Lspin')
    A(f's_memtime s[88:89]\ns_waitcnt lgkmcnt(0)\ns_sub_u32 s88, s88, s84\ns_cmp_lt_u32 s88, {OPT["until"]}\ns_cbranch_scc1 Lspin')
A('s_endpgm')

def wb(level):
    if OPT['wbl2'] == 1 and level == 2:
        lx = L(); A(f's_cmp_lg_u32 {sI}, 0\ns_cbranch_scc1 {lx}\nbuffer_wbl2 sc1'); A.label(lx)
    if (OPT['wbl2'] == 2 and level == 2) or OPT['wbl2'] == 3:
        lx = L(); A(f's_cmp_lg_u32 {sJ}, 15\ns_cbranch_scc1 {lx}\ns_cmp_lg_u32 {sI}, 0\ns_cbranch_scc1 {lx}\nbuffer_wbl2 sc1'); A.label(lx)
A.label('Lloader2')
A('s_barrier')
lsk1 = L()
A(f's_cmp_eq_u32 {sM}, 15\ns_cbranch_scc1 {lsk1}')
A(f's_mul_i32 s16, {sI}, {16*2752}\ns_mul_i32 s13, {sM}, 192\ns_add_u32 s16, s16, s13\ns_mul_i32 s18, {sI}, 3072')
for gi in range(3):
    for ph in range(3):
        A(f's_add_u32 s13, s16, {(15+4*gi)*16*2752}\ns_add_u32 m0, s18, {RB + (17+4*gi)*3072 + ph*1024}'); dma(f'v{8+ph}', SW1, 's13')
A(f's_add_u32 s14, {sI}, 29\ns_and_b32 s14, s14, 31\ns_mul_i32 s14, s14, 3072')
for ph in range(3):
    A(f's_add_u32 s13, s16, {27*16*2752}\ns_add_u32 m0, s14, {RB + ph*1024}'); dma(f'v{8+ph}', SW1, 's13')
A(f's_cmp_lg_u32 {sI}, 0\ns_cbranch_scc1 {lsk1}')
for ph in range(3):
    A(f's_add_u32 s13, s16, {31*16*2752}\ns_mov_b32 m0, {RB + 3072 + ph*1024}'); dma(f'v{8+ph}', SW1, 's13')
A.label(lsk1)
A(f's_mul_i32 s13, {sM}, 192\nv_lshlrev_b32 v2, 1, v0\nbuffer_load_ushort v12, v2, {SB1}, s13 offen\nbuffer_load_ushort v13, v2, {SB1}, s13 offen offset:128')
A(f'v_mov_b32 v2, 0\nv_mov_b32 v3, {RA + 3072}\nds_write_b32 v3, v2')
tr_lane_addr('v2', 192, 4, 'v4', False)
A(f's_mul_i32 s13, {sI}, {128*192}\nv_add_u32 v2, s13, v2\nv_mov_b32 v3, 0x3f803f80')
for r in range(16, 22): A(f'v_mov_b32 v{r}, 0')
A('s_waitcnt vmcnt(0) lgkmcnt(0)\ns_barrier')
stamp('ld_c')
for half in range(2):
    for s in range(4):
        for b in range(3):
            for ii in range(2): trd(32 + 12 * s + 4 * b + 2 * ii, 'v2', (4 * half + s) * 3072 + ii * 1536 + b * 64)
    A('s_waitcnt lgkmcnt(0)')
    for s in range(4):
        for j in range(4):
            for b in range(3): A(f'v_dot2c_f32_bf16 v{16+2*b+(j&1)}, v{32+12*s+4*b+j}, v3')
A('v_add_f32 v16, v16, v17\nv_add_f32 v18, v18, v19\nv_add_f32 v20, v20, v21\nv_mov_b32 v21, v20')
half_sum2('v16', 'v18'); half_sum2('v20', 'v21')
A(f's_mul_i32 s13, {sI}, 384\ns_add_u32 s13, s13, {A_PART}\nv_lshlrev_b32 v4, 2, v0\nv_add_u32 v5, s13, v4')
A('ds_write_b32 v5, v16\ns_mov_b32 exec_hi, 0\nds_write_b32 v5, v20 offset:256\ns_mov_b32 exec_hi, -1')
A('s_waitcnt lgkmcnt(0)')
lds_inc(RA + 3072, 'v6', 'v7')
lds_wait(RA + 3072, 4, 'v6', 'v7')
A(f'v_add_u32 v4, {RA}, v4')
for i in range(4): A(f'ds_read_b32 v{16+i}, v4 offset:{i*384}\nds_read_b32 v{20+i}, v4 offset:{i*384+256}')
A('v_lshlrev_b32 v12, 16, v12\nv_lshlrev_b32 v13, 16, v13\ns_waitcnt lgkmcnt(0)')
A('v_add_f32 v16, v16, v17\nv_add_f32 v18, v18, v19\nv_add_f32 v20, v20, v21\nv_add_f32 v22, v22, v23\nv_add_f32 v16, v16, v18\nv_add_f32 v20, v20, v22')
A(f'ds_write_b32 v4, v16 offset:{A_CSF-RA}\nds_write_b32 v4, v12 offset:{A_B1F-RA}\ns_mov_b32 exec_hi, 0')
A(f'ds_write_b32 v4, v20 offset:{A_CSF-RA+256}\nds_write_b32 v4, v13 offset:{A_B1F-RA+256}\ns_mov_b32 exec_hi, -1')
A('s_waitcnt lgkmcnt(0)\ns_barrier')
A(f's_mul_i32 s16, {sB}, {43*16*1024}\ns_lshl_b32 s13, {sA}, 13\ns_add_u32 s16, s16, s13\ns_lshl_b32 s13, {sSub}, 7\ns_add_u32 s16, s16, s13')
def w2loop(n, ldsbase, khstride):
    A(f's_mul_i32 s18, {sB}, {khstride}\ns_lshl_b32 s13, {sA}, 10\ns_add_u32 s18, s18, s13\ns_add_u32 s18, s18, {ldsbase}\ns_mov_b32 s19, {n}')
    lp = L(); A.label(lp)
    A('s_mov_b32 m0, s18'); dma(VWO, SW2, 's16')
    A(f's_add_u32 s16, s16, 16384\ns_add_u32 s18, s18, 2048\ns_sub_u32 s19, s19, 1\ns_cmp_lg_u32 s19, 0\ns_cbranch_scc1 {lp}')
def p2touch(n, start, lbl):
    A(f's_mul_i32 s26, {sA}, {688*1024}\ns_lshl_b32 s13, {sB}, 13\ns_add_u32 s26, s26, s13\ns_and_b32 s13, {sG}, 1\ns_lshl_b32 s13, s13, 14\ns_add_u32 s26, s26, s13')
    A(f's_add_u32 s26, s26, {240*1024 + start}\ns_mov_b32 s19, {n}\nv_lshlrev_b32 v245, 7, v0')
    A.label(lbl)
    A(f'buffer_load_dword v239, v245, {SW2}, s26 offen\ns_add_u32 s26, s26, 32768\ns_sub_u32 s19, s19, 1\ns_cmp_lg_u32 s19, 0\ns_cbranch_scc1 {lbl}')
if OPT['p1pos'] == 0: w2loop(15, A_W2, 30720)
if OPT['pfc']:
    lx = L(); A(f's_cmp_lg_u32 {sM}, 15\ns_cbranch_scc1 {lx}'); p2touch(9 if OPT['pfd'] else 14, 0, L()); A.label(lx)
wb(1)
A('s_barrier')
if OPT['pfd']:
    lx = L(); A(f's_cmp_lg_u32 {sM}, 14\ns_cbranch_scc1 {lx}'); p2touch(5, 9*32768, L()); A.label(lx)
if OPT['p1pos'] == 1: w2loop(15, A_W2, 30720)
A('s_waitcnt vmcnt(0)\ns_barrier')
w2loop(24, RB, 49152)
A('s_waitcnt vmcnt(0)')
stamp('ld_d')
A('s_barrier')
w2loop(4, A_W2, 30720)
wb(2)
A('s_waitcnt vmcnt(0)\ns_barrier')
A('s_barrier')
A.label('Lexit')
A('s_endpgm')
A.label('Lcodeend')

n = A.fix_hazards()
assert check_async(A, frozenset({'v239'})) == 0
hdr = open('cdna_kernels/' + NAME + '.s.ref').read().split('; Override')[0]
out = hdr + f'; @launch grid=(256,1,1) block=(512,1,1) lds=163840\n.amdgcn_target "amdgcn-amd-amdhsa--gfx950"\n.text\n.globl {NAME}_kernel\n.p2align 8\n.type {NAME}_kernel,@function\n{NAME}_kernel:\n'
out += A.text()
out += f'''.fill 64, 4, 0xbf800000
.section .rodata,"a"
.p2align 6
.amdhsa_kernel {NAME}_kernel
  .amdhsa_next_free_vgpr 256
  .amdhsa_next_free_sgpr 102
  .amdhsa_accum_offset 256
  .amdhsa_group_segment_fixed_size 0
  .amdhsa_kernarg_size 88
  .amdhsa_user_sgpr_count 2
  .amdhsa_user_sgpr_kernarg_segment_ptr 1
  .amdhsa_system_sgpr_workgroup_id_x 1
  .amdhsa_float_denorm_mode_32 3
.end_amdhsa_kernel
'''
open(sys.argv[1], 'w').write(out)
print('nops inserted:', n, 'instructions:', len(A.ins))
```

```python
import sys, math, struct
from emit import Asm, check_async
NAME = "sequential_preLN__sliding_block__dense_activation_squared_relu__prompt"
OPT = dict(stamps=0, until=0, fast=1, pf=1, wbl2=0, outsc=0, la3=8, la4=8, la5=10, pfa=2, pfc=1, pfd=1, p1pos=0, nt=0, hold=-1, holdt=40000, impure=0, tlb=1, ctouch=1)
for a in sys.argv[2:]:
    k, v_ = a.split('='); assert k in OPT, k; OPT[k] = int(v_)

WS_KV, WS_O, WS_H, WS_ST, WS_H1, WS_FL = 0x0, 0x400000, 0x600000, 0x800000, 0x900000, 0x1000000
WS_STAMP = 0x2000000
F1, F2, F3, F4 = 0, 64*16, 64*48, 64*64
RB, RA = 0, 98304
SL = 16384
L_STAT, L_CNT, L_PR = 0, 512, 1024
L_Q, L_K, L_V, VT = 4096, 12288, 53248, 4160
L_WQ = 2 * SL
A_PART, A_CSF, A_B1F, A_W2, A_SCR3 = RA, RA + 1536, RA + 2048, RA + 4096, RA + 4096
TIMEOUT = 400000
CSC = 0.25 * math.log2(math.e)
def f2u(x): return hex(struct.unpack('<I', struct.pack('<f', x))[0])

sW, sT, sSub, sG, sM = 's3', 's4', 's5', 's6', 's7'
SX, SWQ, SWO, SW1, SB1, SW2, SB2, SOUT, SWS, SDBG = [f's[{b}:{b+3}]' for b in range(40, 80, 4)]
sA, sB, sI, sMode, sJ = 's80', 's81', 's82', 's83', 's38'
def v(a, n=1): return f'v{a}' if n == 1 else f'v[{a}:{a+n-1}]'

A = Asm()
uid = [0]
def L(p='L'):
    uid[0] += 1; return f'{p}{uid[0]}'
STAMP_NAMES = ['start', 's1_c0', 's1_loop_end', 's1_bs1', 's1_stored', 's1_flag', 'kv_ready', 'att_p1', 'att_end', 'o_flag',
               's3_polled', 's3_mfma', 's3_flag', 's4_polled', 's4_phA', 's4_phB', 's4_flag', 's5_polled', 's5_mfma', 'end',
               'ld_a', 'ld_b', 'ld_c', 'ld_d', 'x0', 'x1', 'x2', 'x3', 'x4', 'x5', 'x6', 'x7']
SID = {n: i for i, n in enumerate(STAMP_NAMES)}
def stamp(name):
    if OPT['hold'] == SID[name]:
        lb = L('Lhold'); A.label(lb)
        A(f's_memtime s[92:93]\ns_waitcnt lgkmcnt(0)\ns_sub_u32 s92, s92, s84\ns_cmp_lt_u32 s92, {OPT["holdt"]}\ns_cbranch_scc1 {lb}')
    if not OPT['stamps']: return
    A(f's_memtime s[98:99]\ns_waitcnt lgkmcnt(0)\nv_mov_b32 v247, s98\nv_mov_b32 v246, s97\ns_mov_b64 s[94:95], exec\ns_mov_b64 exec, 1')
    A(f'buffer_store_dword v247, v246, {SWS}, 0 offen offset:{4*SID[name]}\ns_mov_b64 exec, s[94:95]')

def poll(vaddr, vtmp, nlanes):
    lp, dn = L('Lpoll'), L('Lpd')
    A(f's_mov_b32 exec_lo, {hex((1 << nlanes) - 1)}\ns_mov_b32 exec_hi, 0\ns_mov_b32 s8, 0')
    A.label(lp)
    A(f'buffer_load_dword {vtmp}, {vaddr}, {SWS}, 0 offen sc1\ns_add_u32 s8, s8, 1\ns_waitcnt vmcnt(0)')
    A(f'v_cmp_eq_u32 vcc, 0, {vtmp}\ns_cmp_gt_u32 s8, {TIMEOUT}\ns_cbranch_scc1 {dn}\ns_cbranch_vccnz {lp}')
    A.label(dn)
    A('s_mov_b64 exec, -1')
def lds_wait(off, want, va, vt):
    lp, dn = L('Llw'), L('Llwd')
    A(f'v_mov_b32 {va}, {off}\ns_mov_b32 s8, 0')
    A.label(lp)
    A(f'ds_read_b32 {vt}, {va}\ns_add_u32 s8, s8, 1\ns_waitcnt lgkmcnt(0)\nv_readfirstlane_b32 s9, {vt}')
    A(f's_cmp_gt_u32 s8, {TIMEOUT*4}\ns_cbranch_scc1 {dn}\ns_cmp_lt_u32 s9, {want}\ns_cbranch_scc1 {lp}')
    A.label(dn)
def lds_inc(off, va, vt):
    A(f'v_mov_b32 {va}, {off}\nv_mov_b32 {vt}, 1\ns_mov_b64 exec, 1\nds_add_u32 {va}, {vt}\ns_mov_b64 exec, -1')
def dual(lines, always_slow=False):
    if always_slow or not OPT['fast']:
        for x in lines: A(x + ' sc1')
        return
    ls, ld = L('Lsl'), L('Lsd')
    A(f's_cmp_eq_u32 {sMode}, 0\ns_cbranch_scc1 {ls}')
    for x in lines: A(x + ['', ' nt', ' sc0', ' sc0 nt'][OPT['nt']])
    A(f's_branch {ld}'); A.label(ls)
    for x in lines: A(x + ' sc1')
    A.label(ld)
def set_flag(sidx, vt0, vt1, slow=False):
    A(f's_lshl_b32 s9, {sidx}, 7\ns_add_u32 s9, s9, {WS_FL}\nv_mov_b32 {vt0}, s9\nv_mov_b32 {vt1}, 1\ns_mov_b64 exec, 1')
    dual([f'buffer_store_dword {vt1}, {vt0}, {SWS}, 0 offen'], slow)
    A('s_mov_b64 exec, -1')
def tr_lane_addr(dst, rowstride, hrows, tmp, swz=True, flip=None):
    A(f'v_lshrrev_b32 {dst}, 5, v0\nv_mul_u32_u24 {dst}, {hrows}, {dst}\nv_bfe_u32 {tmp}, v0, 2, 2\nv_add_u32 {dst}, {dst}, {tmp}')
    A(f'v_mul_u32_u24 {dst}, {rowstride}, {dst}')
    if swz:
        A(f'v_bfe_u32 {tmp}, v0, 3, 1')
        if flip: A(f'v_xor_b32 {tmp}, {flip}, {tmp}')
        A(f'v_lshl_add_u32 {dst}, {tmp}, 6, {dst}')
    A(f'v_bfe_u32 {tmp}, v0, 4, 1\nv_lshl_add_u32 {dst}, {tmp}, 5, {dst}')
    A(f'v_and_b32 {tmp}, 3, v0\nv_lshl_add_u32 {dst}, {tmp}, 3, {dst}')
MF = 'v_mfma_f32_32x32x16_bf16'
def mfs(d, a, b, c=None):
    cs = v(d, 16) if c is None else (c if isinstance(c, str) else v(c, 16))
    return f'{MF} {v(d,16)}, {v(a,4)}, {v(b,4)}, {cs}'
def mfma(d, a, b, c=None): A(mfs(d, a, b, c))
def trs(d, addr, off): return f'ds_read_b64_tr_b16 {v(d,2)}, {addr} offset:{off}'
def trd(d, addr, off): A(trs(d, addr, off))
def dma(voff, srd, soff, sc=''): A(f'buffer_load_dwordx4 {voff}, {srd}, {soff} offen{sc} lds')
def half_sum2(a, b): A(f'v_permlane32_swap_b32 {a}, {b}\nv_add_f32 {a}, {a}, {b}')
def att_masks():
    A('v_and_b32 v232, 31, v0\nv_lshrrev_b32 v233, 5, v0\nv_lshlrev_b32 v233, 2, v233\nv_sub_u32 v232, v232, v233')
    A('v_mov_b32 v234, 0xff800000\nv_mov_b32 v235, 0')
    for r in range(16):
        key = (r & 3) + 8 * (r >> 2)
        A(f'v_cmp_le_i32 vcc, {key}, v232\nv_cndmask_b32 v{56+r}, v234, v235, vcc\nv_cndmask_b32 v{72+r}, v235, v234, vcc')
def x_frag_addrs(AX):
    A(f'v_and_b32 v2, 31, v0\nv_bfe_u32 v3, v0, 1, 3\nv_lshrrev_b32 v4, 5, v0\nv_xor_b32 v3, v3, v4')
    A(f's_lshl_b32 s13, {sA}, 12\ns_add_u32 s13, s13, {RA}\nv_lshlrev_b32 v2, 7, v2\nv_add_u32 v2, s13, v2')
    for p in range(4): A(f'v_xor_b32 v4, {2*p}, v3\nv_lshl_add_u32 {AX(p)}, v4, 4, v2')
def wo_voff(dst):
    A(f'v_lshrrev_b32 v2, 3, v0\nv_and_b32 v3, 7, v0\nv_bfe_u32 v4, v0, 4, 1\nv_lshlrev_b32 v4, 2, v4\nv_xor_b32 v4, v4, v3\nv_lshlrev_b32 v4, 4, v4\nv_lshl_add_u32 {dst}, v2, 10, v4')
def pk_norm(t, acc, rs, mul, out, per_reg_rs=False):
    for j in range(8): A(f'v_pk_mul_f32 {v(t+2*j,2)}, {v(t+2*j,2)}, {v(mul,2)} op_sel_hi:[1,0]')
    for j in range(8):
        if per_reg_rs: A(f'v_pk_fma_f32 {v(t+2*j,2)}, {v(acc+2*j,2)}, {v(rs+2*j,2)}, {v(t+2*j,2)} neg_lo:[0,0,1] neg_hi:[0,0,1]')
        else: A(f'v_pk_fma_f32 {v(t+2*j,2)}, {v(acc+2*j,2)}, {v(rs,2)}, {v(t+2*j,2)} op_sel_hi:[1,0,1] neg_lo:[0,0,1] neg_hi:[0,0,1]')
    for j in range(8): A(f'v_cvt_pk_bf16_f32 v{out+j}, v{t+2*j}, v{t+2*j+1}')
def touch(srd, sbase, n, first=0):
    for i in range(first, first + n):
        A(f's_add_u32 s13, {sbase}, {i*8192}\nbuffer_load_dword v239, v245, {srd}, s13 offen')

A(f's_cmp_ge_u32 s2, 256\ns_cbranch_scc1 Lexit')
if OPT['until'] or OPT['hold'] >= 0 or OPT['impure']: A('s_memtime s[84:85]')
A('s_load_dwordx16 s[16:31], s[0:1], 0\ns_load_dwordx4 s[32:35], s[0:1], 64\ns_load_dwordx2 s[36:37], s[0:1], 80')
A(f'v_lshrrev_b32 v1, 6, v0\nv_and_b32 v0, 63, v0\nv_readfirstlane_b32 {sW}, v1')
A(f's_and_b32 s8, s2, 7\ns_lshr_b32 {sJ}, s2, 3\ns_and_b32 {sM}, {sJ}, 15\ns_lshr_b32 s9, {sJ}, 4\ns_lshl_b32 {sG}, s8, 1\ns_add_u32 {sG}, {sG}, s9')
A(f's_lshr_b32 s9, {sM}, 3\ns_lshl_b32 {sT}, {sG}, 1\ns_add_u32 {sT}, {sT}, s9\ns_and_b32 {sSub}, {sM}, 7')
A(f's_and_b32 {sA}, {sW}, 1\ns_bfe_u32 {sB}, {sW}, 0x10001\ns_and_b32 {sI}, {sW}, 3\ns_mov_b32 {sMode}, 0')
A('s_waitcnt lgkmcnt(0)')
def srd(b, p, sz): A(f's_mov_b32 s{b}, s{p}\ns_and_b32 s{b+1}, s{p+1}, 0xffff\ns_mov_b32 s{b+2}, {sz}\ns_mov_b32 s{b+3}, 0x20000')
srd(40, 16, 2097152); srd(44, 18, 1572864)
A(f's_cmp_ge_u32 {sW}, 4\ns_cbranch_scc1 Lloader')
def other_srds():
    for (b, p, sz) in ((72, 36, 268435456), (76, 34, 256), (48, 20, 524288), (52, 24, 1409024), (56, 26, 2752), (60, 28, 1409024),
                       (64, 30, 1024), (68, 32, 2097152)): srd(b, p, sz)
    if OPT['stamps']:
        A(f's_lshl_b32 s97, s2, 3\ns_add_u32 s97, s97, {sW}\ns_lshl_b32 s97, s97, 7\ns_add_u32 s97, s97, {WS_STAMP}')
other_srds()
stamp('start')
aK_, aV = 16, 32
XF = lambda p: 64 + 4 * p
WF = lambda p, b: 80 + 8 * p + 4 * b
CK, CV_ = 128, 130
ONES = 'v138'
AX = lambda p: f'v{140+p}'
AW = 'v144'
A(f's_getreg_b32 s39, hwreg(HW_REG_XCC_ID)\ns_and_b32 s39, s39, 15\ns_or_b32 s39, s39, 0x80')
lpf, lgo = L(), L()
A(f's_cmp_lg_u32 {sW}, 0\ns_cbranch_scc1 {lpf}')
A(f's_mul_i32 s8, s2, 20\nv_add_u32 v2, s8, v0\nv_lshlrev_b32 v2, 7, v2\nv_add_u32 v2, {WS_FL}, v2\nv_mov_b32 v3, 0')
A(f's_mov_b32 exec_lo, 0xfffff\ns_mov_b32 exec_hi, 0\nbuffer_store_dword v3, v2, {SWS}, 0 offen sc1')
A(f'v_lshlrev_b32 v4, 2, v0\nds_write_b32 v4, v3 offset:{L_CNT}')
A(f's_lshl_b32 s8, {sG}, 4\ns_and_b32 s9, {sM}, 12\ns_add_u32 s8, s8, s9\ns_and_b32 s9, {sM}, 3\ns_lshl_b32 s9, s9, 3\ns_lshl_b32 s9, s39, s9')
A(f'v_mov_b32 v2, s8\nv_mov_b32 v3, s9\ns_mov_b64 exec, 1\ns_waitcnt vmcnt(0) lgkmcnt(0)')
A(f'buffer_atomic_or v3, v2, {SDBG}, 0 offen sc1\ns_mov_b64 exec, -1\ns_branch {lgo}')
A.label(lpf)
ltl = L()
A(f's_cmp_eq_u32 {sW}, 3\ns_cbranch_scc1 {ltl}')
A('s_getpc_b64 s[10:11]')
A.label('Lpc')
A(f's_lshl_b32 s9, {sW}, 4\ns_add_u32 s8, {sJ}, s9\ns_and_b32 s8, s8, 31\ns_lshl_b32 s8, s8, 10')
A(f's_min_u32 s8, s8, Lcodeend-Lpc-1024\ns_add_u32 s10, s10, s8\ns_addc_u32 s11, s11, 0\ns_and_b32 s10, s10, -16\nv_lshlrev_b32 v2, 4, v0')
A(f'global_load_dwordx4 v[200:203], v2, s[10:11]\ns_branch {lgo}')
A.label(ltl)
if OPT['tlb']:
    A(f's_lshl_b32 s9, {sT}, 16')
    A('s_load_dword s90, s[32:33], s9')
    for p in (20, 24, 26, 28, 30): A(f's_load_dword s90, s[{p}:{p+1}], 0')
    for pg in range(8): A(f's_mov_b32 s9, {pg*0x200000 + 0x100000}\ns_load_dword s90, s[36:37], s9')
A.label(lgo)
for r in list(range(16, 48)) + list(range(WF(2, 0), WF(4, 0))) + list(range(128, 132)): A(f'v_mov_b32 v{r}, 0')
A(f'v_mov_b32 {ONES}, 0x3f803f80')
x_frag_addrs(AX)
tr_lane_addr(AW, 128, 8, 'v2', True, sB)
A(f'v_add_u32 {AW}, {4*SL}, {AW}\ns_mov_b32 s15, 0\nv_lshlrev_b32 v146, 2, v0')
def p1_reads(p):
    out = [f'ds_read_b128 {v(XF(p),4)}, {AX(p)}']
    for b in range(2):
        for i in range(2): out.append(trs(WF(p, b) + 2 * i, AW, p * 2048 + i * 512 + b * 8192))
    return out
def p1_mf(p): return [mfs(aK_, WF(p, 0), XF(p)), mfs(aV, XF(p), WF(p, 1))]
def p1_dots(ps):
    for p in ps:
        for j in range(4):
            A(f'v_dot2c_f32_bf16 v{CK+(j&1)}, v{WF(p,0)+j}, {ONES}\nv_dot2c_f32_bf16 v{CV_+(j&1)}, v{WF(p,1)+j}, {ONES}')
A.label('Ls1')
A('s_barrier')
for x in p1_reads(0) + p1_reads(1): A(x)
ldb = L()
A(f's_cmp_lg_u32 s15, 4\ns_cbranch_scc1 {ldb}\nbuffer_load_dword v147, v146, {SDBG}, 0 offen sc1')
A.label(ldb)
p1_dots((2, 3))
A('s_waitcnt lgkmcnt(0)')
rd = p1_reads(2) + p1_reads(3); mm = p1_mf(0) + p1_mf(1); k = 0
for i, m in enumerate(mm):
    A(m); n = (3, 3, 2, 2)[i]
    for x in rd[k:k+n]: A(x)
    k += n
A(f's_mov_b32 s13, {SL}\ns_cmp_eq_u32 s15, 1\ns_cselect_b32 s13, {-4*SL}, s13\ns_cmp_eq_u32 s15, 6\ns_cselect_b32 s13, {-4*SL}, s13\ns_add_u32 s15, s15, 1')
A('s_waitcnt lgkmcnt(5)')
m2 = p1_mf(2)
A(m2[0]); A(f'v_add_u32 {AX(0)}, 8192, {AX(0)}\nv_add_u32 {AX(1)}, 8192, {AX(1)}\nv_add_u32 {AX(2)}, 8192, {AX(2)}')
A(m2[1]); A(f'v_add_u32 {AX(3)}, 8192, {AX(3)}\nv_add_u32 {AW}, s13, {AW}')
A('s_waitcnt lgkmcnt(0)')
for m in p1_mf(3): A(m)
p1_dots((0, 1))
A('s_cmp_lt_u32 s15, 8\ns_cbranch_scc1 Ls1')
stamp('s1_loop_end')
p1_dots((2, 3))
CSV = 152
A(f'v_add_f32 v{CK}, v{CK}, v{CK+1}\nv_add_f32 v{CV_}, v{CV_}, v{CV_+1}')
half_sum2(f'v{CK}', f'v{CV_}')
A(f's_lshl_b32 s13, {sW}, 8\ns_add_u32 s13, s13, {L_PR}\nv_add_u32 v6, s13, v146\nds_write_b32 v6, v{CK}')
A(f'v_lshrrev_b32 v7, 5, v0\nv_lshlrev_b32 v7, 4, v7\nv_add_u32 v8, s13, v7\nv_and_b32 v9, 31, v0\nv_lshlrev_b32 v9, 2, v9\nv_add_u32 v10, s13, v9')
tK, tRS, tMRS = 64, 80, 96
A('s_waitcnt lgkmcnt(0)')
for q in range(4): A(f'ds_read_b128 {v(tK+4*q,4)}, v8 offset:{32*q}')
A(f'ds_read_b32 v{CSV}, v10 offset:128')
lchk, lok = L(), L()
A('s_mov_b32 s8, 0')
A.label(lchk)
A(f's_waitcnt vmcnt(0)\nv_and_b32 v2, 0x80808080, v147\nv_cmp_ne_u32 vcc, 0x80808080, v2\ns_add_u32 s8, s8, 1')
A(f's_cbranch_vccz {lok}\ns_cmp_gt_u32 s8, {TIMEOUT}\ns_cbranch_scc1 {lok}')
A(f'buffer_load_dword v147, v146, {SDBG}, 0 offen sc1\ns_branch {lchk}')
A.label(lok)
A(f's_mul_i32 s9, s39, 0x01010101\nv_cmp_eq_u32 vcc, s9, v147\ns_lshl_b32 s9, {sG}, 2\ns_lshr_b64 s[10:11], vcc, s9\ns_and_b32 s10, s10, 15')
A(f's_cmp_eq_u32 s10, 15\ns_cselect_b32 {sMode}, 1, 0\nv_mov_b32 v2, {L_CNT+8}\nv_mov_b32 v3, {sMode}\nds_write_b32 v2, v3')
A(f's_lshl_b32 s13, {sA}, 7\nv_add_u32 v7, s13, v7\nv_add_u32 v9, s13, v9')
A(f's_lshl_b32 s13, {sT}, 1\ns_add_u32 s13, s13, {sA}\ns_lshl_b32 s16, s13, 3\ns_add_u32 s16, s16, {sSub}\ns_lshl_b32 s16, s16, 13')
A(f's_lshl_b32 s14, {sB}, 11\ns_add_u32 s16, s16, s14\ns_add_u32 s17, s16, 4096')
A(f's_lshl_b32 s18, s13, 4\ns_lshl_b32 s14, {sSub}, 1\ns_add_u32 s18, s18, s14\ns_add_u32 s18, s18, {sB}\nv_lshlrev_b32 v14, 4, v0')
A('s_waitcnt lgkmcnt(0)\ns_barrier')
stamp('s1_bs1')
RS, MRS = 148, 150
A(f'ds_read_b32 v{RS}, v9 offset:{L_STAT}\nds_read_b32 v{MRS}, v9 offset:{L_STAT+256}')
for q in range(4): A(f'ds_read_b128 {v(tMRS+4*q,4)}, v7 offset:{L_STAT+256+32*q}')
for q in range(4): A(f'ds_read_b128 {v(tRS+4*q,4)}, v7 offset:{L_STAT+32*q}')
KF, VF = 156, 164
A('s_waitcnt lgkmcnt(8)')
pk_norm(tK, aK_, RS, MRS, KF)
A(f'buffer_store_dwordx4 {v(KF,4)}, v14, {SWS}, s16 offen sc1\nbuffer_store_dwordx4 {v(KF+4,4)}, v14, {SWS}, s16 offen offset:1024 sc1')
A('s_waitcnt lgkmcnt(0)')
pk_norm(tMRS, aV, tRS, CSV, VF, True)
A(f'buffer_store_dwordx4 {v(VF,4)}, v14, {SWS}, s17 offen sc1\nbuffer_store_dwordx4 {v(VF+4,4)}, v14, {SWS}, s17 offen offset:1024 sc1')
stamp('s1_stored')
att_masks()
A(f's_lshl_b32 s13, {sA}, 12\ns_lshl_b32 s14, {sB}, 11\ns_add_u32 s13, s13, s14\ns_add_u32 s13, s13, {L_K + 8*4096}\nv_add_u32 v15, s13, v14')
A(f's_mul_i32 s13, {sA}, {VT}\ns_mul_i32 s14, {sB}, 2080\ns_add_u32 s13, s13, s14\ns_add_u32 s13, s13, {L_V + 8*VT}\nv_add_u32 v146, s13, v14')
A(f'v_lshrrev_b32 v8, 2, v0\nv_mul_u32_u24 v8, {VT}, v8\nv_and_b32 v9, 3, v0\nv_mul_u32_u24 v9, 1040, v9\nv_add_u32 v8, v8, v9')
for r in range(10, 14): A(f'v_mov_b32 v{r}, 0x3f803f80')
A('s_waitcnt vmcnt(0)')
set_flag('s18', 'v2', 'v3', slow=True)
stamp('s1_flag')
sTile = 's23'
HRES = 248
A(f's_lshl_b32 {sTile}, {sT}, 1\ns_add_u32 {sTile}, {sTile}, {sA}')
A(f'v_and_b32 v4, 31, v0\nv_lshlrev_b32 v4, 10, v4\nv_lshrrev_b32 v5, 5, v0\nv_lshl_add_u32 v4, v5, 3, v4')
A(f's_lshl_b32 s24, {sTile}, 15\ns_lshl_b32 s13, {sSub}, 7\ns_add_u32 s24, s24, s13\ns_lshl_b32 s13, {sB}, 6\ns_add_u32 s24, s24, s13')
for q in range(4): A(f'buffer_load_dwordx2 {v(HRES+2*q,2)}, v4, {SX}, s24 offen offset:{16*q}')
lnh, lnh2 = L(), L()
A(f's_add_u32 s19, {sT}, {sI}\ns_cmp_lt_u32 s19, 4\ns_cbranch_scc1 {lnh}')
A(f's_sub_u32 s13, s19, 4\ns_lshl_b32 s13, s13, 1')
A(f's_lshl_b32 s14, s13, 4\ns_lshl_b32 s15, {sSub}, 1\ns_add_u32 s14, s14, s15')
A(f'v_lshrrev_b32 v2, 1, v0\nv_lshlrev_b32 v2, 4, v2\nv_and_b32 v3, 1, v0\nv_add3_u32 v2, v2, v3, s14\nv_lshlrev_b32 v2, 7, v2\nv_add_u32 v2, {WS_FL + F1*128}, v2')
A(f's_lshl_b32 s16, s13, 3\ns_add_u32 s16, s16, {sSub}\ns_lshl_b32 s16, s16, 13')
poll('v2', 'v3', 4)
A.label(lnh)
stamp('x0')
lds_wait(L_CNT + 4, 4, 'v2', 'v3')
stamp('x1')
A(f's_cmp_lt_u32 s19, 4\ns_cbranch_scc1 {lnh2}')
A(f's_lshl_b32 s17, {sI}, 13\ns_add_u32 s17, s17, {L_K}\ns_mul_i32 s18, {sI}, {2*VT}\ns_add_u32 s18, s18, {L_V}')
for t in range(2):
    for i in range(4):
        A(f's_add_u32 s13, s16, {t*65536 + i*1024}\ns_add_u32 m0, s17, {t*4096 + i*1024}'); dma('v14', SWS, 's13', ' sc1')
for t in range(2):
    for i in range(4):
        A(f's_add_u32 s13, s16, {t*65536 + 4096 + i*1024}\ns_add_u32 m0, s18, {t*VT + i*1040}'); dma('v14', SWS, 's13', ' sc1')
A.label(lnh2)
A(f'ds_write_b128 v15, {v(KF,4)}\nds_write_b128 v15, {v(KF+4,4)} offset:1024\nds_write_b128 v146, {v(VF,4)}\nds_write_b128 v146, {v(VF+4,4)} offset:1040')
A(f's_mov_b32 exec_hi, 0xff\nds_write_b128 v8, v[10:13] offset:{L_V + 1024}\ns_mov_b32 exec_hi, -1')
A('s_waitcnt vmcnt(0) lgkmcnt(0)\ns_branch Latt')

A.label('Lloader')
VX0, VX1, VWQ = 'v240', 'v241', 'v242'
A(f'v_lshrrev_b32 v2, 3, v0\nv_and_b32 v3, 7, v0\nv_lshrrev_b32 v4, 4, v0\nv_xor_b32 v4, v4, v3')
A(f's_lshl_b32 s13, {sI}, 14\nv_lshlrev_b32 v5, 10, v2\nv_add_u32 v5, s13, v5\nv_lshl_add_u32 {VX0}, v4, 4, v5')
A(f'v_xor_b32 v4, 4, v4\nv_add_u32 v5, 8192, v5\nv_lshl_add_u32 {VX1}, v4, 4, v5')
A(f'v_bfe_u32 v4, v0, 4, 1\nv_lshlrev_b32 v4, 2, v4\nv_xor_b32 v4, v4, v3\nv_lshlrev_b32 v4, 4, v4')
A(f's_mul_i32 s13, {sI}, {16*3072}\nv_mul_u32_u24 v5, 3072, v2\nv_add3_u32 {VWQ}, v5, v4, s13')
sXo, sWo, sLo = 's86', 's87', 's88'
A(f's_lshl_b32 {sXo}, {sT}, 16\ns_lshl_b32 {sWo}, {sSub}, 7\ns_lshl_b32 {sLo}, {sI}, 11')
phys = lambda i: (1 + (i + 3) % 5) * SL
def issue_kv(c):
    A(f's_add_u32 s13, {sXo}, {c*128}\ns_add_u32 m0, {sLo}, {RA + c*8192}'); dma(VX0, SX, 's13')
    A(f's_add_u32 m0, {sLo}, {RA + c*8192 + 1024}'); dma(VX1, SX, 's13')
    for b in range(2):
        for e in range(2):
            A(f's_add_u32 s13, {sWo}, {c*64*3072 + (b+1)*1024 + e*24576}\ns_add_u32 m0, {sLo}, {phys(c) + b*8192 + e*1024}'); dma(VWQ, SWQ, 's13')
def issue_q(it):
    for hh in range(2):
        for e in range(2):
            c = (it - 8) * 2 + hh
            A(f's_add_u32 s13, {sWo}, {c*64*3072 + e*24576}\ns_add_u32 m0, {sLo}, {L_WQ + c*8192 + e*1024}'); dma(VWQ, SWQ, 's13')
issue_kv(0); issue_kv(1)
other_srds()
issue_kv(2)
A(f'v_lshrrev_b32 v2, 2, v0\nv_lshlrev_b32 v2, 7, v2\nv_and_b32 v3, 3, v0\nv_lshl_add_u32 v2, v3, 5, v2\ns_add_u32 s13, {sLo}, {RA}\nv_add_u32 v148, s13, v2')
for r in range(150, 154): A(f'v_mov_b32 v{r}, 0')
def xstats(c):
    A(f'ds_read_b128 v[8:11], v148 offset:{c*8192}\nds_read_b128 v[12:15], v148 offset:{c*8192+16}\ns_waitcnt lgkmcnt(1)')
    for j in range(8):
        if j == 4: A('s_waitcnt lgkmcnt(0)')
        A(f'v_lshlrev_b32 v2, 16, v{8+j}\nv_and_b32 v3, 0xffff0000, v{8+j}')
        A(f'v_add_f32 v150, v150, v2\nv_add_f32 v151, v151, v3\nv_fmac_f32 v152, v2, v2\nv_fmac_f32 v153, v3, v3')
later = {0: 12, 1: 12, 2: 12, 3: 12, 4: 12, 5: 12, 6: 10, 7: 8}
for c in range(8):
    A(f's_waitcnt vmcnt({later[c]})\ns_barrier')
    if c == 0: stamp('s1_c0')
    if c + 3 <= 7: issue_kv(c + 3)
    elif c == 5: issue_q(8)
    elif c == 6: issue_q(9)
    else: issue_q(10); issue_q(11)
    xstats(c)
A('v_add_f32 v150, v150, v151\nv_add_f32 v152, v152, v153')
for qp in ('[1,0,3,2]', '[2,3,0,1]'):
    A(f'v_add_f32_dpp v150, v150, v150 quad_perm:{qp} row_mask:0xf bank_mask:0xf\nv_add_f32_dpp v152, v152, v152 quad_perm:{qp} row_mask:0xf bank_mask:0xf')
A(f'v_mul_f32 v150, {f2u(1/512)}, v150\nv_mul_f32 v152, {f2u(1/512)}, v152\nv_fma_f32 v152, -v150, v150, v152\nv_max_f32 v152, 0, v152')
A(f'v_add_f32 v152, {f2u(1e-5)}, v152\nv_rsq_f32 v152, v152\nv_and_b32 v3, 3, v0\nv_cmp_eq_u32 vcc, 0, v3\nv_mul_f32 v150, v150, v152')
A(f'v_cndmask_b32 v150, v150, v152, vcc\nv_lshrrev_b32 v2, 2, v0\nv_lshlrev_b32 v2, 2, v2\nv_lshl_add_u32 v2, v3, 8, v2\ns_lshl_b32 s13, {sI}, 6\nv_add_u32 v2, s13, v2')
A(f's_mov_b32 exec_lo, 0x33333333\ns_mov_b32 exec_hi, 0x33333333\nds_write_b32 v2, v150 offset:{L_STAT}\ns_mov_b64 exec, -1')
stamp('ld_a')
A('s_waitcnt lgkmcnt(0)\ns_barrier')
aQ = 16
QW = lambda p: 80 + 4 * p
x_frag_addrs(AX)
tr_lane_addr(AW, 128, 8, 'v2', True, sB)
A(f'v_add_u32 {AW}, {L_WQ}, {AW}\nv_mov_b32 {ONES}, 0x3f803f80\nv_mov_b32 v128, 0\nv_mov_b32 v129, 0')
for r in range(16, 32): A(f'v_mov_b32 v{r}, 0')
A(f'v_mov_b32 v2, {L_CNT+8}\nds_read_b32 v3, v2\nv_and_b32 v9, 31, v0\nv_lshlrev_b32 v9, 2, v9\ns_lshl_b32 s13, {sA}, 7\nv_add_u32 v9, s13, v9')
A(f'ds_read_b32 v{RS}, v9 offset:{L_STAT}\nds_read_b32 v{MRS}, v9 offset:{L_STAT+256}\ns_waitcnt lgkmcnt(0)\nv_readfirstlane_b32 {sMode}, v3')
A(f'v_mul_f32 v{RS}, {f2u(CSC)}, v{RS}\nv_mul_f32 v{MRS}, {f2u(CSC)}, v{MRS}')
A('s_waitcnt vmcnt(0)')
lds_inc(L_CNT, 'v2', 'v3')
lds_wait(L_CNT, 4, 'v2', 'v3')
stamp('ld_b')
if OPT['pfa']:
    lx, ly = L(), L()
    A(f'v_lshlrev_b32 v245, 7, v0\ns_cmp_ge_u32 {sI}, 2\ns_cbranch_scc1 {lx}\ns_lshl_b32 s26, {sJ}, 14\ns_lshl_b32 s13, {sI}, 13\ns_add_u32 s26, s26, s13')
    touch(SWO, 's26', 1); A(f's_branch {ly}'); A.label(lx)
    if OPT['pfa'] == 2:
        A(f's_mul_i32 s26, {sJ}, 7680\ns_mul_i32 s13, {sA}, {688*1024}\ns_add_u32 s26, s26, s13')
        touch(SW2, 's26', 1)
    A.label(ly)
def q_reads(g, bank):
    out = []
    for p in range(4):
        out.append(f'ds_read_b128 {v(XF(p)+bank*32,4)}, {AX(p)} offset:{g*8192}')
        for i in range(2): out.append(trs(QW(p) + bank * 32 + 2 * i, AW, g * 8192 + p * 2048 + i * 512))
    return out
for x in q_reads(0, 0): A(x)
for g in range(8):
    bk = g & 1
    A('s_waitcnt lgkmcnt(0)')
    nx = q_reads(g + 1, 1 - bk) if g < 7 else []
    for p in range(4):
        mfma(aQ, QW(p) + bk * 32, XF(p) + bk * 32)
        for x in nx[3*p:3*p+3]: A(x)
    if g == 7: lds_inc(L_CNT + 4, 'v2', 'v3')
    for p in range(4):
        for j in range(4): A(f'v_dot2c_f32_bf16 v{128+(j&1)}, v{QW(p)+bk*32+j}, {ONES}')
A('v_add_f32 v128, v128, v129\nv_mov_b32 v129, v128')
half_sum2('v128', 'v129')
A(f's_lshl_b32 s13, {sW}, 8\ns_add_u32 s13, s13, {L_PR}\nv_lshlrev_b32 v6, 2, v0\nv_add_u32 v6, s13, v6\nds_write_b32 v6, v128')
A(f'v_lshrrev_b32 v7, 5, v0\nv_lshlrev_b32 v7, 4, v7\nv_add_u32 v7, s13, v7\ns_waitcnt lgkmcnt(0)')
for q in range(4): A(f'ds_read_b128 {v(64+4*q,4)}, v7 offset:{32*q}')
A(f's_lshl_b32 s13, {sA}, 12\ns_lshl_b32 s14, {sB}, 11\ns_add_u32 s13, s13, s14\ns_add_u32 s13, s13, {L_Q}\nv_lshlrev_b32 v14, 4, v0\nv_add_u32 v14, s13, v14')
A('s_waitcnt lgkmcnt(0)')
pk_norm(64, aQ, RS, MRS, 156)
A(f'ds_write_b128 v14, v[156:159]\nds_write_b128 v14, v[160:163] offset:1024')
att_masks()
stamp('x2')
A('s_waitcnt lgkmcnt(0)')

A.label('Latt')
KFa = lambda t: 16 + 4 * t
QFa, CL, CF = 52, 56, 72
S1 = lambda t: 88 + 16 * t
sTau = 's20'
VWO = 'v243'
wo_voff(VWO)
A(f's_lshr_b32 s13, {sW}, 2\ns_lshl_b32 s21, {sT}, 1\ns_add_u32 s21, s21, s13')
A(f's_sub_u32 {sTau}, 8, s21\ns_max_i32 {sTau}, {sTau}, 0')
A(f's_lshl_b32 s15, s13, 12\ns_lshl_b32 s16, {sI}, 10\ns_add_u32 s16, s16, s15\ns_add_u32 s16, s16, {L_K}')
A(f'v_lshlrev_b32 v232, 4, v0\nv_add_u32 v233, s16, v232')
A(f's_lshl_b32 s16, {sW}, 10\ns_add_u32 s16, s16, {L_Q}\nv_add_u32 v235, s16, v232')
A(f's_mul_i32 s15, s13, {VT}\ns_mul_i32 s16, {sB}, 2080\ns_add_u32 s16, s16, s15\ns_add_u32 s16, s16, {L_V}')
A(f's_lshl_b32 s17, {sA}, 8\nv_or_b32 v236, s17, v232\nv_mov_b32 v237, 1024\nv_and_b32 v238, 16, v0\nv_cmp_eq_u32 vcc, 0, v238\nv_cndmask_b32 v236, v237, v236, vcc')
A(f'v_add_u32 v236, s16, v236')
A(f's_lshl_b32 s22, s21, 5\ns_lshl_b32 s13, {sSub}, 2\ns_add_u32 s22, s22, s13\ns_add_u32 s22, s22, {sI}')
A(f's_lshl_b32 s27, {sI}, 17\ns_lshl_b32 s13, {sSub}, 7\ns_add_u32 s27, s27, s13\ns_lshl_b32 s28, {sI}, 14\ns_add_u32 s28, s28, {RA}')
for ph in range(3):
    A(f'v_add_u32 v2, {64*ph}, v0\nv_mul_u32_u24 v3, 171, v2\nv_lshrrev_b32 v3, 11, v3\nv_mul_u32_u24 v4, 12, v3\nv_sub_u32 v4, v2, v4')
    A(f'v_mul_u32_u24 v3, 2752, v3\nv_lshl_add_u32 v{8+ph}, v4, 4, v3')
A(f'v_lshlrev_b32 v245, 7, v0')
A('s_barrier')
stamp('kv_ready')
A(f'ds_read_b128 {v(QFa,4)}, v235')
for t in range(8, -1, -1): A(f'ds_read_b128 {v(KFa(t),4)}, v233 offset:{t*4096}')
def wo_dma(e): A(f's_add_u32 s13, s27, {e*8192}\ns_add_u32 m0, s28, {e*1024}'); dma(VWO, SWO, 's13')
def smf(t, dst, cmid):
    c = CL if t == 8 else (CF if t == 0 else cmid)
    mfma(dst, KFa(t), QFa, c)
M0_, M1_ = 'v238', 'v237'
A(f'v_mov_b32 {M0_}, 0xff800000\nv_mov_b32 {M1_}, 0xff800000')
def maxgrp(t):
    sk = L()
    if t < 8: A(f's_cmp_gt_u32 {sTau}, {t}\ns_cbranch_scc1 {sk}')
    for j in range(8):
        m = M0_ if j % 2 == 0 else M1_
        A(f'v_max3_f32 {m}, v{S1(t)+2*j}, v{S1(t)+2*j+1}, {m}')
    if t < 8: A.label(sk)
order = list(range(8, -1, -1))
for i, t in enumerate(order):
    A(f's_waitcnt lgkmcnt({8-i})')
    smf(t, S1(t), '0')
    if i < 8:
        lx = L(); A(f's_cmp_ge_u32 {sW}, 4\ns_cbranch_scc1 {lx}'); wo_dma(2 * i); wo_dma(2 * i + 1); A.label(lx)
    if i == 8: lds_inc(L_CNT + 12, 'v2', 'v3')
    if i >= 2: maxgrp(order[i-2])
VB = lambda t: 184 + 8 * (t % 3)
def vread(t): A(f'ds_read_b128 {v(VB(t),4)}, v236 offset:{t*VT}\nds_read_b128 {v(VB(t)+4,4)}, v236 offset:{t*VT+1040}')
maxgrp(1); maxgrp(0)
A(f'v_max_f32 {M0_}, {M0_}, {M1_}\nv_mov_b32 {M1_}, {M0_}\nv_permlane32_swap_b32 {M0_}, {M1_}\nv_max_f32 {M0_}, {M0_}, {M1_}')
stamp('att_p1')
lnd, lnw = L(), L()
A(f's_cmp_ge_u32 {sW}, 4\ns_cbranch_scc1 {lnd}')
A(f's_cmp_eq_u32 {sM}, 15\ns_cbranch_scc1 {lnw}')
lds_wait(L_CNT + 12, 8, 'v2', 'v3')
A(f's_mul_i32 s16, {sI}, {16*2752}\ns_mul_i32 s13, {sM}, 192\ns_add_u32 s16, s16, s13\ns_mul_i32 s18, {sI}, 3072\ns_add_u32 s18, s18, {RB + 6144}')
for gi in range(4):
    if gi == 3: A(f's_cmp_eq_u32 {sI}, 3\ns_cbranch_scc1 {lnw}')
    for ph in range(3):
        A(f's_add_u32 s13, s16, {gi*64*2752}\ns_add_u32 m0, s18, {gi*12288 + ph*1024}'); dma(f'v{8+ph}', SW1, 's13')
A.label(lnw)
A(f's_cmp_eq_u32 {sI}, 3\ns_cbranch_scc1 {lnd}\ns_mul_i32 s26, {sJ}, 23392\ns_lshl_b32 s13, {sI}, 13\ns_add_u32 s26, s26, s13\ns_add_u32 s26, s26, 660480')
touch(SW1, 's26', 1)
A.label(lnd)
NM, OA = 136, 152
SB_ = lambda t: 88 + 16 * (t % 3)
PB = lambda t: 168 + 8 * (t % 2)
for r in range(16): A(f'v_sub_f32 v{CL+r}, v{CL+r}, {M0_}')
smf(8, SB_(8), NM)
for r in range(16): A(f'v_sub_f32 v{NM+r}, 0, {M0_}')
vread(8); vread(7)
smf(7, SB_(7), NM)
for r in range(16): A(f'v_sub_f32 v{CF+r}, v{CF+r}, {M0_}')
def pv(t, a, first): mfma(OA, VB(t) + 4 * a, PB(t) + 4 * a, '0' if first else None)
tails = {}
for t in order:
    if t < 8:
        tails[t] = L('Ltail')
        A(f's_cmp_gt_u32 {sTau}, {t}\ns_cbranch_scc1 {tails[t]}')
    ex = [f'v_exp_f32 v{SB_(t)+r}, v{SB_(t)+r}' for r in range(16)]
    cv = [f'v_cvt_pk_bf16_f32 v{PB(t)+j}, v{SB_(t)+2*j}, v{SB_(t)+2*j+1}' for j in range(8)]
    seq = ex[0:4] + ['PV0'] + ex[4:6] + cv[0:2] + ex[6:8] + ['PV1'] + ex[8:10] + cv[2:4] + ex[10:12] + ['SM'] + ex[12:16] + cv[4:8]
    for x in seq:
        if x == 'PV0':
            if t < 8: A('s_waitcnt lgkmcnt(2)'); pv(t + 1, 0, t + 1 == 8)
        elif x == 'PV1':
            if t < 8: pv(t + 1, 1, False)
            if t < 8 and t - 1 >= 0: vread(t - 1)
        elif x == 'SM':
            if t - 2 >= 0: smf(t - 2, SB_(t - 2), NM)
        else: A(x)
ldone = L('Lattdone')
A('s_waitcnt lgkmcnt(0)')
pv(0, 0, False); pv(0, 1, False)
for t in range(7, -1, -1):
    A(f's_branch {ldone}')
    A.label(tails[t])
    A('s_waitcnt lgkmcnt(0)')
    pv(t + 1, 0, t + 1 == 8); pv(t + 1, 1, False)
A.label(ldone)
A(f's_lshl_b32 s13, s22, 10\ns_add_u32 s13, s13, {WS_O}\ns_add_u32 s22, s22, {F2}')
A(f'v_rcp_f32 v238, v{OA+8}')
for j in range(4): A(f'v_pk_mul_f32 {v(OA+2*j,2)}, {v(OA+2*j,2)}, v[238:239] op_sel_hi:[1,0]')
for j in range(4): A(f'v_cvt_pk_bf16_f32 v{168+j}, v{OA+2*j}, v{OA+2*j+1}')
dual([f'buffer_store_dwordx4 v[168:171], v232, {SWS}, s13 offen'])
A('s_waitcnt vmcnt(0)')
set_flag('s22', 'v6', 'v7')
stamp('att_end')
A(f's_cmp_ge_u32 {sW}, 4\ns_cbranch_scc1 Lloader2')
lds_inc(L_CNT + 16, 'v2', 'v3')
lds_wait(L_CNT + 16, 4, 'v2', 'v3')

A.label('Ls3')
AK, AS = 16, 32
OF = lambda i: 48 + 4 * i
WOF = lambda i, c: 112 + 8 * i + 4 * c
tr_lane_addr('v2', 128, 4, 'v4', True, sB)
A(f's_lshl_b32 s13, {sB}, 15\ns_add_u32 s13, s13, {RA}\nv_add_u32 v2, s13, v2\nv_xor_b32 v3, 64, v2')
for i in range(16):
    for c in range(2):
        for ii in range(2): trd(WOF(i, c) + 2 * ii, 'v2' if c == 0 else 'v3', i * 2048 + ii * 1024)
A(f's_lshl_b32 s13, {sTile}, 5\ns_lshl_b32 s14, {sB}, 4\ns_add_u32 s13, s13, s14\nv_add_u32 v5, s13, v0\nv_lshlrev_b32 v5, 7, v5\nv_add_u32 v5, {WS_FL + F2*128}, v5')
A(f's_lshl_b32 s16, s13, 10\ns_add_u32 s16, s16, {WS_O}\nv_lshlrev_b32 v244, 4, v0')
for q in range(4):
    for j in range(2):
        A(f'v_lshlrev_b32 v{AK+4*q+2*j}, 16, v{HRES+2*q+j}\nv_and_b32 v{AK+4*q+2*j+1}, 0xffff0000, v{HRES+2*q+j}')
A(f's_lshl_b32 s13, {sW}, 12\ns_add_u32 s13, s13, {A_SCR3}\nv_add_u32 v12, s13, v244\ns_xor_b32 s13, {sW}, 2\ns_lshl_b32 s13, s13, 12\ns_add_u32 s13, s13, {A_SCR3}\nv_add_u32 v13, s13, v244')
A(f's_lshl_b32 s13, {sSub}, 1\ns_add_u32 s13, s13, {sB}\ns_lshl_b32 s14, {sTile}, 4\ns_add_u32 s14, s14, s13')
A(f's_lshl_b32 s19, s14, 11\ns_add_u32 s19, s19, {WS_H}\ns_lshl_b32 s17, s14, 8\ns_add_u32 s17, s17, {WS_ST}\ns_add_u32 s18, s14, {F3}\nv_lshlrev_b32 v14, 2, v0')
A(f'v_mov_b32 v15, 0x3f803f80\nv_mov_b32 v8, 0\nv_mov_b32 v9, 0\nv_mov_b32 v10, 0\nv_mov_b32 v11, 0')
A('s_waitcnt lgkmcnt(0)\ns_barrier')
poll('v5', 'v6', 16)
stamp('s3_polled')
def oload(i):
    if i % 4 == 0 and i: A('s_add_u32 s16, s16, 4096')
    A(f'buffer_load_dwordx4 {v(OF(i),4)}, v244, {SWS}, s16 offen offset:{(i%4)*1024} sc1')
issued = OPT['la3']
for i in range(issued): oload(i)
for i in range(16):
    A(f's_waitcnt vmcnt({issued-1-i})')
    mfma(AS, WOF(i, 1), OF(i), '0' if i == 0 else None)
    if issued < 16: oload(issued); issued += 1
    mfma(AK, WOF(i, 0), OF(i))
stamp('s3_mfma')
for q in range(4): A(f'ds_write_b128 v12, {v(AS+4*q,4)} offset:{q*1024}')
A('s_waitcnt lgkmcnt(0)\ns_barrier')
for q in range(4): A(f'ds_read_b128 {v(AS+4*q,4)}, v13 offset:{q*1024}')
for q in range(4):
    A(f's_waitcnt lgkmcnt({3-q})')
    for j in range(2): A(f'v_pk_add_f32 {v(AK+4*q+2*j,2)}, {v(AK+4*q+2*j,2)}, {v(AS+4*q+2*j,2)}')
    for j in range(2): A(f'v_cvt_pk_bf16_f32 v{HRES+2*q+j}, v{AK+4*q+2*j}, v{AK+4*q+2*j+1}')
dual([f'buffer_store_dwordx4 {v(HRES,4)}, v244, {SWS}, s19 offen', f'buffer_store_dwordx4 {v(HRES+4,4)}, v244, {SWS}, s19 offen offset:1024'])
for j in range(8): A(f'v_dot2c_f32_bf16 v{8+(j&1)}, v{HRES+j}, v15\nv_dot2c_f32_bf16 v{10+(j&1)}, v{HRES+j}, v{HRES+j}')
A('v_add_f32 v8, v8, v9\nv_add_f32 v10, v10, v11')
half_sum2('v8', 'v10')
dual([f'buffer_store_dword v8, v14, {SWS}, s17 offen'])
A('s_waitcnt vmcnt(0)')
set_flag('s18', 'v6', 'v7')
stamp('s3_flag')
A('s_barrier')
A(f's_cmp_eq_u32 {sM}, 15\ns_cbranch_scc1 Ls4skip')
AC = lambda b: 16 + 16 * b
HF = lambda k: 64 + 4 * k
BF = lambda s, b: 192 + 8 * (s % 3) + 4 * b
B1T = HF(20)
STT = 216
sT4 = 's25'
A(f's_lshl_b32 {sT4}, {sG}, 2\ns_add_u32 {sT4}, {sT4}, {sW}')
A(f's_lshl_b32 s13, {sT4}, 4\nv_add_u32 v5, s13, v0\nv_lshlrev_b32 v5, 7, v5\nv_add_u32 v5, {WS_FL + F3*128}, v5')
A(f'v_lshrrev_b32 v4, 5, v0\nv_lshlrev_b32 v4, 4, v4\nv_add_u32 v4, {RA}, v4')
for b in range(3):
    for q in range(4):
        A(f'ds_read_b128 {v(AC(b)+4*q,4)}, v4 offset:{A_CSF-RA + b*128 + 32*q}')
        A(f'ds_read_b128 {v(B1T+16*b+4*q,4)}, v4 offset:{A_B1F-RA + b*128 + 32*q}')
tr_lane_addr('v2', 192, 4, 'v4', False)
A(f'v_add_u32 v3, 49152, v2')
def w1rd(ks, b, dst):
    kp = (ks + 2) % 32
    a = 'v2' if kp < 16 else 'v3'
    for ii in range(2): trd(dst + 2 * ii, a, (kp % 16) * 3072 + ii * 1536 + b * 64)
for s in range(2):
    for b in range(2): w1rd(s, b, BF(s, b))
A(f's_lshl_b32 s16, {sT4}, 15\ns_add_u32 s16, s16, {WS_H}\ns_lshl_b32 s17, {sT4}, 12\ns_add_u32 s17, s17, {WS_ST}\nv_lshlrev_b32 v7, 2, v0')
poll('v5', 'v6', 16)
stamp('s4_polled')
for i in range(16): A(f'buffer_load_dword v{STT+i}, v7, {SWS}, s17 offen offset:{i*256} sc1')
def hload(k):
    if k % 4 == 0 and k: A('s_add_u32 s16, s16, 4096')
    A(f'buffer_load_dwordx4 {v(HF(k),4)}, v244, {SWS}, s16 offen offset:{(k%4)*1024} sc1')
issued = OPT['la4']
for k in range(issued): hload(k)
A(f's_mul_i32 s17, {sT4}, 86\ns_mul_i32 s13, {sM}, 6\ns_add_u32 s17, s17, s13\ns_lshl_b32 s17, s17, 10\ns_add_u32 s17, s17, {WS_H1}\ns_add_u32 s19, s17, 4096')
A(f's_lshl_b32 s18, {sT4}, 4\ns_add_u32 s18, s18, {sM}\ns_add_u32 s18, s18, {F4}')
A(f's_waitcnt vmcnt({issued}) lgkmcnt(0)')
for st in (8, 4, 2, 1):
    for i in range(st): A(f'v_add_f32 v{STT+i}, v{STT+i}, v{STT+i+st}')
MEAN, STD, RS4 = 232, 234, 236
A(f'v_mov_b32 v{STT+1}, v{STT}\nv_permlane32_swap_b32 v{STT}, v{STT+1}')
A(f'v_mul_f32 v{MEAN}, {f2u(1/512)}, v{STT}\nv_mul_f32 v{STT+1}, {f2u(1/512)}, v{STT+1}')
A(f'v_fma_f32 v{STT+1}, -v{MEAN}, v{MEAN}, v{STT+1}\nv_max_f32 v{STT+1}, 0, v{STT+1}\nv_add_f32 v{STT+1}, {f2u(1e-5)}, v{STT+1}')
A(f'v_rsq_f32 v{RS4}, v{STT+1}\nv_sqrt_f32 v{STD}, v{STT+1}')
for b in range(3):
    for j in range(8): A(f'v_pk_mul_f32 {v(AC(b)+2*j,2)}, {v(AC(b)+2*j,2)}, {v(MEAN,2)} op_sel_hi:[1,0]')
    for j in range(8): A(f'v_pk_fma_f32 {v(AC(b)+2*j,2)}, {v(B1T+16*b+2*j,2)}, {v(STD,2)}, {v(AC(b)+2*j,2)} op_sel_hi:[1,0,1] neg_lo:[0,0,1] neg_hi:[0,0,1]')
for ks in range(32):
    A(f's_waitcnt vmcnt({issued-1-ks}) lgkmcnt({4 if ks > 0 else 0})')
    mfma(AC(0), BF(ks, 0), HF(ks))
    if ks + 2 < 32: w1rd(ks + 2, 0, BF(ks + 2, 0))
    else: w1rd(2 * (ks - 30), 2, 216 + 8 * (ks - 30))
    mfma(AC(1), BF(ks, 1), HF(ks))
    if ks + 2 < 32: w1rd(ks + 2, 1, BF(ks + 2, 1))
    else: w1rd(2 * (ks - 30) + 1, 2, 220 + 8 * (ks - 30))
    if issued < 32:
        hload(issued); issued += 1
        if issued == 32: A('s_barrier')
stamp('s4_phA')
BF2 = lambda s: 216 + 4 * (s % 4)
def epi_ops(b, dst):
    ops = []
    for j in range(8):
        r0, r1 = AC(b) + 2 * j, AC(b) + 2 * j + 1
        ops += [f'v_max_f32 v{r0}, 0, v{r0}', f'v_max_f32 v{r1}, 0, v{r1}', f'v_mul_f32 v{r0}, v{RS4}, v{r0}', f'v_mul_f32 v{r1}, v{RS4}, v{r1}',
                f'v_mul_f32 v{r0}, v{r0}, v{r0}', f'v_mul_f32 v{r1}, v{r1}, v{r1}', f'v_cvt_pk_bf16_f32 v{dst+j}, v{r0}, v{r1}']
    ops.append(('st', b, dst))
    return ops
def h1store(b, src):
    sk = None
    if b > 0:
        sk = L(); A(f's_cmp_eq_u32 {sM}, 14\ns_cbranch_scc1 {sk}')
    sb = 's17' if b < 2 else 's19'; off = (2 * b % 4) * 1024
    dual([f'buffer_store_dwordx4 {v(src,4)}, v244, {SWS}, {sb} offen offset:{off}', f'buffer_store_dwordx4 {v(src+4,4)}, v244, {SWS}, {sb} offen offset:{off+1024}'])
    if sk: A.label(sk)
ep = epi_ops(0, 192) + epi_ops(1, 200)
pos = 0
for ks in range(32):
    A(f's_waitcnt lgkmcnt({min(6, 2*(31-ks))})')
    mfma(AC(2), BF2(ks), HF(ks))
    if ks + 4 < 32: w1rd(ks + 4, 2, BF2(ks + 4))
    if ks >= 1:
        for x in ep[pos:pos+4]:
            if isinstance(x, tuple): h1store(x[1], x[2])
            else: A(x)
        pos += 4
assert pos >= len(ep)
stamp('s4_phB')
A('s_barrier')
for j in range(16): A(f'v_max_f32 v{AC(2)+j}, 0, v{AC(2)+j}')
for j in range(8): A(f'v_pk_mul_f32 {v(AC(2)+2*j,2)}, {v(AC(2)+2*j,2)}, {v(RS4,2)} op_sel_hi:[1,0]')
for j in range(8): A(f'v_pk_mul_f32 {v(AC(2)+2*j,2)}, {v(AC(2)+2*j,2)}, {v(AC(2)+2*j,2)}')
for j in range(8): A(f'v_cvt_pk_bf16_f32 v{208+j}, v{AC(2)+2*j}, v{AC(2)+2*j+1}')
h1store(2, 208)
A('s_waitcnt vmcnt(0)')
set_flag('s18', 'v6', 'v7')
stamp('s4_flag')
A('s_branch Ls5')
A.label('Ls4skip')
A('s_barrier')
A('s_barrier')
A.label('Ls5')
NW = 40
GF = lambda s: 48 + 4 * (s % NW)
B5 = lambda s, c: 208 + 8 * (s % 3) + 4 * c
A(f'v_lshrrev_b32 v4, 5, v0\nv_lshlrev_b32 v4, 3, v4\ns_lshl_b32 s13, {sSub}, 7\ns_lshl_b32 s14, {sB}, 6\ns_add_u32 s13, s13, s14')
for q in range(4): A(f'buffer_load_dwordx2 {v(8+2*q,2)}, v4, {SB2}, s13 offen offset:{16*q}')
A(f's_lshl_b32 s13, {sTile}, 4\ns_mul_i32 s14, {sB}, 7\ns_add_u32 s13, s13, s14\nv_add_u32 v5, s13, v0\nv_lshlrev_b32 v5, 7, v5\nv_add_u32 v5, {WS_FL + F4*128}, v5')
A(f's_mul_i32 s16, {sTile}, 86\ns_mul_i32 s13, {sB}, 43\ns_add_u32 s16, s16, s13\ns_lshl_b32 s16, s16, 10\ns_add_u32 s16, s16, {WS_H1}')
tr_lane_addr('v2', 128, 4, 'v4', True, sB)
A(f's_mul_i32 s13, {sB}, 49152\ns_add_u32 s13, s13, {RB}\nv_add_u32 v234, s13, v2\nv_xor_b32 v235, 64, v234')
A(f's_mul_i32 s13, {sB}, 30720\ns_add_u32 s13, s13, {A_W2}\nv_add_u32 v232, s13, v2\nv_xor_b32 v233, 64, v232')
A(f's_lshl_b32 s14, {sA}, 12\ns_add_u32 s13, s13, s14\ns_add_u32 s13, s13, 8192\nv_add_u32 v236, s13, v244')
A(f's_xor_b32 s15, {sB}, 1\ns_mul_i32 s13, s15, 30720\ns_add_u32 s13, s13, s14\ns_add_u32 s13, s13, {A_W2 + 8192}\nv_add_u32 v237, s13, v244')
def w2rd(s):
    for c in range(2):
        if s < 15: a, off = ('v232', 'v233')[c], s * 2048
        elif s < 39: a, off = ('v234', 'v235')[c], (s - 15) * 2048
        else: a, off = ('v232', 'v233')[c], (s - 39) * 2048
        for ii in range(2): trd(B5(s, c) + 2 * ii, a, off + ii * 1024)
w2rd(0); w2rd(1)
poll('v5', 'v6', 8)
stamp('s5_polled')
def gload(s):
    if s % 4 == 0 and s: A('s_add_u32 s16, s16, 4096')
    A(f'buffer_load_dwordx4 {v(GF(s),4)}, v244, {SWS}, s16 offen offset:{(s%4)*1024} sc1')
for s in range(OPT['la5']): gload(s)
for j in range(8):
    A(f'v_lshlrev_b32 v{AK+2*j}, 16, v{8+j}\nv_and_b32 v{AK+2*j+1}, 0xffff0000, v{8+j}')
    A(f'v_lshlrev_b32 v6, 16, v{HRES+j}\nv_and_b32 v7, 0xffff0000, v{HRES+j}')
    A(f'v_add_f32 v{AK+2*j}, v{AK+2*j}, v6\nv_add_f32 v{AK+2*j+1}, v{AK+2*j+1}, v7')
A(f'v_and_b32 v4, 31, v0\nv_lshlrev_b32 v4, 10, v4\nv_lshrrev_b32 v5, 5, v0\nv_lshl_add_u32 v4, v5, 4, v4')
issued = OPT['la5']
def w2rd1(s, c):
    if s < 15: a, off = ('v232', 'v233')[c], s * 2048
    elif s < 39: a, off = ('v234', 'v235')[c], (s - 15) * 2048
    else: a, off = ('v232', 'v233')[c], (s - 39) * 2048
    for ii in range(2): trd(B5(s, c) + 2 * ii, a, off + ii * 1024)
for s in range(43):
    A(f's_waitcnt vmcnt({issued-1-s}) lgkmcnt({4 if s < 42 else 0})')
    if s == 2: A('s_waitcnt lgkmcnt(0)\ns_barrier')
    if s == 36: A('s_barrier')
    mfma(AS, B5(s, 1), GF(s), '0' if s == 0 else None)
    if s + 2 < 43: w2rd1(s + 2, 0)
    mfma(AK, B5(s, 0), GF(s))
    if s + 2 < 43: w2rd1(s + 2, 1)
    if issued < 43: gload(issued); issued += 1
stamp('s5_mfma')
for q in range(4): A(f'ds_write_b128 v236, {v(AS+4*q,4)} offset:{q*1024}')
A('s_waitcnt lgkmcnt(0)\ns_barrier')
for q in range(4): A(f'ds_read_b128 {v(AS+4*q,4)}, v237 offset:{q*1024}')
for q in range(4):
    A(f's_waitcnt lgkmcnt({3-q})')
    for j in range(2): A(f'v_pk_add_f32 {v(AK+4*q+2*j,2)}, {v(AK+4*q+2*j,2)}, {v(AS+4*q+2*j,2)}')
    for j in range(2): A(f'v_cvt_pk_bf16_f32 v{8+2*q+j}, v{AK+4*q+2*j}, v{AK+4*q+2*j+1}')
    if q % 2:
        b = 8 + 2 * q - 2
        A(f'v_permlane32_swap_b32 v{b}, v{b+2}\nv_permlane32_swap_b32 v{b+1}, v{b+3}')
        A(f'buffer_store_dwordx4 {v(b,4)}, v4, {SOUT}, s24 offen offset:{(q//2)*32}' + (' sc1' if OPT['outsc'] == 1 else (' nt' if OPT['outsc'] == 2 else '')))
stamp('end')
if OPT['impure']:
    A(f's_cmp_lg_u32 {sMode}, 0\ns_cbranch_scc1 Lexit')
    OPT['until'] = 150000
if OPT['until']:
    A.label('Lspin')
    A(f's_memtime s[88:89]\ns_waitcnt lgkmcnt(0)\ns_sub_u32 s88, s88, s84\ns_cmp_lt_u32 s88, {OPT["until"]}\ns_cbranch_scc1 Lspin')
A('s_endpgm')

def wb(level):
    if OPT['wbl2'] == 1 and level == 2:
        lx = L(); A(f's_cmp_lg_u32 {sI}, 0\ns_cbranch_scc1 {lx}\nbuffer_wbl2 sc1'); A.label(lx)
    if (OPT['wbl2'] == 2 and level == 2) or OPT['wbl2'] == 3:
        lx = L(); A(f's_cmp_lg_u32 {sJ}, 15\ns_cbranch_scc1 {lx}\ns_cmp_lg_u32 {sI}, 0\ns_cbranch_scc1 {lx}\nbuffer_wbl2 sc1'); A.label(lx)
def ctouch(lab_from, nm):
    if not OPT['ctouch']: return
    A(f's_getpc_b64 s[10:11]'); A.label(nm)
    A(f's_mov_b32 s13, {nm}-{lab_from}\ns_cmp_eq_u32 {sI}, 1\ns_cselect_b32 s13, {nm}-Lcodeend+8192, s13\ns_sub_u32 s10, s10, s13\ns_subb_u32 s11, s11, 0')
    A(f'global_load_dword v239, v245, s[10:11]')
A.label('Lloader2')
lct = L(); A(f's_cmp_ge_u32 {sI}, 2\ns_cbranch_scc1 {lct}'); ctouch('Ls3', 'Lct1'); A.label(lct)
A('s_barrier')
lsk1 = L()
A(f's_cmp_eq_u32 {sM}, 15\ns_cbranch_scc1 {lsk1}')
A(f's_mul_i32 s16, {sI}, {16*2752}\ns_mul_i32 s13, {sM}, 192\ns_add_u32 s16, s16, s13\ns_mul_i32 s18, {sI}, 3072')
for gi in range(3):
    for ph in range(3):
        A(f's_add_u32 s13, s16, {(15+4*gi)*16*2752}\ns_add_u32 m0, s18, {RB + (17+4*gi)*3072 + ph*1024}'); dma(f'v{8+ph}', SW1, 's13')
A(f's_add_u32 s14, {sI}, 29\ns_and_b32 s14, s14, 31\ns_mul_i32 s14, s14, 3072')
for ph in range(3):
    A(f's_add_u32 s13, s16, {27*16*2752}\ns_add_u32 m0, s14, {RB + ph*1024}'); dma(f'v{8+ph}', SW1, 's13')
A(f's_cmp_lg_u32 {sI}, 0\ns_cbranch_scc1 {lsk1}')
for ph in range(3):
    A(f's_add_u32 s13, s16, {31*16*2752}\ns_mov_b32 m0, {RB + 3072 + ph*1024}'); dma(f'v{8+ph}', SW1, 's13')
A.label(lsk1)
A(f's_mul_i32 s13, {sM}, 192\nv_lshlrev_b32 v2, 1, v0\nbuffer_load_ushort v12, v2, {SB1}, s13 offen\nbuffer_load_ushort v13, v2, {SB1}, s13 offen offset:128')
A(f'v_mov_b32 v2, 0\nv_mov_b32 v3, {RA + 3072}\nds_write_b32 v3, v2')
tr_lane_addr('v2', 192, 4, 'v4', False)
A(f's_mul_i32 s13, {sI}, {128*192}\nv_add_u32 v2, s13, v2\nv_mov_b32 v3, 0x3f803f80')
for r in range(16, 22): A(f'v_mov_b32 v{r}, 0')
A('s_waitcnt vmcnt(0) lgkmcnt(0)\ns_barrier')
stamp('ld_c')
for half in range(2):
    for s in range(4):
        for b in range(3):
            for ii in range(2): trd(32 + 12 * s + 4 * b + 2 * ii, 'v2', (4 * half + s) * 3072 + ii * 1536 + b * 64)
    A('s_waitcnt lgkmcnt(0)')
    for s in range(4):
        for j in range(4):
            for b in range(3): A(f'v_dot2c_f32_bf16 v{16+2*b+(j&1)}, v{32+12*s+4*b+j}, v3')
A('v_add_f32 v16, v16, v17\nv_add_f32 v18, v18, v19\nv_add_f32 v20, v20, v21\nv_mov_b32 v21, v20')
half_sum2('v16', 'v18'); half_sum2('v20', 'v21')
A(f's_mul_i32 s13, {sI}, 384\ns_add_u32 s13, s13, {A_PART}\nv_lshlrev_b32 v4, 2, v0\nv_add_u32 v5, s13, v4')
A('ds_write_b32 v5, v16\ns_mov_b32 exec_hi, 0\nds_write_b32 v5, v20 offset:256\ns_mov_b32 exec_hi, -1')
A('s_waitcnt lgkmcnt(0)')
lds_inc(RA + 3072, 'v6', 'v7')
lds_wait(RA + 3072, 4, 'v6', 'v7')
A(f'v_add_u32 v4, {RA}, v4')
for i in range(4): A(f'ds_read_b32 v{16+i}, v4 offset:{i*384}\nds_read_b32 v{20+i}, v4 offset:{i*384+256}')
A('v_lshlrev_b32 v12, 16, v12\nv_lshlrev_b32 v13, 16, v13\ns_waitcnt lgkmcnt(0)')
A('v_add_f32 v16, v16, v17\nv_add_f32 v18, v18, v19\nv_add_f32 v20, v20, v21\nv_add_f32 v22, v22, v23\nv_add_f32 v16, v16, v18\nv_add_f32 v20, v20, v22')
A(f'ds_write_b32 v4, v16 offset:{A_CSF-RA}\nds_write_b32 v4, v12 offset:{A_B1F-RA}\ns_mov_b32 exec_hi, 0')
A(f'ds_write_b32 v4, v20 offset:{A_CSF-RA+256}\nds_write_b32 v4, v13 offset:{A_B1F-RA+256}\ns_mov_b32 exec_hi, -1')
A('s_waitcnt lgkmcnt(0)\ns_barrier')
A(f's_mul_i32 s16, {sB}, {43*16*1024}\ns_lshl_b32 s13, {sA}, 13\ns_add_u32 s16, s16, s13\ns_lshl_b32 s13, {sSub}, 7\ns_add_u32 s16, s16, s13')
def w2loop(n, ldsbase, khstride):
    A(f's_mul_i32 s18, {sB}, {khstride}\ns_lshl_b32 s13, {sA}, 10\ns_add_u32 s18, s18, s13\ns_add_u32 s18, s18, {ldsbase}\ns_mov_b32 s19, {n}')
    lp = L(); A.label(lp)
    A('s_mov_b32 m0, s18'); dma(VWO, SW2, 's16')
    A(f's_add_u32 s16, s16, 16384\ns_add_u32 s18, s18, 2048\ns_sub_u32 s19, s19, 1\ns_cmp_lg_u32 s19, 0\ns_cbranch_scc1 {lp}')
def p2touch(n, start, lbl):
    A(f's_mul_i32 s26, {sA}, {688*1024}\ns_lshl_b32 s13, {sB}, 13\ns_add_u32 s26, s26, s13\ns_and_b32 s13, {sG}, 1\ns_lshl_b32 s13, s13, 14\ns_add_u32 s26, s26, s13')
    A(f's_add_u32 s26, s26, {240*1024 + start}\ns_mov_b32 s19, {n}\nv_lshlrev_b32 v245, 7, v0')
    A.label(lbl)
    A(f'buffer_load_dword v239, v245, {SW2}, s26 offen\ns_add_u32 s26, s26, 32768\ns_sub_u32 s19, s19, 1\ns_cmp_lg_u32 s19, 0\ns_cbranch_scc1 {lbl}')
if OPT['p1pos'] == 0: w2loop(15, A_W2, 30720)
if OPT['pfc']:
    lx = L(); A(f's_cmp_lg_u32 {sM}, 15\ns_cbranch_scc1 {lx}'); p2touch(9 if OPT['pfd'] else 14, 0, L()); A.label(lx)
wb(1)
A('s_barrier')
if OPT['pfd']:
    lx = L(); A(f's_cmp_lg_u32 {sM}, 14\ns_cbranch_scc1 {lx}'); p2touch(5, 9*32768, L()); A.label(lx)
if OPT['p1pos'] == 1: w2loop(15, A_W2, 30720)
A('s_waitcnt vmcnt(0)\ns_barrier')
w2loop(24, RB, 49152)
A('s_waitcnt vmcnt(0)')
stamp('ld_d')
A('s_barrier')
w2loop(4, A_W2, 30720)
wb(2)
A('s_waitcnt vmcnt(0)\ns_barrier')
A('s_barrier')
A.label('Lexit')
A('s_endpgm')
A.label('Lcodeend')

n = A.fix_hazards()
assert check_async(A, frozenset({'v239', 's90'})) == 0
hdr = open('cdna_kernels/' + NAME + '.s.ref').read().split('; Override')[0]
out = hdr + f'; @launch grid=(256,1,1) block=(512,1,1) lds=163840\n.amdgcn_target "amdgcn-amd-amdhsa--gfx950"\n.text\n.globl {NAME}_kernel\n.p2align 8\n.type {NAME}_kernel,@function\n{NAME}_kernel:\n'
out += A.text()
out += f'''.fill 64, 4, 0xbf800000
.section .rodata,"a"
.p2align 6
.amdhsa_kernel {NAME}_kernel
  .amdhsa_next_free_vgpr 256
  .amdhsa_next_free_sgpr 102
  .amdhsa_accum_offset 256
  .amdhsa_group_segment_fixed_size 0
  .amdhsa_kernarg_size 88
  .amdhsa_user_sgpr_count 2
  .amdhsa_user_sgpr_kernarg_segment_ptr 1
  .amdhsa_system_sgpr_workgroup_id_x 1
  .amdhsa_float_denorm_mode_32 3
.end_amdhsa_kernel
'''
open(sys.argv[1], 'w').write(out)
print('nops inserted:', n, 'instructions:', len(A.ins))
```

```python
import sys, math, struct
from emit import Asm, check_async
NAME = "sequential_preLN__sliding_block__dense_activation_squared_relu__prompt"
OPT = dict(stamps=0, until=0, fast=1, pf=1, wbl2=0, outsc=0, la3=8, la4=8, la5=10, pfa=2, pfc=1, pfd=1, p1pos=0, nt=0, hold=-1, holdt=40000, impure=0, tlb=1, ctouch=1, h1sc=0, hsc=0, osc=0)
for a in sys.argv[2:]:
    k, v_ = a.split('='); assert k in OPT, k; OPT[k] = int(v_)

WS_KV, WS_O, WS_H, WS_ST, WS_H1, WS_FL = 0x0, 0x400000, 0x600000, 0x800000, 0x900000, 0x1000000
WS_STAMP = 0x2000000
F1, F2, F3, F4 = 0, 64*16, 64*48, 64*64
RB, RA = 0, 98304
SL = 16384
L_STAT, L_CNT, L_PR = 0, 512, 1024
L_Q, L_K, L_V, VT = 4096, 12288, 53248, 4160
L_WQ = 2 * SL
A_PART, A_CSF, A_B1F, A_W2, A_SCR3 = RA, RA + 1536, RA + 2048, RA + 4096, RA + 4096
TIMEOUT = 400000
CSC = 0.25 * math.log2(math.e)
def f2u(x): return hex(struct.unpack('<I', struct.pack('<f', x))[0])

sW, sT, sSub, sG, sM = 's3', 's4', 's5', 's6', 's7'
SX, SWQ, SWO, SW1, SB1, SW2, SB2, SOUT, SWS, SDBG = [f's[{b}:{b+3}]' for b in range(40, 80, 4)]
sA, sB, sI, sMode, sJ = 's80', 's81', 's82', 's83', 's38'
def v(a, n=1): return f'v{a}' if n == 1 else f'v[{a}:{a+n-1}]'

A = Asm()
uid = [0]
def L(p='L'):
    uid[0] += 1; return f'{p}{uid[0]}'
STAMP_NAMES = ['start', 's1_c0', 's1_loop_end', 's1_bs1', 's1_stored', 's1_flag', 'kv_ready', 'att_p1', 'att_end', 'o_flag',
               's3_polled', 's3_mfma', 's3_flag', 's4_polled', 's4_phA', 's4_phB', 's4_flag', 's5_polled', 's5_mfma', 'end',
               'ld_a', 'ld_b', 'ld_c', 'ld_d', 'x0', 'x1', 'x2', 'x3', 'x4', 'x5', 'x6', 'x7']
SID = {n: i for i, n in enumerate(STAMP_NAMES)}
def stamp(name):
    if OPT['hold'] == SID[name]:
        lb = L('Lhold'); A.label(lb)
        A(f's_memtime s[92:93]\ns_waitcnt lgkmcnt(0)\ns_sub_u32 s92, s92, s84\ns_cmp_lt_u32 s92, {OPT["holdt"]}\ns_cbranch_scc1 {lb}')
    if not OPT['stamps']: return
    A(f's_memtime s[98:99]\ns_waitcnt lgkmcnt(0)\nv_mov_b32 v247, s98\nv_mov_b32 v246, s97\ns_mov_b64 s[94:95], exec\ns_mov_b64 exec, 1')
    A(f'buffer_store_dword v247, v246, {SWS}, 0 offen offset:{4*SID[name]}\ns_mov_b64 exec, s[94:95]')

def poll(vaddr, vtmp, nlanes):
    lp, dn = L('Lpoll'), L('Lpd')
    A(f's_mov_b32 exec_lo, {hex((1 << nlanes) - 1)}\ns_mov_b32 exec_hi, 0\ns_mov_b32 s8, 0')
    A.label(lp)
    A(f'buffer_load_dword {vtmp}, {vaddr}, {SWS}, 0 offen sc1\ns_add_u32 s8, s8, 1\ns_waitcnt vmcnt(0)')
    A(f'v_cmp_eq_u32 vcc, 0, {vtmp}\ns_cmp_gt_u32 s8, {TIMEOUT}\ns_cbranch_scc1 {dn}\ns_cbranch_vccnz {lp}')
    A.label(dn)
    A('s_mov_b64 exec, -1')
def lds_wait(off, want, va, vt):
    lp, dn = L('Llw'), L('Llwd')
    A(f'v_mov_b32 {va}, {off}\ns_mov_b32 s8, 0')
    A.label(lp)
    A(f'ds_read_b32 {vt}, {va}\ns_add_u32 s8, s8, 1\ns_waitcnt lgkmcnt(0)\nv_readfirstlane_b32 s9, {vt}')
    A(f's_cmp_gt_u32 s8, {TIMEOUT*4}\ns_cbranch_scc1 {dn}\ns_cmp_lt_u32 s9, {want}\ns_cbranch_scc1 {lp}')
    A.label(dn)
def lds_inc(off, va, vt):
    A(f'v_mov_b32 {va}, {off}\nv_mov_b32 {vt}, 1\ns_mov_b64 exec, 1\nds_add_u32 {va}, {vt}\ns_mov_b64 exec, -1')
def dual(lines, always_slow=False):
    if always_slow or not OPT['fast']:
        for x in lines: A(x + ' sc1')
        return
    ls, ld = L('Lsl'), L('Lsd')
    A(f's_cmp_eq_u32 {sMode}, 0\ns_cbranch_scc1 {ls}')
    for x in lines: A(x + ['', ' nt', ' sc0', ' sc0 nt'][OPT['nt']])
    A(f's_branch {ld}'); A.label(ls)
    for x in lines: A(x + ' sc1')
    A.label(ld)
def set_flag(sidx, vt0, vt1, slow=False):
    A(f's_lshl_b32 s9, {sidx}, 7\ns_add_u32 s9, s9, {WS_FL}\nv_mov_b32 {vt0}, s9\nv_mov_b32 {vt1}, 1\ns_mov_b64 exec, 1')
    dual([f'buffer_store_dword {vt1}, {vt0}, {SWS}, 0 offen'], slow)
    A('s_mov_b64 exec, -1')
def tr_lane_addr(dst, rowstride, hrows, tmp, swz=True, flip=None):
    A(f'v_lshrrev_b32 {dst}, 5, v0\nv_mul_u32_u24 {dst}, {hrows}, {dst}\nv_bfe_u32 {tmp}, v0, 2, 2\nv_add_u32 {dst}, {dst}, {tmp}')
    A(f'v_mul_u32_u24 {dst}, {rowstride}, {dst}')
    if swz:
        A(f'v_bfe_u32 {tmp}, v0, 3, 1')
        if flip: A(f'v_xor_b32 {tmp}, {flip}, {tmp}')
        A(f'v_lshl_add_u32 {dst}, {tmp}, 6, {dst}')
    A(f'v_bfe_u32 {tmp}, v0, 4, 1\nv_lshl_add_u32 {dst}, {tmp}, 5, {dst}')
    A(f'v_and_b32 {tmp}, 3, v0\nv_lshl_add_u32 {dst}, {tmp}, 3, {dst}')
MF = 'v_mfma_f32_32x32x16_bf16'
def mfs(d, a, b, c=None):
    cs = v(d, 16) if c is None else (c if isinstance(c, str) else v(c, 16))
    return f'{MF} {v(d,16)}, {v(a,4)}, {v(b,4)}, {cs}'
def mfma(d, a, b, c=None): A(mfs(d, a, b, c))
def trs(d, addr, off): return f'ds_read_b64_tr_b16 {v(d,2)}, {addr} offset:{off}'
def trd(d, addr, off): A(trs(d, addr, off))
def dma(voff, srd, soff, sc=''): A(f'buffer_load_dwordx4 {voff}, {srd}, {soff} offen{sc} lds')
def half_sum2(a, b): A(f'v_permlane32_swap_b32 {a}, {b}\nv_add_f32 {a}, {a}, {b}')
def att_masks():
    A('v_and_b32 v232, 31, v0\nv_lshrrev_b32 v233, 5, v0\nv_lshlrev_b32 v233, 2, v233\nv_sub_u32 v232, v232, v233')
    A('v_mov_b32 v234, 0xff800000\nv_mov_b32 v235, 0')
    for r in range(16):
        key = (r & 3) + 8 * (r >> 2)
        A(f'v_cmp_le_i32 vcc, {key}, v232\nv_cndmask_b32 v{56+r}, v234, v235, vcc\nv_cndmask_b32 v{72+r}, v235, v234, vcc')
def x_frag_addrs(AX):
    A(f'v_and_b32 v2, 31, v0\nv_bfe_u32 v3, v0, 1, 3\nv_lshrrev_b32 v4, 5, v0\nv_xor_b32 v3, v3, v4')
    A(f's_lshl_b32 s13, {sA}, 12\ns_add_u32 s13, s13, {RA}\nv_lshlrev_b32 v2, 7, v2\nv_add_u32 v2, s13, v2')
    for p in range(4): A(f'v_xor_b32 v4, {2*p}, v3\nv_lshl_add_u32 {AX(p)}, v4, 4, v2')
def wo_voff(dst):
    A(f'v_lshrrev_b32 v2, 3, v0\nv_and_b32 v3, 7, v0\nv_bfe_u32 v4, v0, 4, 1\nv_lshlrev_b32 v4, 2, v4\nv_xor_b32 v4, v4, v3\nv_lshlrev_b32 v4, 4, v4\nv_lshl_add_u32 {dst}, v2, 10, v4')
def pk_norm(t, acc, rs, mul, out, per_reg_rs=False):
    for j in range(8): A(f'v_pk_mul_f32 {v(t+2*j,2)}, {v(t+2*j,2)}, {v(mul,2)} op_sel_hi:[1,0]')
    for j in range(8):
        if per_reg_rs: A(f'v_pk_fma_f32 {v(t+2*j,2)}, {v(acc+2*j,2)}, {v(rs+2*j,2)}, {v(t+2*j,2)} neg_lo:[0,0,1] neg_hi:[0,0,1]')
        else: A(f'v_pk_fma_f32 {v(t+2*j,2)}, {v(acc+2*j,2)}, {v(rs,2)}, {v(t+2*j,2)} op_sel_hi:[1,0,1] neg_lo:[0,0,1] neg_hi:[0,0,1]')
    for j in range(8): A(f'v_cvt_pk_bf16_f32 v{out+j}, v{t+2*j}, v{t+2*j+1}')
def touch(srd, sbase, n, first=0):
    for i in range(first, first + n):
        A(f's_add_u32 s13, {sbase}, {i*8192}\nbuffer_load_dword v239, v245, {srd}, s13 offen')

A(f's_cmp_ge_u32 s2, 256\ns_cbranch_scc1 Lexit')
if OPT['until'] or OPT['hold'] >= 0 or OPT['impure']: A('s_memtime s[84:85]')
A('s_load_dwordx16 s[16:31], s[0:1], 0\ns_load_dwordx4 s[32:35], s[0:1], 64\ns_load_dwordx2 s[36:37], s[0:1], 80')
A(f'v_lshrrev_b32 v1, 6, v0\nv_and_b32 v0, 63, v0\nv_readfirstlane_b32 {sW}, v1')
A(f's_and_b32 s8, s2, 7\ns_lshr_b32 {sJ}, s2, 3\ns_and_b32 {sM}, {sJ}, 15\ns_lshr_b32 s9, {sJ}, 4\ns_lshl_b32 {sG}, s8, 1\ns_add_u32 {sG}, {sG}, s9')
A(f's_lshr_b32 s9, {sM}, 3\ns_lshl_b32 {sT}, {sG}, 1\ns_add_u32 {sT}, {sT}, s9\ns_and_b32 {sSub}, {sM}, 7')
A(f's_and_b32 {sA}, {sW}, 1\ns_bfe_u32 {sB}, {sW}, 0x10001\ns_and_b32 {sI}, {sW}, 3\ns_mov_b32 {sMode}, 0')
A('s_waitcnt lgkmcnt(0)')
def srd(b, p, sz): A(f's_mov_b32 s{b}, s{p}\ns_and_b32 s{b+1}, s{p+1}, 0xffff\ns_mov_b32 s{b+2}, {sz}\ns_mov_b32 s{b+3}, 0x20000')
srd(40, 16, 2097152); srd(44, 18, 1572864)
A(f's_cmp_ge_u32 {sW}, 4\ns_cbranch_scc1 Lloader')
def other_srds():
    for (b, p, sz) in ((72, 36, 268435456), (76, 34, 256), (48, 20, 524288), (52, 24, 1409024), (56, 26, 2752), (60, 28, 1409024),
                       (64, 30, 1024), (68, 32, 2097152)): srd(b, p, sz)
    if OPT['stamps']:
        A(f's_lshl_b32 s97, s2, 3\ns_add_u32 s97, s97, {sW}\ns_lshl_b32 s97, s97, 7\ns_add_u32 s97, s97, {WS_STAMP}')
other_srds()
stamp('start')
aK_, aV = 16, 32
XF = lambda p: 64 + 4 * p
WF = lambda p, b: 80 + 8 * p + 4 * b
CK, CV_ = 128, 130
ONES = 'v138'
AX = lambda p: f'v{140+p}'
AW = 'v144'
A(f's_getreg_b32 s39, hwreg(HW_REG_XCC_ID)\ns_and_b32 s39, s39, 15\ns_or_b32 s39, s39, 0x80')
lpf, lgo = L(), L()
A(f's_cmp_lg_u32 {sW}, 0\ns_cbranch_scc1 {lpf}')
A(f's_mul_i32 s8, s2, 20\nv_add_u32 v2, s8, v0\nv_lshlrev_b32 v2, 7, v2\nv_add_u32 v2, {WS_FL}, v2\nv_mov_b32 v3, 0')
A(f's_mov_b32 exec_lo, 0xfffff\ns_mov_b32 exec_hi, 0\nbuffer_store_dword v3, v2, {SWS}, 0 offen sc1')
A(f'v_lshlrev_b32 v4, 2, v0\nds_write_b32 v4, v3 offset:{L_CNT}')
A(f's_lshl_b32 s8, {sG}, 4\ns_and_b32 s9, {sM}, 12\ns_add_u32 s8, s8, s9\ns_and_b32 s9, {sM}, 3\ns_lshl_b32 s9, s9, 3\ns_lshl_b32 s9, s39, s9')
A(f'v_mov_b32 v2, s8\nv_mov_b32 v3, s9\ns_mov_b64 exec, 1\ns_waitcnt vmcnt(0) lgkmcnt(0)')
A(f'buffer_atomic_or v3, v2, {SDBG}, 0 offen sc1\ns_mov_b64 exec, -1\ns_branch {lgo}')
A.label(lpf)
ltl = L()
A(f's_cmp_eq_u32 {sW}, 3\ns_cbranch_scc1 {ltl}')
A('s_getpc_b64 s[10:11]')
A.label('Lpc')
A(f's_lshl_b32 s9, {sW}, 4\ns_add_u32 s8, {sJ}, s9\ns_and_b32 s8, s8, 31\ns_lshl_b32 s8, s8, 10')
A(f's_min_u32 s8, s8, Lcodeend-Lpc-1024\ns_add_u32 s10, s10, s8\ns_addc_u32 s11, s11, 0\ns_and_b32 s10, s10, -16\nv_lshlrev_b32 v2, 4, v0')
A(f'global_load_dwordx4 v[200:203], v2, s[10:11]\ns_branch {lgo}')
A.label(ltl)
if OPT['tlb']:
    A(f's_lshl_b32 s9, {sT}, 16')
    A('s_load_dword s90, s[32:33], s9')
    for p in (20, 24, 26, 28, 30): A(f's_load_dword s90, s[{p}:{p+1}], 0')
    for pg in range(8): A(f's_mov_b32 s9, {pg*0x200000 + 0x100000}\ns_load_dword s90, s[36:37], s9')
A.label(lgo)
for r in list(range(16, 48)) + list(range(WF(2, 0), WF(4, 0))) + list(range(128, 132)): A(f'v_mov_b32 v{r}, 0')
A(f'v_mov_b32 {ONES}, 0x3f803f80')
x_frag_addrs(AX)
tr_lane_addr(AW, 128, 8, 'v2', True, sB)
A(f'v_add_u32 {AW}, {4*SL}, {AW}\ns_mov_b32 s15, 0\nv_lshlrev_b32 v146, 2, v0')
def p1_reads(p):
    out = [f'ds_read_b128 {v(XF(p),4)}, {AX(p)}']
    for b in range(2):
        for i in range(2): out.append(trs(WF(p, b) + 2 * i, AW, p * 2048 + i * 512 + b * 8192))
    return out
def p1_mf(p): return [mfs(aK_, WF(p, 0), XF(p)), mfs(aV, XF(p), WF(p, 1))]
def p1_dots(ps):
    for p in ps:
        for j in range(4):
            A(f'v_dot2c_f32_bf16 v{CK+(j&1)}, v{WF(p,0)+j}, {ONES}\nv_dot2c_f32_bf16 v{CV_+(j&1)}, v{WF(p,1)+j}, {ONES}')
A.label('Ls1')
A('s_barrier')
for x in p1_reads(0) + p1_reads(1): A(x)
ldb = L()
A(f's_cmp_lg_u32 s15, 4\ns_cbranch_scc1 {ldb}\nbuffer_load_dword v147, v146, {SDBG}, 0 offen sc1')
A.label(ldb)
p1_dots((2, 3))
A('s_waitcnt lgkmcnt(0)')
rd = p1_reads(2) + p1_reads(3); mm = p1_mf(0) + p1_mf(1); k = 0
for i, m in enumerate(mm):
    A(m); n = (3, 3, 2, 2)[i]
    for x in rd[k:k+n]: A(x)
    k += n
A(f's_mov_b32 s13, {SL}\ns_cmp_eq_u32 s15, 1\ns_cselect_b32 s13, {-4*SL}, s13\ns_cmp_eq_u32 s15, 6\ns_cselect_b32 s13, {-4*SL}, s13\ns_add_u32 s15, s15, 1')
A('s_waitcnt lgkmcnt(5)')
m2 = p1_mf(2)
A(m2[0]); A(f'v_add_u32 {AX(0)}, 8192, {AX(0)}\nv_add_u32 {AX(1)}, 8192, {AX(1)}\nv_add_u32 {AX(2)}, 8192, {AX(2)}')
A(m2[1]); A(f'v_add_u32 {AX(3)}, 8192, {AX(3)}\nv_add_u32 {AW}, s13, {AW}')
A('s_waitcnt lgkmcnt(0)')
for m in p1_mf(3): A(m)
p1_dots((0, 1))
A('s_cmp_lt_u32 s15, 8\ns_cbranch_scc1 Ls1')
stamp('s1_loop_end')
p1_dots((2, 3))
CSV = 152
A(f'v_add_f32 v{CK}, v{CK}, v{CK+1}\nv_add_f32 v{CV_}, v{CV_}, v{CV_+1}')
half_sum2(f'v{CK}', f'v{CV_}')
A(f's_lshl_b32 s13, {sW}, 8\ns_add_u32 s13, s13, {L_PR}\nv_add_u32 v6, s13, v146\nds_write_b32 v6, v{CK}')
A(f'v_lshrrev_b32 v7, 5, v0\nv_lshlrev_b32 v7, 4, v7\nv_add_u32 v8, s13, v7\nv_and_b32 v9, 31, v0\nv_lshlrev_b32 v9, 2, v9\nv_add_u32 v10, s13, v9')
tK, tRS, tMRS = 64, 80, 96
A('s_waitcnt lgkmcnt(0)')
for q in range(4): A(f'ds_read_b128 {v(tK+4*q,4)}, v8 offset:{32*q}')
A(f'ds_read_b32 v{CSV}, v10 offset:128')
lchk, lok = L(), L()
A('s_mov_b32 s8, 0')
A.label(lchk)
A(f's_waitcnt vmcnt(0)\nv_and_b32 v2, 0x80808080, v147\nv_cmp_ne_u32 vcc, 0x80808080, v2\ns_add_u32 s8, s8, 1')
A(f's_cbranch_vccz {lok}\ns_cmp_gt_u32 s8, {TIMEOUT}\ns_cbranch_scc1 {lok}')
A(f'buffer_load_dword v147, v146, {SDBG}, 0 offen sc1\ns_branch {lchk}')
A.label(lok)
A(f's_mul_i32 s9, s39, 0x01010101\nv_cmp_eq_u32 vcc, s9, v147\ns_lshl_b32 s9, {sG}, 2\ns_lshr_b64 s[10:11], vcc, s9\ns_and_b32 s10, s10, 15')
A(f's_cmp_eq_u32 s10, 15\ns_cselect_b32 {sMode}, 1, 0\nv_mov_b32 v2, {L_CNT+8}\nv_mov_b32 v3, {sMode}\nds_write_b32 v2, v3')
A(f's_lshl_b32 s13, {sA}, 7\nv_add_u32 v7, s13, v7\nv_add_u32 v9, s13, v9')
A(f's_lshl_b32 s13, {sT}, 1\ns_add_u32 s13, s13, {sA}\ns_lshl_b32 s16, s13, 3\ns_add_u32 s16, s16, {sSub}\ns_lshl_b32 s16, s16, 13')
A(f's_lshl_b32 s14, {sB}, 11\ns_add_u32 s16, s16, s14\ns_add_u32 s17, s16, 4096')
A(f's_lshl_b32 s18, s13, 4\ns_lshl_b32 s14, {sSub}, 1\ns_add_u32 s18, s18, s14\ns_add_u32 s18, s18, {sB}\nv_lshlrev_b32 v14, 4, v0')
A('s_waitcnt lgkmcnt(0)\ns_barrier')
stamp('s1_bs1')
RS, MRS = 148, 150
A(f'ds_read_b32 v{RS}, v9 offset:{L_STAT}\nds_read_b32 v{MRS}, v9 offset:{L_STAT+256}')
for q in range(4): A(f'ds_read_b128 {v(tMRS+4*q,4)}, v7 offset:{L_STAT+256+32*q}')
for q in range(4): A(f'ds_read_b128 {v(tRS+4*q,4)}, v7 offset:{L_STAT+32*q}')
KF, VF = 156, 164
A('s_waitcnt lgkmcnt(8)')
pk_norm(tK, aK_, RS, MRS, KF)
A(f'buffer_store_dwordx4 {v(KF,4)}, v14, {SWS}, s16 offen sc1\nbuffer_store_dwordx4 {v(KF+4,4)}, v14, {SWS}, s16 offen offset:1024 sc1')
A('s_waitcnt lgkmcnt(0)')
pk_norm(tMRS, aV, tRS, CSV, VF, True)
A(f'buffer_store_dwordx4 {v(VF,4)}, v14, {SWS}, s17 offen sc1\nbuffer_store_dwordx4 {v(VF+4,4)}, v14, {SWS}, s17 offen offset:1024 sc1')
stamp('s1_stored')
att_masks()
A(f's_lshl_b32 s13, {sA}, 12\ns_lshl_b32 s14, {sB}, 11\ns_add_u32 s13, s13, s14\ns_add_u32 s13, s13, {L_K + 8*4096}\nv_add_u32 v15, s13, v14')
A(f's_mul_i32 s13, {sA}, {VT}\ns_mul_i32 s14, {sB}, 2080\ns_add_u32 s13, s13, s14\ns_add_u32 s13, s13, {L_V + 8*VT}\nv_add_u32 v146, s13, v14')
A(f'v_lshrrev_b32 v8, 2, v0\nv_mul_u32_u24 v8, {VT}, v8\nv_and_b32 v9, 3, v0\nv_mul_u32_u24 v9, 1040, v9\nv_add_u32 v8, v8, v9')
for r in range(10, 14): A(f'v_mov_b32 v{r}, 0x3f803f80')
A('s_waitcnt vmcnt(0)')
set_flag('s18', 'v2', 'v3', slow=True)
stamp('s1_flag')
sTile = 's23'
HRES = 248
A(f's_lshl_b32 {sTile}, {sT}, 1\ns_add_u32 {sTile}, {sTile}, {sA}')
A(f'v_and_b32 v4, 31, v0\nv_lshlrev_b32 v4, 10, v4\nv_lshrrev_b32 v5, 5, v0\nv_lshl_add_u32 v4, v5, 3, v4')
A(f's_lshl_b32 s24, {sTile}, 15\ns_lshl_b32 s13, {sSub}, 7\ns_add_u32 s24, s24, s13\ns_lshl_b32 s13, {sB}, 6\ns_add_u32 s24, s24, s13')
for q in range(4): A(f'buffer_load_dwordx2 {v(HRES+2*q,2)}, v4, {SX}, s24 offen offset:{16*q}')
lnh, lnh2 = L(), L()
A(f's_add_u32 s19, {sT}, {sI}\ns_cmp_lt_u32 s19, 4\ns_cbranch_scc1 {lnh}')
A(f's_sub_u32 s13, s19, 4\ns_lshl_b32 s13, s13, 1')
A(f's_lshl_b32 s14, s13, 4\ns_lshl_b32 s15, {sSub}, 1\ns_add_u32 s14, s14, s15')
A(f'v_lshrrev_b32 v2, 1, v0\nv_lshlrev_b32 v2, 4, v2\nv_and_b32 v3, 1, v0\nv_add3_u32 v2, v2, v3, s14\nv_lshlrev_b32 v2, 7, v2\nv_add_u32 v2, {WS_FL + F1*128}, v2')
A(f's_lshl_b32 s16, s13, 3\ns_add_u32 s16, s16, {sSub}\ns_lshl_b32 s16, s16, 13')
poll('v2', 'v3', 4)
A.label(lnh)
stamp('x0')
lds_wait(L_CNT + 4, 4, 'v2', 'v3')
stamp('x1')
A(f's_cmp_lt_u32 s19, 4\ns_cbranch_scc1 {lnh2}')
A(f's_lshl_b32 s17, {sI}, 13\ns_add_u32 s17, s17, {L_K}\ns_mul_i32 s18, {sI}, {2*VT}\ns_add_u32 s18, s18, {L_V}')
for t in range(2):
    for i in range(4):
        A(f's_add_u32 s13, s16, {t*65536 + i*1024}\ns_add_u32 m0, s17, {t*4096 + i*1024}'); dma('v14', SWS, 's13', ' sc1')
for t in range(2):
    for i in range(4):
        A(f's_add_u32 s13, s16, {t*65536 + 4096 + i*1024}\ns_add_u32 m0, s18, {t*VT + i*1040}'); dma('v14', SWS, 's13', ' sc1')
A.label(lnh2)
A(f'ds_write_b128 v15, {v(KF,4)}\nds_write_b128 v15, {v(KF+4,4)} offset:1024\nds_write_b128 v146, {v(VF,4)}\nds_write_b128 v146, {v(VF+4,4)} offset:1040')
A(f's_mov_b32 exec_hi, 0xff\nds_write_b128 v8, v[10:13] offset:{L_V + 1024}\ns_mov_b32 exec_hi, -1')
A('s_waitcnt vmcnt(0) lgkmcnt(0)\ns_branch Latt')

A.label('Lloader')
VX0, VX1, VWQ = 'v240', 'v241', 'v242'
A(f'v_lshrrev_b32 v2, 3, v0\nv_and_b32 v3, 7, v0\nv_lshrrev_b32 v4, 4, v0\nv_xor_b32 v4, v4, v3')
A(f's_lshl_b32 s13, {sI}, 14\nv_lshlrev_b32 v5, 10, v2\nv_add_u32 v5, s13, v5\nv_lshl_add_u32 {VX0}, v4, 4, v5')
A(f'v_xor_b32 v4, 4, v4\nv_add_u32 v5, 8192, v5\nv_lshl_add_u32 {VX1}, v4, 4, v5')
A(f'v_bfe_u32 v4, v0, 4, 1\nv_lshlrev_b32 v4, 2, v4\nv_xor_b32 v4, v4, v3\nv_lshlrev_b32 v4, 4, v4')
A(f's_mul_i32 s13, {sI}, {16*3072}\nv_mul_u32_u24 v5, 3072, v2\nv_add3_u32 {VWQ}, v5, v4, s13')
sXo, sWo, sLo = 's86', 's87', 's88'
A(f's_lshl_b32 {sXo}, {sT}, 16\ns_lshl_b32 {sWo}, {sSub}, 7\ns_lshl_b32 {sLo}, {sI}, 11')
phys = lambda i: (1 + (i + 3) % 5) * SL
def issue_kv(c):
    A(f's_add_u32 s13, {sXo}, {c*128}\ns_add_u32 m0, {sLo}, {RA + c*8192}'); dma(VX0, SX, 's13')
    A(f's_add_u32 m0, {sLo}, {RA + c*8192 + 1024}'); dma(VX1, SX, 's13')
    for b in range(2):
        for e in range(2):
            A(f's_add_u32 s13, {sWo}, {c*64*3072 + (b+1)*1024 + e*24576}\ns_add_u32 m0, {sLo}, {phys(c) + b*8192 + e*1024}'); dma(VWQ, SWQ, 's13')
def issue_q(it):
    for hh in range(2):
        for e in range(2):
            c = (it - 8) * 2 + hh
            A(f's_add_u32 s13, {sWo}, {c*64*3072 + e*24576}\ns_add_u32 m0, {sLo}, {L_WQ + c*8192 + e*1024}'); dma(VWQ, SWQ, 's13')
issue_kv(0); issue_kv(1)
other_srds()
issue_kv(2)
A(f'v_lshrrev_b32 v2, 2, v0\nv_lshlrev_b32 v2, 7, v2\nv_and_b32 v3, 3, v0\nv_lshl_add_u32 v2, v3, 5, v2\ns_add_u32 s13, {sLo}, {RA}\nv_add_u32 v148, s13, v2')
for r in range(150, 154): A(f'v_mov_b32 v{r}, 0')
def xstats(c):
    A(f'ds_read_b128 v[8:11], v148 offset:{c*8192}\nds_read_b128 v[12:15], v148 offset:{c*8192+16}\ns_waitcnt lgkmcnt(1)')
    for j in range(8):
        if j == 4: A('s_waitcnt lgkmcnt(0)')
        A(f'v_lshlrev_b32 v2, 16, v{8+j}\nv_and_b32 v3, 0xffff0000, v{8+j}')
        A(f'v_add_f32 v150, v150, v2\nv_add_f32 v151, v151, v3\nv_fmac_f32 v152, v2, v2\nv_fmac_f32 v153, v3, v3')
later = {0: 12, 1: 12, 2: 12, 3: 12, 4: 12, 5: 12, 6: 10, 7: 8}
for c in range(8):
    A(f's_waitcnt vmcnt({later[c]})\ns_barrier')
    if c == 0: stamp('s1_c0')
    if c + 3 <= 7: issue_kv(c + 3)
    elif c == 5: issue_q(8)
    elif c == 6: issue_q(9)
    else: issue_q(10); issue_q(11)
    xstats(c)
A('v_add_f32 v150, v150, v151\nv_add_f32 v152, v152, v153')
for qp in ('[1,0,3,2]', '[2,3,0,1]'):
    A(f'v_add_f32_dpp v150, v150, v150 quad_perm:{qp} row_mask:0xf bank_mask:0xf\nv_add_f32_dpp v152, v152, v152 quad_perm:{qp} row_mask:0xf bank_mask:0xf')
A(f'v_mul_f32 v150, {f2u(1/512)}, v150\nv_mul_f32 v152, {f2u(1/512)}, v152\nv_fma_f32 v152, -v150, v150, v152\nv_max_f32 v152, 0, v152')
A(f'v_add_f32 v152, {f2u(1e-5)}, v152\nv_rsq_f32 v152, v152\nv_and_b32 v3, 3, v0\nv_cmp_eq_u32 vcc, 0, v3\nv_mul_f32 v150, v150, v152')
A(f'v_cndmask_b32 v150, v150, v152, vcc\nv_lshrrev_b32 v2, 2, v0\nv_lshlrev_b32 v2, 2, v2\nv_lshl_add_u32 v2, v3, 8, v2\ns_lshl_b32 s13, {sI}, 6\nv_add_u32 v2, s13, v2')
A(f's_mov_b32 exec_lo, 0x33333333\ns_mov_b32 exec_hi, 0x33333333\nds_write_b32 v2, v150 offset:{L_STAT}\ns_mov_b64 exec, -1')
stamp('ld_a')
A('s_waitcnt lgkmcnt(0)\ns_barrier')
aQ = 16
QW = lambda p: 80 + 4 * p
x_frag_addrs(AX)
tr_lane_addr(AW, 128, 8, 'v2', True, sB)
A(f'v_add_u32 {AW}, {L_WQ}, {AW}\nv_mov_b32 {ONES}, 0x3f803f80\nv_mov_b32 v128, 0\nv_mov_b32 v129, 0')
for r in range(16, 32): A(f'v_mov_b32 v{r}, 0')
A(f'v_mov_b32 v2, {L_CNT+8}\nds_read_b32 v3, v2\nv_and_b32 v9, 31, v0\nv_lshlrev_b32 v9, 2, v9\ns_lshl_b32 s13, {sA}, 7\nv_add_u32 v9, s13, v9')
A(f'ds_read_b32 v{RS}, v9 offset:{L_STAT}\nds_read_b32 v{MRS}, v9 offset:{L_STAT+256}\ns_waitcnt lgkmcnt(0)\nv_readfirstlane_b32 {sMode}, v3')
A(f'v_mul_f32 v{RS}, {f2u(CSC)}, v{RS}\nv_mul_f32 v{MRS}, {f2u(CSC)}, v{MRS}')
A('s_waitcnt vmcnt(0)')
lds_inc(L_CNT, 'v2', 'v3')
lds_wait(L_CNT, 4, 'v2', 'v3')
stamp('ld_b')
if OPT['pfa']:
    lx, ly = L(), L()
    A(f'v_lshlrev_b32 v245, 7, v0\ns_cmp_ge_u32 {sI}, 2\ns_cbranch_scc1 {lx}\ns_lshl_b32 s26, {sJ}, 14\ns_lshl_b32 s13, {sI}, 13\ns_add_u32 s26, s26, s13')
    touch(SWO, 's26', 1); A(f's_branch {ly}'); A.label(lx)
    if OPT['pfa'] == 2:
        A(f's_mul_i32 s26, {sJ}, 7680\ns_mul_i32 s13, {sA}, {688*1024}\ns_add_u32 s26, s26, s13')
        touch(SW2, 's26', 1)
    A.label(ly)
def q_reads(g, bank):
    out = []
    for p in range(4):
        out.append(f'ds_read_b128 {v(XF(p)+bank*32,4)}, {AX(p)} offset:{g*8192}')
        for i in range(2): out.append(trs(QW(p) + bank * 32 + 2 * i, AW, g * 8192 + p * 2048 + i * 512))
    return out
for x in q_reads(0, 0): A(x)
for g in range(8):
    bk = g & 1
    A('s_waitcnt lgkmcnt(0)')
    nx = q_reads(g + 1, 1 - bk) if g < 7 else []
    for p in range(4):
        mfma(aQ, QW(p) + bk * 32, XF(p) + bk * 32)
        for x in nx[3*p:3*p+3]: A(x)
    if g == 7: lds_inc(L_CNT + 4, 'v2', 'v3')
    for p in range(4):
        for j in range(4): A(f'v_dot2c_f32_bf16 v{128+(j&1)}, v{QW(p)+bk*32+j}, {ONES}')
A('v_add_f32 v128, v128, v129\nv_mov_b32 v129, v128')
half_sum2('v128', 'v129')
A(f's_lshl_b32 s13, {sW}, 8\ns_add_u32 s13, s13, {L_PR}\nv_lshlrev_b32 v6, 2, v0\nv_add_u32 v6, s13, v6\nds_write_b32 v6, v128')
A(f'v_lshrrev_b32 v7, 5, v0\nv_lshlrev_b32 v7, 4, v7\nv_add_u32 v7, s13, v7\ns_waitcnt lgkmcnt(0)')
for q in range(4): A(f'ds_read_b128 {v(64+4*q,4)}, v7 offset:{32*q}')
A(f's_lshl_b32 s13, {sA}, 12\ns_lshl_b32 s14, {sB}, 11\ns_add_u32 s13, s13, s14\ns_add_u32 s13, s13, {L_Q}\nv_lshlrev_b32 v14, 4, v0\nv_add_u32 v14, s13, v14')
A('s_waitcnt lgkmcnt(0)')
pk_norm(64, aQ, RS, MRS, 156)
A(f'ds_write_b128 v14, v[156:159]\nds_write_b128 v14, v[160:163] offset:1024')
att_masks()
stamp('x2')
A('s_waitcnt lgkmcnt(0)')

A.label('Latt')
KFa = lambda t: 16 + 4 * t
QFa, CL, CF = 52, 56, 72
S1 = lambda t: 88 + 16 * t
sTau = 's20'
VWO = 'v243'
wo_voff(VWO)
A(f's_lshr_b32 s13, {sW}, 2\ns_lshl_b32 s21, {sT}, 1\ns_add_u32 s21, s21, s13')
A(f's_sub_u32 {sTau}, 8, s21\ns_max_i32 {sTau}, {sTau}, 0')
A(f's_lshl_b32 s15, s13, 12\ns_lshl_b32 s16, {sI}, 10\ns_add_u32 s16, s16, s15\ns_add_u32 s16, s16, {L_K}')
A(f'v_lshlrev_b32 v232, 4, v0\nv_add_u32 v233, s16, v232')
A(f's_lshl_b32 s16, {sW}, 10\ns_add_u32 s16, s16, {L_Q}\nv_add_u32 v235, s16, v232')
A(f's_mul_i32 s15, s13, {VT}\ns_mul_i32 s16, {sB}, 2080\ns_add_u32 s16, s16, s15\ns_add_u32 s16, s16, {L_V}')
A(f's_lshl_b32 s17, {sA}, 8\nv_or_b32 v236, s17, v232\nv_mov_b32 v237, 1024\nv_and_b32 v238, 16, v0\nv_cmp_eq_u32 vcc, 0, v238\nv_cndmask_b32 v236, v237, v236, vcc')
A(f'v_add_u32 v236, s16, v236')
A(f's_lshl_b32 s22, s21, 5\ns_lshl_b32 s13, {sSub}, 2\ns_add_u32 s22, s22, s13\ns_add_u32 s22, s22, {sI}')
A(f's_lshl_b32 s27, {sI}, 17\ns_lshl_b32 s13, {sSub}, 7\ns_add_u32 s27, s27, s13\ns_lshl_b32 s28, {sI}, 14\ns_add_u32 s28, s28, {RA}')
for ph in range(3):
    A(f'v_add_u32 v2, {64*ph}, v0\nv_mul_u32_u24 v3, 171, v2\nv_lshrrev_b32 v3, 11, v3\nv_mul_u32_u24 v4, 12, v3\nv_sub_u32 v4, v2, v4')
    A(f'v_mul_u32_u24 v3, 2752, v3\nv_lshl_add_u32 v{8+ph}, v4, 4, v3')
A(f'v_lshlrev_b32 v245, 7, v0')
A('s_barrier')
stamp('kv_ready')
A(f'ds_read_b128 {v(QFa,4)}, v235')
for t in range(8, -1, -1): A(f'ds_read_b128 {v(KFa(t),4)}, v233 offset:{t*4096}')
def wo_dma(e): A(f's_add_u32 s13, s27, {e*8192}\ns_add_u32 m0, s28, {e*1024}'); dma(VWO, SWO, 's13')
def smf(t, dst, cmid):
    c = CL if t == 8 else (CF if t == 0 else cmid)
    mfma(dst, KFa(t), QFa, c)
M0_, M1_ = 'v238', 'v237'
A(f'v_mov_b32 {M0_}, 0xff800000\nv_mov_b32 {M1_}, 0xff800000')
def maxgrp(t):
    sk = L()
    if t < 8: A(f's_cmp_gt_u32 {sTau}, {t}\ns_cbranch_scc1 {sk}')
    for j in range(8):
        m = M0_ if j % 2 == 0 else M1_
        A(f'v_max3_f32 {m}, v{S1(t)+2*j}, v{S1(t)+2*j+1}, {m}')
    if t < 8: A.label(sk)
order = list(range(8, -1, -1))
for i, t in enumerate(order):
    A(f's_waitcnt lgkmcnt({8-i})')
    smf(t, S1(t), '0')
    if i < 8:
        lx = L(); A(f's_cmp_ge_u32 {sW}, 4\ns_cbranch_scc1 {lx}'); wo_dma(2 * i); wo_dma(2 * i + 1); A.label(lx)
    if i == 8: lds_inc(L_CNT + 12, 'v2', 'v3')
    if i >= 2: maxgrp(order[i-2])
VB = lambda t: 184 + 8 * (t % 3)
def vread(t): A(f'ds_read_b128 {v(VB(t),4)}, v236 offset:{t*VT}\nds_read_b128 {v(VB(t)+4,4)}, v236 offset:{t*VT+1040}')
maxgrp(1); maxgrp(0)
A(f'v_max_f32 {M0_}, {M0_}, {M1_}\nv_mov_b32 {M1_}, {M0_}\nv_permlane32_swap_b32 {M0_}, {M1_}\nv_max_f32 {M0_}, {M0_}, {M1_}')
stamp('att_p1')
lnd, lnw = L(), L()
A(f's_cmp_ge_u32 {sW}, 4\ns_cbranch_scc1 {lnd}')
A(f's_cmp_eq_u32 {sM}, 15\ns_cbranch_scc1 {lnw}')
lds_wait(L_CNT + 12, 8, 'v2', 'v3')
A(f's_mul_i32 s16, {sI}, {16*2752}\ns_mul_i32 s13, {sM}, 192\ns_add_u32 s16, s16, s13\ns_mul_i32 s18, {sI}, 3072\ns_add_u32 s18, s18, {RB + 6144}')
for gi in range(4):
    if gi == 3: A(f's_cmp_eq_u32 {sI}, 3\ns_cbranch_scc1 {lnw}')
    for ph in range(3):
        A(f's_add_u32 s13, s16, {gi*64*2752}\ns_add_u32 m0, s18, {gi*12288 + ph*1024}'); dma(f'v{8+ph}', SW1, 's13')
A.label(lnw)
A(f's_cmp_eq_u32 {sI}, 3\ns_cbranch_scc1 {lnd}\ns_mul_i32 s26, {sJ}, 23392\ns_lshl_b32 s13, {sI}, 13\ns_add_u32 s26, s26, s13\ns_add_u32 s26, s26, 660480')
touch(SW1, 's26', 1)
A.label(lnd)
NM, OA = 136, 152
SB_ = lambda t: 88 + 16 * (t % 3)
PB = lambda t: 168 + 8 * (t % 2)
for r in range(16): A(f'v_sub_f32 v{CL+r}, v{CL+r}, {M0_}')
smf(8, SB_(8), NM)
for r in range(16): A(f'v_sub_f32 v{NM+r}, 0, {M0_}')
vread(8); vread(7)
smf(7, SB_(7), NM)
for r in range(16): A(f'v_sub_f32 v{CF+r}, v{CF+r}, {M0_}')
def pv(t, a, first): mfma(OA, VB(t) + 4 * a, PB(t) + 4 * a, '0' if first else None)
tails = {}
for t in order:
    if t < 8:
        tails[t] = L('Ltail')
        A(f's_cmp_gt_u32 {sTau}, {t}\ns_cbranch_scc1 {tails[t]}')
    ex = [f'v_exp_f32 v{SB_(t)+r}, v{SB_(t)+r}' for r in range(16)]
    cv = [f'v_cvt_pk_bf16_f32 v{PB(t)+j}, v{SB_(t)+2*j}, v{SB_(t)+2*j+1}' for j in range(8)]
    seq = ex[0:4] + ['PV0'] + ex[4:6] + cv[0:2] + ex[6:8] + ['PV1'] + ex[8:10] + cv[2:4] + ex[10:12] + ['SM'] + ex[12:16] + cv[4:8]
    for x in seq:
        if x == 'PV0':
            if t < 8: A('s_waitcnt lgkmcnt(2)'); pv(t + 1, 0, t + 1 == 8)
        elif x == 'PV1':
            if t < 8: pv(t + 1, 1, False)
            if t < 8 and t - 1 >= 0: vread(t - 1)
        elif x == 'SM':
            if t - 2 >= 0: smf(t - 2, SB_(t - 2), NM)
        else: A(x)
ldone = L('Lattdone')
A('s_waitcnt lgkmcnt(0)')
pv(0, 0, False); pv(0, 1, False)
for t in range(7, -1, -1):
    A(f's_branch {ldone}')
    A.label(tails[t])
    A('s_waitcnt lgkmcnt(0)')
    pv(t + 1, 0, t + 1 == 8); pv(t + 1, 1, False)
A.label(ldone)
A(f's_lshl_b32 s13, s22, 10\ns_add_u32 s13, s13, {WS_O}\ns_add_u32 s22, s22, {F2}')
A(f'v_rcp_f32 v238, v{OA+8}')
for j in range(4): A(f'v_pk_mul_f32 {v(OA+2*j,2)}, {v(OA+2*j,2)}, v[238:239] op_sel_hi:[1,0]')
for j in range(4): A(f'v_cvt_pk_bf16_f32 v{168+j}, v{OA+2*j}, v{OA+2*j+1}')
dual([f'buffer_store_dwordx4 v[168:171], v232, {SWS}, s13 offen'], OPT['osc'])
A('s_waitcnt vmcnt(0)')
set_flag('s22', 'v6', 'v7')
stamp('att_end')
A(f's_cmp_ge_u32 {sW}, 4\ns_cbranch_scc1 Lloader2')
lds_inc(L_CNT + 16, 'v2', 'v3')
lds_wait(L_CNT + 16, 4, 'v2', 'v3')

A.label('Ls3')
AK, AS = 16, 32
OF = lambda i: 48 + 4 * i
WOF = lambda i, c: 112 + 8 * i + 4 * c
tr_lane_addr('v2', 128, 4, 'v4', True, sB)
A(f's_lshl_b32 s13, {sB}, 15\ns_add_u32 s13, s13, {RA}\nv_add_u32 v2, s13, v2\nv_xor_b32 v3, 64, v2')
for i in range(16):
    for c in range(2):
        for ii in range(2): trd(WOF(i, c) + 2 * ii, 'v2' if c == 0 else 'v3', i * 2048 + ii * 1024)
A(f's_lshl_b32 s13, {sTile}, 5\ns_lshl_b32 s14, {sB}, 4\ns_add_u32 s13, s13, s14\nv_add_u32 v5, s13, v0\nv_lshlrev_b32 v5, 7, v5\nv_add_u32 v5, {WS_FL + F2*128}, v5')
A(f's_lshl_b32 s16, s13, 10\ns_add_u32 s16, s16, {WS_O}\nv_lshlrev_b32 v244, 4, v0')
for q in range(4):
    for j in range(2):
        A(f'v_lshlrev_b32 v{AK+4*q+2*j}, 16, v{HRES+2*q+j}\nv_and_b32 v{AK+4*q+2*j+1}, 0xffff0000, v{HRES+2*q+j}')
A(f's_lshl_b32 s13, {sW}, 12\ns_add_u32 s13, s13, {A_SCR3}\nv_add_u32 v12, s13, v244\ns_xor_b32 s13, {sW}, 2\ns_lshl_b32 s13, s13, 12\ns_add_u32 s13, s13, {A_SCR3}\nv_add_u32 v13, s13, v244')
A(f's_lshl_b32 s13, {sSub}, 1\ns_add_u32 s13, s13, {sB}\ns_lshl_b32 s14, {sTile}, 4\ns_add_u32 s14, s14, s13')
A(f's_lshl_b32 s19, s14, 11\ns_add_u32 s19, s19, {WS_H}\ns_lshl_b32 s17, s14, 8\ns_add_u32 s17, s17, {WS_ST}\ns_add_u32 s18, s14, {F3}\nv_lshlrev_b32 v14, 2, v0')
A(f'v_mov_b32 v15, 0x3f803f80\nv_mov_b32 v8, 0\nv_mov_b32 v9, 0\nv_mov_b32 v10, 0\nv_mov_b32 v11, 0')
A('s_waitcnt lgkmcnt(0)\ns_barrier')
poll('v5', 'v6', 16)
stamp('s3_polled')
def oload(i):
    if i % 4 == 0 and i: A('s_add_u32 s16, s16, 4096')
    A(f'buffer_load_dwordx4 {v(OF(i),4)}, v244, {SWS}, s16 offen offset:{(i%4)*1024} sc1')
issued = OPT['la3']
for i in range(issued): oload(i)
for i in range(16):
    A(f's_waitcnt vmcnt({issued-1-i})')
    mfma(AS, WOF(i, 1), OF(i), '0' if i == 0 else None)
    if issued < 16: oload(issued); issued += 1
    mfma(AK, WOF(i, 0), OF(i))
stamp('s3_mfma')
for q in range(4): A(f'ds_write_b128 v12, {v(AS+4*q,4)} offset:{q*1024}')
A('s_waitcnt lgkmcnt(0)\ns_barrier')
for q in range(4): A(f'ds_read_b128 {v(AS+4*q,4)}, v13 offset:{q*1024}')
for q in range(4):
    A(f's_waitcnt lgkmcnt({3-q})')
    for j in range(2): A(f'v_pk_add_f32 {v(AK+4*q+2*j,2)}, {v(AK+4*q+2*j,2)}, {v(AS+4*q+2*j,2)}')
    for j in range(2): A(f'v_cvt_pk_bf16_f32 v{HRES+2*q+j}, v{AK+4*q+2*j}, v{AK+4*q+2*j+1}')
dual([f'buffer_store_dwordx4 {v(HRES,4)}, v244, {SWS}, s19 offen', f'buffer_store_dwordx4 {v(HRES+4,4)}, v244, {SWS}, s19 offen offset:1024'], OPT['hsc'])
for j in range(8): A(f'v_dot2c_f32_bf16 v{8+(j&1)}, v{HRES+j}, v15\nv_dot2c_f32_bf16 v{10+(j&1)}, v{HRES+j}, v{HRES+j}')
A('v_add_f32 v8, v8, v9\nv_add_f32 v10, v10, v11')
half_sum2('v8', 'v10')
dual([f'buffer_store_dword v8, v14, {SWS}, s17 offen'], OPT['hsc'])
A('s_waitcnt vmcnt(0)')
set_flag('s18', 'v6', 'v7')
stamp('s3_flag')
A('s_barrier')
A(f's_cmp_eq_u32 {sM}, 15\ns_cbranch_scc1 Ls4skip')
AC = lambda b: 16 + 16 * b
HF = lambda k: 64 + 4 * k
BF = lambda s, b: 192 + 8 * (s % 3) + 4 * b
B1T = HF(20)
STT = 216
sT4 = 's25'
A(f's_lshl_b32 {sT4}, {sG}, 2\ns_add_u32 {sT4}, {sT4}, {sW}')
A(f's_lshl_b32 s13, {sT4}, 4\nv_add_u32 v5, s13, v0\nv_lshlrev_b32 v5, 7, v5\nv_add_u32 v5, {WS_FL + F3*128}, v5')
A(f'v_lshrrev_b32 v4, 5, v0\nv_lshlrev_b32 v4, 4, v4\nv_add_u32 v4, {RA}, v4')
for b in range(3):
    for q in range(4):
        A(f'ds_read_b128 {v(AC(b)+4*q,4)}, v4 offset:{A_CSF-RA + b*128 + 32*q}')
        A(f'ds_read_b128 {v(B1T+16*b+4*q,4)}, v4 offset:{A_B1F-RA + b*128 + 32*q}')
tr_lane_addr('v2', 192, 4, 'v4', False)
A(f'v_add_u32 v3, 49152, v2')
def w1rd(ks, b, dst):
    kp = (ks + 2) % 32
    a = 'v2' if kp < 16 else 'v3'
    for ii in range(2): trd(dst + 2 * ii, a, (kp % 16) * 3072 + ii * 1536 + b * 64)
for s in range(2):
    for b in range(2): w1rd(s, b, BF(s, b))
A(f's_lshl_b32 s16, {sT4}, 15\ns_add_u32 s16, s16, {WS_H}\ns_lshl_b32 s17, {sT4}, 12\ns_add_u32 s17, s17, {WS_ST}\nv_lshlrev_b32 v7, 2, v0')
poll('v5', 'v6', 16)
stamp('s4_polled')
for i in range(16): A(f'buffer_load_dword v{STT+i}, v7, {SWS}, s17 offen offset:{i*256} sc1')
def hload(k):
    if k % 4 == 0 and k: A('s_add_u32 s16, s16, 4096')
    A(f'buffer_load_dwordx4 {v(HF(k),4)}, v244, {SWS}, s16 offen offset:{(k%4)*1024} sc1')
issued = OPT['la4']
for k in range(issued): hload(k)
A(f's_mul_i32 s17, {sT4}, 86\ns_mul_i32 s13, {sM}, 6\ns_add_u32 s17, s17, s13\ns_lshl_b32 s17, s17, 10\ns_add_u32 s17, s17, {WS_H1}\ns_add_u32 s19, s17, 4096')
A(f's_lshl_b32 s18, {sT4}, 4\ns_add_u32 s18, s18, {sM}\ns_add_u32 s18, s18, {F4}')
A(f's_waitcnt vmcnt({issued}) lgkmcnt(0)')
for st in (8, 4, 2, 1):
    for i in range(st): A(f'v_add_f32 v{STT+i}, v{STT+i}, v{STT+i+st}')
MEAN, STD, RS4 = 232, 234, 236
A(f'v_mov_b32 v{STT+1}, v{STT}\nv_permlane32_swap_b32 v{STT}, v{STT+1}')
A(f'v_mul_f32 v{MEAN}, {f2u(1/512)}, v{STT}\nv_mul_f32 v{STT+1}, {f2u(1/512)}, v{STT+1}')
A(f'v_fma_f32 v{STT+1}, -v{MEAN}, v{MEAN}, v{STT+1}\nv_max_f32 v{STT+1}, 0, v{STT+1}\nv_add_f32 v{STT+1}, {f2u(1e-5)}, v{STT+1}')
A(f'v_rsq_f32 v{RS4}, v{STT+1}\nv_sqrt_f32 v{STD}, v{STT+1}')
for b in range(3):
    for j in range(8): A(f'v_pk_mul_f32 {v(AC(b)+2*j,2)}, {v(AC(b)+2*j,2)}, {v(MEAN,2)} op_sel_hi:[1,0]')
    for j in range(8): A(f'v_pk_fma_f32 {v(AC(b)+2*j,2)}, {v(B1T+16*b+2*j,2)}, {v(STD,2)}, {v(AC(b)+2*j,2)} op_sel_hi:[1,0,1] neg_lo:[0,0,1] neg_hi:[0,0,1]')
for ks in range(32):
    A(f's_waitcnt vmcnt({issued-1-ks}) lgkmcnt({4 if ks > 0 else 0})')
    mfma(AC(0), BF(ks, 0), HF(ks))
    if ks + 2 < 32: w1rd(ks + 2, 0, BF(ks + 2, 0))
    else: w1rd(2 * (ks - 30), 2, 216 + 8 * (ks - 30))
    mfma(AC(1), BF(ks, 1), HF(ks))
    if ks + 2 < 32: w1rd(ks + 2, 1, BF(ks + 2, 1))
    else: w1rd(2 * (ks - 30) + 1, 2, 220 + 8 * (ks - 30))
    if issued < 32:
        hload(issued); issued += 1
        if issued == 32: A('s_barrier')
stamp('s4_phA')
BF2 = lambda s: 216 + 4 * (s % 4)
def epi_ops(b, dst):
    ops = []
    for j in range(8):
        r0, r1 = AC(b) + 2 * j, AC(b) + 2 * j + 1
        ops += [f'v_max_f32 v{r0}, 0, v{r0}', f'v_max_f32 v{r1}, 0, v{r1}', f'v_mul_f32 v{r0}, v{RS4}, v{r0}', f'v_mul_f32 v{r1}, v{RS4}, v{r1}',
                f'v_mul_f32 v{r0}, v{r0}, v{r0}', f'v_mul_f32 v{r1}, v{r1}, v{r1}', f'v_cvt_pk_bf16_f32 v{dst+j}, v{r0}, v{r1}']
    ops.append(('st', b, dst))
    return ops
def h1store(b, src):
    sk = None
    if b > 0:
        sk = L(); A(f's_cmp_eq_u32 {sM}, 14\ns_cbranch_scc1 {sk}')
    sb = 's17' if b < 2 else 's19'; off = (2 * b % 4) * 1024
    dual([f'buffer_store_dwordx4 {v(src,4)}, v244, {SWS}, {sb} offen offset:{off}', f'buffer_store_dwordx4 {v(src+4,4)}, v244, {SWS}, {sb} offen offset:{off+1024}'], OPT['h1sc'])
    if sk: A.label(sk)
ep = epi_ops(0, 192) + epi_ops(1, 200)
pos = 0
for ks in range(32):
    A(f's_waitcnt lgkmcnt({min(6, 2*(31-ks))})')
    mfma(AC(2), BF2(ks), HF(ks))
    if ks + 4 < 32: w1rd(ks + 4, 2, BF2(ks + 4))
    if ks >= 1:
        for x in ep[pos:pos+4]:
            if isinstance(x, tuple): h1store(x[1], x[2])
            else: A(x)
        pos += 4
assert pos >= len(ep)
stamp('s4_phB')
A('s_barrier')
for j in range(16): A(f'v_max_f32 v{AC(2)+j}, 0, v{AC(2)+j}')
for j in range(8): A(f'v_pk_mul_f32 {v(AC(2)+2*j,2)}, {v(AC(2)+2*j,2)}, {v(RS4,2)} op_sel_hi:[1,0]')
for j in range(8): A(f'v_pk_mul_f32 {v(AC(2)+2*j,2)}, {v(AC(2)+2*j,2)}, {v(AC(2)+2*j,2)}')
for j in range(8): A(f'v_cvt_pk_bf16_f32 v{208+j}, v{AC(2)+2*j}, v{AC(2)+2*j+1}')
h1store(2, 208)
A('s_waitcnt vmcnt(0)')
set_flag('s18', 'v6', 'v7')
stamp('s4_flag')
A('s_branch Ls5')
A.label('Ls4skip')
A('s_barrier')
A('s_barrier')
A.label('Ls5')
NW = 40
GF = lambda s: 48 + 4 * (s % NW)
B5 = lambda s, c: 208 + 8 * (s % 3) + 4 * c
A(f'v_lshrrev_b32 v4, 5, v0\nv_lshlrev_b32 v4, 3, v4\ns_lshl_b32 s13, {sSub}, 7\ns_lshl_b32 s14, {sB}, 6\ns_add_u32 s13, s13, s14')
for q in range(4): A(f'buffer_load_dwordx2 {v(8+2*q,2)}, v4, {SB2}, s13 offen offset:{16*q}')
A(f's_lshl_b32 s13, {sTile}, 4\ns_mul_i32 s14, {sB}, 7\ns_add_u32 s13, s13, s14\nv_add_u32 v5, s13, v0\nv_lshlrev_b32 v5, 7, v5\nv_add_u32 v5, {WS_FL + F4*128}, v5')
A(f's_mul_i32 s16, {sTile}, 86\ns_mul_i32 s13, {sB}, 43\ns_add_u32 s16, s16, s13\ns_lshl_b32 s16, s16, 10\ns_add_u32 s16, s16, {WS_H1}')
tr_lane_addr('v2', 128, 4, 'v4', True, sB)
A(f's_mul_i32 s13, {sB}, 49152\ns_add_u32 s13, s13, {RB}\nv_add_u32 v234, s13, v2\nv_xor_b32 v235, 64, v234')
A(f's_mul_i32 s13, {sB}, 30720\ns_add_u32 s13, s13, {A_W2}\nv_add_u32 v232, s13, v2\nv_xor_b32 v233, 64, v232')
A(f's_lshl_b32 s14, {sA}, 12\ns_add_u32 s13, s13, s14\ns_add_u32 s13, s13, 8192\nv_add_u32 v236, s13, v244')
A(f's_xor_b32 s15, {sB}, 1\ns_mul_i32 s13, s15, 30720\ns_add_u32 s13, s13, s14\ns_add_u32 s13, s13, {A_W2 + 8192}\nv_add_u32 v237, s13, v244')
def w2rd(s):
    for c in range(2):
        if s < 15: a, off = ('v232', 'v233')[c], s * 2048
        elif s < 39: a, off = ('v234', 'v235')[c], (s - 15) * 2048
        else: a, off = ('v232', 'v233')[c], (s - 39) * 2048
        for ii in range(2): trd(B5(s, c) + 2 * ii, a, off + ii * 1024)
w2rd(0); w2rd(1)
poll('v5', 'v6', 8)
stamp('s5_polled')
def gload(s):
    if s % 4 == 0 and s: A('s_add_u32 s16, s16, 4096')
    A(f'buffer_load_dwordx4 {v(GF(s),4)}, v244, {SWS}, s16 offen offset:{(s%4)*1024} sc1')
for s in range(OPT['la5']): gload(s)
for j in range(8):
    A(f'v_lshlrev_b32 v{AK+2*j}, 16, v{8+j}\nv_and_b32 v{AK+2*j+1}, 0xffff0000, v{8+j}')
    A(f'v_lshlrev_b32 v6, 16, v{HRES+j}\nv_and_b32 v7, 0xffff0000, v{HRES+j}')
    A(f'v_add_f32 v{AK+2*j}, v{AK+2*j}, v6\nv_add_f32 v{AK+2*j+1}, v{AK+2*j+1}, v7')
A(f'v_and_b32 v4, 31, v0\nv_lshlrev_b32 v4, 10, v4\nv_lshrrev_b32 v5, 5, v0\nv_lshl_add_u32 v4, v5, 4, v4')
issued = OPT['la5']
def w2rd1(s, c):
    if s < 15: a, off = ('v232', 'v233')[c], s * 2048
    elif s < 39: a, off = ('v234', 'v235')[c], (s - 15) * 2048
    else: a, off = ('v232', 'v233')[c], (s - 39) * 2048
    for ii in range(2): trd(B5(s, c) + 2 * ii, a, off + ii * 1024)
for s in range(43):
    A(f's_waitcnt vmcnt({issued-1-s}) lgkmcnt({4 if s < 42 else 0})')
    if s == 2: A('s_waitcnt lgkmcnt(0)\ns_barrier')
    if s == 36: A('s_barrier')
    mfma(AS, B5(s, 1), GF(s), '0' if s == 0 else None)
    if s + 2 < 43: w2rd1(s + 2, 0)
    mfma(AK, B5(s, 0), GF(s))
    if s + 2 < 43: w2rd1(s + 2, 1)
    if issued < 43: gload(issued); issued += 1
stamp('s5_mfma')
for q in range(4): A(f'ds_write_b128 v236, {v(AS+4*q,4)} offset:{q*1024}')
A('s_waitcnt lgkmcnt(0)\ns_barrier')
for q in range(4): A(f'ds_read_b128 {v(AS+4*q,4)}, v237 offset:{q*1024}')
for q in range(4):
    A(f's_waitcnt lgkmcnt({3-q})')
    for j in range(2): A(f'v_pk_add_f32 {v(AK+4*q+2*j,2)}, {v(AK+4*q+2*j,2)}, {v(AS+4*q+2*j,2)}')
    for j in range(2): A(f'v_cvt_pk_bf16_f32 v{8+2*q+j}, v{AK+4*q+2*j}, v{AK+4*q+2*j+1}')
    if q % 2:
        b = 8 + 2 * q - 2
        A(f'v_permlane32_swap_b32 v{b}, v{b+2}\nv_permlane32_swap_b32 v{b+1}, v{b+3}')
        A(f'buffer_store_dwordx4 {v(b,4)}, v4, {SOUT}, s24 offen offset:{(q//2)*32}' + (' sc1' if OPT['outsc'] == 1 else (' nt' if OPT['outsc'] == 2 else '')))
stamp('end')
if OPT['impure']:
    A(f's_cmp_lg_u32 {sMode}, 0\ns_cbranch_scc1 Lexit')
    OPT['until'] = 150000
if OPT['until']:
    A.label('Lspin')
    A(f's_memtime s[88:89]\ns_waitcnt lgkmcnt(0)\ns_sub_u32 s88, s88, s84\ns_cmp_lt_u32 s88, {OPT["until"]}\ns_cbranch_scc1 Lspin')
A('s_endpgm')

def wb(level):
    if OPT['wbl2'] == 1 and level == 2:
        lx = L(); A(f's_cmp_lg_u32 {sI}, 0\ns_cbranch_scc1 {lx}\nbuffer_wbl2 sc1'); A.label(lx)
    if (OPT['wbl2'] == 2 and level == 2) or OPT['wbl2'] == 3:
        lx = L(); A(f's_cmp_lg_u32 {sJ}, 15\ns_cbranch_scc1 {lx}\ns_cmp_lg_u32 {sI}, 0\ns_cbranch_scc1 {lx}\nbuffer_wbl2 sc1'); A.label(lx)
def ctouch(lab_from, nm):
    if not OPT['ctouch']: return
    A(f's_getpc_b64 s[10:11]'); A.label(nm)
    A(f's_mov_b32 s13, {nm}-{lab_from}\ns_cmp_eq_u32 {sI}, 1\ns_cselect_b32 s13, {nm}-Lcodeend+8192, s13\ns_sub_u32 s10, s10, s13\ns_subb_u32 s11, s11, 0')
    A(f'global_load_dword v239, v245, s[10:11]')
A.label('Lloader2')
lct = L(); A(f's_cmp_ge_u32 {sI}, 2\ns_cbranch_scc1 {lct}'); ctouch('Ls3', 'Lct1'); A.label(lct)
A('s_barrier')
lsk1 = L()
A(f's_cmp_eq_u32 {sM}, 15\ns_cbranch_scc1 {lsk1}')
A(f's_mul_i32 s16, {sI}, {16*2752}\ns_mul_i32 s13, {sM}, 192\ns_add_u32 s16, s16, s13\ns_mul_i32 s18, {sI}, 3072')
for gi in range(3):
    for ph in range(3):
        A(f's_add_u32 s13, s16, {(15+4*gi)*16*2752}\ns_add_u32 m0, s18, {RB + (17+4*gi)*3072 + ph*1024}'); dma(f'v{8+ph}', SW1, 's13')
A(f's_add_u32 s14, {sI}, 29\ns_and_b32 s14, s14, 31\ns_mul_i32 s14, s14, 3072')
for ph in range(3):
    A(f's_add_u32 s13, s16, {27*16*2752}\ns_add_u32 m0, s14, {RB + ph*1024}'); dma(f'v{8+ph}', SW1, 's13')
A(f's_cmp_lg_u32 {sI}, 0\ns_cbranch_scc1 {lsk1}')
for ph in range(3):
    A(f's_add_u32 s13, s16, {31*16*2752}\ns_mov_b32 m0, {RB + 3072 + ph*1024}'); dma(f'v{8+ph}', SW1, 's13')
A.label(lsk1)
A(f's_mul_i32 s13, {sM}, 192\nv_lshlrev_b32 v2, 1, v0\nbuffer_load_ushort v12, v2, {SB1}, s13 offen\nbuffer_load_ushort v13, v2, {SB1}, s13 offen offset:128')
A(f'v_mov_b32 v2, 0\nv_mov_b32 v3, {RA + 3072}\nds_write_b32 v3, v2')
tr_lane_addr('v2', 192, 4, 'v4', False)
A(f's_mul_i32 s13, {sI}, {128*192}\nv_add_u32 v2, s13, v2\nv_mov_b32 v3, 0x3f803f80')
for r in range(16, 22): A(f'v_mov_b32 v{r}, 0')
A('s_waitcnt vmcnt(0) lgkmcnt(0)\ns_barrier')
stamp('ld_c')
for half in range(2):
    for s in range(4):
        for b in range(3):
            for ii in range(2): trd(32 + 12 * s + 4 * b + 2 * ii, 'v2', (4 * half + s) * 3072 + ii * 1536 + b * 64)
    A('s_waitcnt lgkmcnt(0)')
    for s in range(4):
        for j in range(4):
            for b in range(3): A(f'v_dot2c_f32_bf16 v{16+2*b+(j&1)}, v{32+12*s+4*b+j}, v3')
A('v_add_f32 v16, v16, v17\nv_add_f32 v18, v18, v19\nv_add_f32 v20, v20, v21\nv_mov_b32 v21, v20')
half_sum2('v16', 'v18'); half_sum2('v20', 'v21')
A(f's_mul_i32 s13, {sI}, 384\ns_add_u32 s13, s13, {A_PART}\nv_lshlrev_b32 v4, 2, v0\nv_add_u32 v5, s13, v4')
A('ds_write_b32 v5, v16\ns_mov_b32 exec_hi, 0\nds_write_b32 v5, v20 offset:256\ns_mov_b32 exec_hi, -1')
A('s_waitcnt lgkmcnt(0)')
lds_inc(RA + 3072, 'v6', 'v7')
lds_wait(RA + 3072, 4, 'v6', 'v7')
A(f'v_add_u32 v4, {RA}, v4')
for i in range(4): A(f'ds_read_b32 v{16+i}, v4 offset:{i*384}\nds_read_b32 v{20+i}, v4 offset:{i*384+256}')
A('v_lshlrev_b32 v12, 16, v12\nv_lshlrev_b32 v13, 16, v13\ns_waitcnt lgkmcnt(0)')
A('v_add_f32 v16, v16, v17\nv_add_f32 v18, v18, v19\nv_add_f32 v20, v20, v21\nv_add_f32 v22, v22, v23\nv_add_f32 v16, v16, v18\nv_add_f32 v20, v20, v22')
A(f'ds_write_b32 v4, v16 offset:{A_CSF-RA}\nds_write_b32 v4, v12 offset:{A_B1F-RA}\ns_mov_b32 exec_hi, 0')
A(f'ds_write_b32 v4, v20 offset:{A_CSF-RA+256}\nds_write_b32 v4, v13 offset:{A_B1F-RA+256}\ns_mov_b32 exec_hi, -1')
A('s_waitcnt lgkmcnt(0)\ns_barrier')
A(f's_mul_i32 s16, {sB}, {43*16*1024}\ns_lshl_b32 s13, {sA}, 13\ns_add_u32 s16, s16, s13\ns_lshl_b32 s13, {sSub}, 7\ns_add_u32 s16, s16, s13')
def w2loop(n, ldsbase, khstride):
    A(f's_mul_i32 s18, {sB}, {khstride}\ns_lshl_b32 s13, {sA}, 10\ns_add_u32 s18, s18, s13\ns_add_u32 s18, s18, {ldsbase}\ns_mov_b32 s19, {n}')
    lp = L(); A.label(lp)
    A('s_mov_b32 m0, s18'); dma(VWO, SW2, 's16')
    A(f's_add_u32 s16, s16, 16384\ns_add_u32 s18, s18, 2048\ns_sub_u32 s19, s19, 1\ns_cmp_lg_u32 s19, 0\ns_cbranch_scc1 {lp}')
def p2touch(n, start, lbl):
    A(f's_mul_i32 s26, {sA}, {688*1024}\ns_lshl_b32 s13, {sB}, 13\ns_add_u32 s26, s26, s13\ns_and_b32 s13, {sG}, 1\ns_lshl_b32 s13, s13, 14\ns_add_u32 s26, s26, s13')
    A(f's_add_u32 s26, s26, {240*1024 + start}\ns_mov_b32 s19, {n}\nv_lshlrev_b32 v245, 7, v0')
    A.label(lbl)
    A(f'buffer_load_dword v239, v245, {SW2}, s26 offen\ns_add_u32 s26, s26, 32768\ns_sub_u32 s19, s19, 1\ns_cmp_lg_u32 s19, 0\ns_cbranch_scc1 {lbl}')
if OPT['p1pos'] == 0: w2loop(15, A_W2, 30720)
if OPT['pfc']:
    lx = L(); A(f's_cmp_lg_u32 {sM}, 15\ns_cbranch_scc1 {lx}'); p2touch(9 if OPT['pfd'] else 14, 0, L()); A.label(lx)
wb(1)
A('s_barrier')
if OPT['pfd']:
    lx = L(); A(f's_cmp_lg_u32 {sM}, 14\ns_cbranch_scc1 {lx}'); p2touch(5, 9*32768, L()); A.label(lx)
if OPT['p1pos'] == 1: w2loop(15, A_W2, 30720)
A('s_waitcnt vmcnt(0)\ns_barrier')
w2loop(24, RB, 49152)
A('s_waitcnt vmcnt(0)')
stamp('ld_d')
A('s_barrier')
w2loop(4, A_W2, 30720)
wb(2)
A('s_waitcnt vmcnt(0)\ns_barrier')
A('s_barrier')
A.label('Lexit')
A('s_endpgm')
A.label('Lcodeend')

n = A.fix_hazards()
assert check_async(A, frozenset({'v239', 's90'})) == 0
hdr = open('cdna_kernels/' + NAME + '.s.ref').read().split('; Override')[0]
out = hdr + f'; @launch grid=(256,1,1) block=(512,1,1) lds=163840\n.amdgcn_target "amdgcn-amd-amdhsa--gfx950"\n.text\n.globl {NAME}_kernel\n.p2align 8\n.type {NAME}_kernel,@function\n{NAME}_kernel:\n'
out += A.text()
out += f'''.fill 64, 4, 0xbf800000
.section .rodata,"a"
.p2align 6
.amdhsa_kernel {NAME}_kernel
  .amdhsa_next_free_vgpr 256
  .amdhsa_next_free_sgpr 102
  .amdhsa_accum_offset 256
  .amdhsa_group_segment_fixed_size 0
  .amdhsa_kernarg_size 88
  .amdhsa_user_sgpr_count 2
  .amdhsa_user_sgpr_kernarg_segment_ptr 1
  .amdhsa_system_sgpr_workgroup_id_x 1
  .amdhsa_float_denorm_mode_32 3
.end_amdhsa_kernel
'''
open(sys.argv[1], 'w').write(out)
print('nops inserted:', n, 'instructions:', len(A.ins))
```

```python
import re

def _regs(tok):
    tok = tok.strip()
    neg = tok.lstrip('-')
    m = re.fullmatch(r'(?:abs\()?\|?([vsa])(\d+)\|?\)?', neg)
    if m: return {m.group(1) + m.group(2)}
    m = re.fullmatch(r'([vsa])\[(\d+):(\d+)\]', neg)
    if m: return {m.group(1) + str(i) for i in range(int(m.group(2)), int(m.group(3)) + 1)}
    if neg in ('vcc',): return {'vcc_lo', 'vcc_hi'}
    if neg in ('exec',): return {'exec_lo', 'exec_hi'}
    if neg in ('vcc_lo', 'vcc_hi', 'exec_lo', 'exec_hi', 'm0'): return {neg}
    return set()

TRANS = ('v_exp_f32', 'v_log_f32', 'v_rcp_f32', 'v_rsq_f32', 'v_sqrt_f32', 'v_sin_f32', 'v_cos_f32')

class Ins:
    def __init__(self, text):
        self.text = text
        t = text.split(';')[0].strip()
        self.label = None
        self.op = None
        self.w = set(); self.r = set(); self.srcC = set(); self.ab = set(); self.data = set()
        self.kind = 'other'
        if t.endswith(':'):
            self.label = t[:-1]; self.kind = 'label'; return
        if t.startswith('.') or not t:
            self.kind = 'dir'; return
        parts = t.split(None, 1)
        op = self.op = parts[0]
        rest = parts[1] if len(parts) > 1 else ''
        ops = [o.strip() for o in rest.split(',')] if rest else []
        mods = ''
        txt = rest
        txt = re.sub(r'\b(op_sel|op_sel_hi|neg_lo|neg_hi|quad_perm):\[[^\]]*\]', lambda m: m.group(0).replace(',', '|'), txt)
        ops = [o.strip() for o in txt.split(',')] if txt else []
        if ops:
            last = ops[-1].split(None, 1)
            ops[-1] = last[0]
            mods = last[1] if len(last) > 1 else ''
        self.ops = ops; self.mods = mods
        R = _regs
        if op.startswith('v_mfma'):
            self.kind = 'mfma'
            self.w = R(ops[0]); self.ab = R(ops[1]) | R(ops[2]); self.srcC = R(ops[3])
            self.r = self.ab | self.srcC
            self.passes = 8 if '32x32x16' in op else (4 if '16x16x32' in op else 2)
        elif op.startswith('v_cmp'):
            self.kind = 'valu'; self.w = R(ops[0]); self.r = set().union(*[R(o) for o in ops[1:]])
            if op.startswith('v_cmpx'): self.w |= {'exec_lo', 'exec_hi'}
        elif op.startswith('v_readfirstlane') or op.startswith('v_readlane'):
            self.kind = 'valu'; self.w = R(ops[0]); self.r = set().union(*[R(o) for o in ops[1:]])
        elif op.startswith('v_permlane'):
            self.kind = 'valu'; self.w = R(ops[0]) | R(ops[1]); self.r = set(self.w)
        elif op.startswith('v_add_co') or op.startswith('v_addc_co') or op.startswith('v_sub_co'):
            self.kind = 'valu'; self.w = R(ops[0]) | R(ops[1]); self.r = set().union(*[R(o) for o in ops[2:]])
        elif op.startswith('v_'):
            self.kind = 'valu'; self.w = R(ops[0]); self.r = set().union(set(), *[R(o) for o in ops[1:]])
            if op.startswith(('v_fmac', 'v_dot2c', 'v_writelane')): self.r |= self.w
            if op.startswith('v_cndmask') and len(ops) == 3: self.r |= {'vcc_lo', 'vcc_hi'}
            if op == 'v_nop': self.w = set()
        elif op.startswith('ds_read') or op.startswith('ds_bperm') or op.startswith('ds_swizzle'):
            self.kind = 'ds'; self.w = R(ops[0]); self.r = set().union(*[R(o) for o in ops[1:]])
        elif op.startswith('ds_'):
            self.kind = 'ds'; self.r = set().union(*[R(o) for o in ops])
        elif op.startswith('buffer_load') or op.startswith('global_load'):
            self.kind = 'vmem'
            if ' lds' in (' ' + mods) or 'load_lds' in op:
                self.r = set().union(*[R(o) for o in ops]) | {'m0'}; self.ldsdma = True
            else:
                self.w = R(ops[0]); self.r = set().union(*[R(o) for o in ops[1:]])
        elif op.startswith('buffer_store') or op.startswith('buffer_atomic'):
            self.kind = 'vmem'; self.r = set().union(*[R(o) for o in ops]); self.data = R(ops[0])
        elif op.startswith('global_store') or op.startswith('global_atomic'):
            self.kind = 'vmem'; self.r = set().union(*[R(o) for o in ops]); self.data = R(ops[1])
        elif op in ('buffer_wbl2', 'buffer_inv'):
            self.kind = 'vmem'
        elif op.startswith('s_'):
            self.kind = 'salu'
            if op.startswith(('s_cmp', 's_cbranch', 's_branch', 's_waitcnt', 's_barrier', 's_nop', 's_endpgm', 's_sleep', 's_setprio')):
                self.r = set().union(set(), *[R(o) for o in ops])
                if 'vcc' in op: self.r |= {'vcc_lo', 'vcc_hi'}
                if 'exec' in op: self.r |= {'exec_lo', 'exec_hi'}
            else:
                self.w = R(ops[0]); self.r = set().union(set(), *[R(o) for o in ops[1:]])
                if 'saveexec' in op: self.w |= {'exec_lo', 'exec_hi'}
        else:
            raise ValueError('unknown instruction ' + text)
    def states(self):
        if self.kind in ('label', 'dir'): return 0
        if self.op == 's_nop': return int(self.ops[0], 0) + 1
        return 1
    def is_trans(self): return self.op is not None and self.op.split('_e')[0] in TRANS
    def is_dot(self): return self.op is not None and self.op.startswith('v_dot')

def isv(rs): return {x for x in rs if x[0] in 'va' and x[1:].isdigit()}
def iss(rs): return {x for x in rs if (x[0] == 's' and x[1:].isdigit()) or x.startswith('vcc')}

def need(p, c):
    n = 0
    if p.kind == 'valu':
        pw_v = isv(p.w); pw_s = iss(p.w)
        if c.kind == 'mfma' and pw_v & c.r: n = max(n, 2)
        if c.kind == 'mfma' and ({'exec_lo', 'exec_hi'} & p.w): n = max(n, 4)
        if c.kind == 'vmem' and pw_s & c.r: n = max(n, 5)
        if c.kind == 'valu':
            if pw_s & c.r: n = max(n, 4 if c.op.startswith(('v_readlane', 'v_writelane')) else 2)
            if c.op.startswith(('v_readfirstlane', 'v_readlane')) and pw_v & c.r: n = max(n, 1)
            if c.op.startswith('v_permlane') and pw_v & c.r: n = max(n, 2)
            if 'dpp' in c.op or 'row_' in c.mods or 'quad_perm' in c.mods:
                if pw_v & c.r: n = max(n, 2)
            if p.is_trans() and pw_v & c.r: n = max(n, 1)
            if p.is_dot() and (pw_v & (c.r | c.w)):
                same_acc = c.op == p.op and not (pw_v & (_regs(c.ops[1]) | _regs(c.ops[2])))
                if not same_acc: n = max(n, 3)
            if ('op_sel' in p.mods and not p.op.startswith('v_pk')) or 'sdwa' in p.op or 'dst_sel' in p.mods:
                if pw_v & (c.r | c.w): n = max(n, 1)
        if p.is_dot() and c.kind in ('ds', 'vmem', 'mfma') and pw_v & c.r: n = max(n, 3)
        if p.is_trans() and c.kind in ('ds', 'vmem', 'mfma') and pw_v & c.r: n = max(n, 2)
        if c.kind == 'salu' and pw_s & c.r: n = max(n, 1)
    if p.kind == 'mfma':
        P = p.passes
        tab_rd = {2: 5, 4: 8, 8: 12}[P]
        if c.kind == 'mfma':
            if p.w & c.ab: n = max(n, tab_rd)
            if p.w & c.srcC:
                if c.srcC == p.w and c.passes == P: n = max(n, 2 if P == 2 else 0)
                else: n = max(n, {2: 4, 4: 6, 8: 10}[P])
            if (p.w & c.w) and not (p.w & c.srcC): n = max(n, tab_rd)
        elif c.kind in ('valu', 'ds', 'vmem'):
            if p.w & (c.r | c.w): n = max(n, tab_rd)
            if c.kind == 'valu' and (p.srcC & c.w): n = max(n, {2: 1, 4: 3, 8: 7}[P])
            if c.kind in ('ds', 'vmem') and (p.srcC & c.w): n = max(n, {2: 1, 4: 3, 8: 7}[P])
    if p.kind == 'vmem' and len(p.data) >= 3:
        if c.w & p.data: n = max(n, 2 if c.kind == 'valu' else 1)
    if p.kind == 'salu' and 'm0' in p.w and c.kind == 'vmem' and getattr(c, 'ldsdma', False): n = max(n, 1)
    if p.kind == 'salu' and ({'exec_lo', 'exec_hi'} & p.w) and c.kind == 'valu' and c.op.startswith('v_permlane'): n = max(n, 1)
    return n

class Asm:
    def __init__(self): self.ins = []
    def __call__(self, text):
        for line in text.split('\n'):
            line = line.strip()
            if line and not line.startswith(';'): self.ins.append(Ins(line))
    def label(self, l): self.ins.append(Ins(l + ':'))
    def fix_hazards(self, maxd=20):
        total = 0
        while True:
            ins = self.ins
            labels = {x.label: i for i, x in enumerate(ins) if x.label}
            preds = [[] for _ in ins]
            for i, x in enumerate(ins):
                if i + 1 < len(ins) and not (x.op in ('s_branch', 's_endpgm')): preds[i + 1].append(i)
                if x.op and (x.op.startswith('s_cbranch') or x.op == 's_branch'):
                    preds[labels[x.ops[0]]].append(i)
            extra = [0] * len(ins)
            for i, c in enumerate(ins):
                if c.kind in ('label', 'dir'): continue
                short = 0
                stack = [(p, 0) for p in preds[i]]; seen = {}
                while stack:
                    j, d = stack.pop()
                    if d >= maxd or seen.get(j, 99) <= d: continue
                    seen[j] = d
                    p = ins[j]
                    if p.kind not in ('label', 'dir'):
                        nn = need(p, c)
                        if nn > d: short = max(short, nn - d)
                    for q in preds[j]: stack.append((q, d + p.states() + extra[j]))
                extra[i] = short
            n = sum(extra)
            if n == 0: return total
            total += n
            out = []
            for i, x in enumerate(ins):
                k = extra[i]
                while k > 0:
                    t = min(k, 16); out.append(Ins(f's_nop {t-1}')); k -= t
                out.append(x)
            self.ins = out
    def text(self):
        out = []
        for x in self.ins:
            out.append(x.text if x.kind == 'label' else '    ' + x.text)
        return '\n'.join(out) + '\n'

def check_async(asm, ignore=frozenset()):
    import sys
    sys.setrecursionlimit(100000)
    ins = asm.ins
    labels = {x.label: i for i, x in enumerate(ins) if x.label}
    seen = set(); problems = {}
    stack = [(0, (), ())]
    while stack:
        i, vm, lg = stack.pop()
        while i < len(ins):
            key = (i, vm, lg)
            if key in seen: break
            seen.add(key)
            x = ins[i]
            if x.kind in ('label', 'dir'): i += 1; continue
            if x.op == 's_waitcnt':
                t = x.text
                m = re.search(r'vmcnt\((\d+)\)', t)
                if m: n = int(m.group(1)); vm = vm[len(vm) - n:] if n < len(vm) else vm; vm = vm if n else ()
                m = re.search(r'lgkmcnt\((\d+)\)', t)
                if m:
                    n = int(m.group(1))
                    if n == 0: lg = ()
                    elif not any(e[0] == 's' for e in lg): lg = lg[len(lg) - n:] if n < len(lg) else lg
                i += 1; continue
            touched = (x.r | x.w) - ignore
            for q in (vm, lg):
                for e in q:
                    if e[1] & touched and e[2] != i:
                        problems.setdefault((i, e[2]), (x.text, ins[e[2]].text))
            if x.kind == 'vmem': vm = (vm + (('v', frozenset(x.w - ignore), i if (x.w - ignore) else -1),))[-64:]
            elif x.kind == 'ds': lg = (lg + (('d', frozenset(x.w), i if x.w else -1),))[-40:]
            elif x.op.startswith(('s_load', 's_mem')):
                e = ('s', frozenset(x.w - ignore), i if (x.w - ignore) else -1)
                if e not in lg: lg = lg + (e,)
            while vm and not vm[0][1]: vm = vm[1:]
            while lg and not lg[0][1] and lg[0][0] != 's': lg = lg[1:]
            if x.op == 's_endpgm': break
            if x.op == 's_branch': i = labels[x.ops[0]]; continue
            if x.op.startswith('s_cbranch'): stack.append((labels[x.ops[0]], vm, lg))
            i += 1
        if len(seen) > 1500000: print('check_async: state explosion'); break
    for (i, j), (a, b) in sorted(problems.items())[:12]: print(f'ASYNC HAZARD: [{i}] {a}   <- pending [{j}] {b}')
    return len(problems)
```

```python
import sys, math, struct
from emit import Asm, check_async
NAME = "sequential_preLN__sliding_block__dense_activation_squared_relu__prompt"
OPT = dict(stamps=0, until=0, fast=1, pf=1, wbl2=0, outsc=0, la3=12, la4=12, la5=16, pfa=1, pfc=1, pfd=0, p1pos=0, nt=0, hold=-1, holdt=40000, impure=0, tlb=1, ctouch=1, h1sc=1, hsc=1, osc=1, otouch=0, rot=1, mall=1, p1t=1, kfirst=1, ilv4=3, rt=0, mallq=0, mallat=-1, vpos=1, wol=2, bpat=10, p1a=1, w1t=0, thr=0x5f800000, noduty=0, prio=1, m15a=3, zrow=1, r3=0, lay=1, dt=0, qlate=0, kvf=0)
for a in sys.argv[2:]:
    k, v_ = a.split('='); assert k in OPT, k; OPT[k] = int(v_, 0)

WS_KV, WS_O, WS_H, WS_ST, WS_H1, WS_FL = 0x0, 0x400000, 0x600000, 0x800000, 0x900000, 0x1000000
WS_STAMP = 0x2000000
F1, F2, F3, F4 = 0, 64*16, 64*48, 64*64
NFL = 28
RB, RA = 0, 98304
SL = 16384
L_STAT, L_CNT, L_PR = 0, 512, 1024
L_Q, L_K, L_V, VI = 4096, 12288, 53248, 1056
VT = 4 * VI
L_WQ = 2 * SL
A_B2F = RA + 3328
A_PART, A_AP, A_W2, A_SCR3 = RA, RA + 1536, RA + 4096, RA + 4096
TIMEOUT = 400000
CSC = 0.25 * math.log2(math.e)
def f2u(x): return hex(struct.unpack('<I', struct.pack('<f', x))[0])

sW, sT, sSub, sG, sM = 's3', 's4', 's5', 's6', 's7'
SX, SWQ, SWO, SW1, SB1, SW2, SB2, SOUT, SWS, SDBG = [f's[{b}:{b+3}]' for b in range(40, 80, 4)]
sA, sB, sI, sMode, sJ = 's80', 's81', 's82', 's83', 's38'
def v(a, n=1): return f'v{a}' if n == 1 else f'v[{a}:{a+n-1}]'

A = Asm()
uid = [0]
def L(p='L'):
    uid[0] += 1; return f'{p}{uid[0]}'
STAMP_NAMES = ['start', 's1_c0', 's1_loop_end', 's1_bs1', 's1_stored', 's1_flag', 'kv_ready', 'att_p1', 'att_end', 'o_flag',
               's3_polled', 's3_mfma', 's3_flag', 's4_polled', 's4_phA', 's4_phB', 's4_flag', 's5_polled', 's5_mfma', 'end',
               'ld_a', 'ld_b', 'ld_c', 'ld_d', 'x0', 'x1', 'x2', 'x3', 'x4', 'x5', 'x6', 'x7']
SID = {n: i for i, n in enumerate(STAMP_NAMES)}
def stamp(name):
    if OPT['hold'] == SID[name]:
        lb = L('Lhold'); A.label(lb)
        A(f's_memtime s[92:93]\ns_waitcnt lgkmcnt(0)\ns_sub_u32 s92, s92, s84\ns_cmp_lt_u32 s92, {OPT["holdt"]}\ns_cbranch_scc1 {lb}')
    if not OPT['stamps']: return
    A(f'{"s_memrealtime" if OPT["rt"] else "s_memtime"} s[98:99]\ns_waitcnt lgkmcnt(0)\nv_mov_b32 v247, s98\nv_mov_b32 v246, s97\ns_mov_b64 s[94:95], exec\ns_mov_b64 exec, 1')
    A(f'buffer_store_dword v247, v246, {SWS}, 0 offen offset:{4*SID[name]}\ns_mov_b64 exec, s[94:95]')

def poll(vaddr, vtmp, nlanes):
    lp, dn = L('Lpoll'), L('Lpd')
    A(f's_mov_b32 exec_lo, {hex((1 << nlanes) - 1)}\ns_mov_b32 exec_hi, 0\ns_mov_b32 s8, 0')
    A.label(lp)
    A(f'buffer_load_dword {vtmp}, {vaddr}, {SWS}, 0 offen sc1\ns_add_u32 s8, s8, 1\ns_waitcnt vmcnt(0)')
    A(f'v_cmp_eq_u32 vcc, 0, {vtmp}\ns_cmp_gt_u32 s8, {TIMEOUT}\ns_cbranch_scc1 {dn}\ns_cbranch_vccnz {lp}')
    A.label(dn)
    A('s_mov_b64 exec, -1')
def lds_wait(off, want, va, vt):
    lp, dn = L('Llw'), L('Llwd')
    A(f'v_mov_b32 {va}, {off}\ns_mov_b32 s8, 0')
    A.label(lp)
    A(f'ds_read_b32 {vt}, {va}\ns_add_u32 s8, s8, 1\ns_waitcnt lgkmcnt(0)\nv_readfirstlane_b32 s9, {vt}')
    A(f's_cmp_gt_u32 s8, {TIMEOUT*4}\ns_cbranch_scc1 {dn}\ns_cmp_lt_u32 s9, {want}\ns_cbranch_scc1 {lp}')
    A.label(dn)
def lds_inc(off, va, vt):
    A(f'v_mov_b32 {va}, {off}\nv_mov_b32 {vt}, 1\ns_mov_b64 exec, 1\nds_add_u32 {va}, {vt}\ns_mov_b64 exec, -1')
def dual(lines, always_slow=False):
    if always_slow or not OPT['fast']:
        for x in lines: A(x + ' sc1')
        return
    ls, ld = L('Lsl'), L('Lsd')
    A(f's_cmp_eq_u32 {sMode}, 0\ns_cbranch_scc1 {ls}')
    for x in lines: A(x + ['', ' nt', ' sc0', ' sc0 nt'][OPT['nt']])
    A(f's_branch {ld}'); A.label(ls)
    for x in lines: A(x + ' sc1')
    A.label(ld)
def set_flag(sidx, vt0, vt1, slow=False):
    A(f's_lshl_b32 s9, {sidx}, 7\ns_add_u32 s9, s9, {WS_FL}\nv_mov_b32 {vt0}, s9\nv_mov_b32 {vt1}, 1\ns_mov_b64 exec, 1')
    dual([f'buffer_store_dword {vt1}, {vt0}, {SWS}, 0 offen'], slow)
    A('s_mov_b64 exec, -1')
def tr_lane_addr(dst, rowstride, hrows, tmp, swz=True, flip=None):
    A(f'v_lshrrev_b32 {dst}, 5, v0\nv_mul_u32_u24 {dst}, {hrows}, {dst}\nv_bfe_u32 {tmp}, v0, 2, 2\nv_add_u32 {dst}, {dst}, {tmp}')
    A(f'v_mul_u32_u24 {dst}, {rowstride}, {dst}')
    if swz:
        A(f'v_bfe_u32 {tmp}, v0, 3, 1')
        if flip: A(f'v_xor_b32 {tmp}, {flip}, {tmp}')
        A(f'v_lshl_add_u32 {dst}, {tmp}, 6, {dst}')
    A(f'v_bfe_u32 {tmp}, v0, 4, 1\nv_lshl_add_u32 {dst}, {tmp}, 5, {dst}')
    A(f'v_and_b32 {tmp}, 3, v0\nv_lshl_add_u32 {dst}, {tmp}, 3, {dst}')
MF = 'v_mfma_f32_32x32x16_bf16'
def mfs(d, a, b, c=None):
    cs = v(d, 16) if c is None else (c if isinstance(c, str) else v(c, 16))
    return f'{MF} {v(d,16)}, {v(a,4)}, {v(b,4)}, {cs}'
def mfma(d, a, b, c=None): A(mfs(d, a, b, c))
def trs(d, addr, off): return f'ds_read_b64_tr_b16 {v(d,2)}, {addr} offset:{off}'
def trd(d, addr, off): A(trs(d, addr, off))
def dma(voff, srd, soff, sc=''): A(f'buffer_load_dwordx4 {voff}, {srd}, {soff} offen{sc} lds')
def half_sum2(a, b): A(f'v_permlane32_swap_b32 {a}, {b}\nv_add_f32 {a}, {a}, {b}')
def att_masks():
    A('v_and_b32 v232, 31, v0\nv_lshrrev_b32 v233, 5, v0\nv_lshlrev_b32 v233, 2, v233\nv_sub_u32 v232, v232, v233')
    A('v_mov_b32 v234, 0xff800000\nv_mov_b32 v235, 0')
    for r in range(16):
        key = (r & 3) + 8 * (r >> 2)
        A(f'v_cmp_le_i32 vcc, {key}, v232\nv_cndmask_b32 v{56+r}, v234, v235, vcc\nv_cndmask_b32 v{72+r}, v235, v234, vcc')
def x_frag_addrs(AX, z=None):
    A(f'v_and_b32 v2, 31, v0\nv_bfe_u32 v3, v0, 1, 3\nv_lshrrev_b32 v4, 5, v0\nv_xor_b32 v3, v3, v4')
    A(f's_lshl_b32 s13, {sA}, 12\ns_add_u32 s13, s13, {RA}\nv_lshlrev_b32 v2, 7, v2\nv_add_u32 v2, s13, v2')
    if z: A(f'v_xor_b32 v3, {z}, v3')
    for p in range(4): A(f'v_xor_b32 v4, {2*p}, v3\nv_lshl_add_u32 {AX(p)}, v4, 4, v2')
def wo_voff(dst):
    A(f'v_lshrrev_b32 v2, 3, v0\nv_and_b32 v3, 7, v0\nv_bfe_u32 v4, v0, 4, 1\nv_lshlrev_b32 v4, 2, v4\nv_xor_b32 v4, v4, v3\nv_lshlrev_b32 v4, 4, v4\nv_lshl_add_u32 {dst}, v2, 10, v4')
def pk_norm(t, acc, rs, mul, out, per_reg_rs=False):
    for j in range(8): A(f'v_pk_mul_f32 {v(t+2*j,2)}, {v(t+2*j,2)}, {v(mul,2)} op_sel_hi:[1,0]')
    for j in range(8):
        if per_reg_rs: A(f'v_pk_fma_f32 {v(t+2*j,2)}, {v(acc+2*j,2)}, {v(rs+2*j,2)}, {v(t+2*j,2)} neg_lo:[0,0,1] neg_hi:[0,0,1]')
        else: A(f'v_pk_fma_f32 {v(t+2*j,2)}, {v(acc+2*j,2)}, {v(rs,2)}, {v(t+2*j,2)} op_sel_hi:[1,0,1] neg_lo:[0,0,1] neg_hi:[0,0,1]')
    for j in range(8): A(f'v_cvt_pk_bf16_f32 v{out+j}, v{t+2*j}, v{t+2*j+1}')
def touch(srd, sbase, n, first=0):
    for i in range(first, first + n):
        A(f's_add_u32 s13, {sbase}, {i*8192}\nbuffer_load_dword v239, v245, {srd}, s13 offen')

def p1touch_addr():
    A(f's_mul_i32 s26, {sJ}, 7680\ns_mul_i32 s13, {sA}, {688*1024}\ns_add_u32 s26, s26, s13')
def p2touch(n, start, lbl):
    A(f's_mul_i32 s26, {sA}, {688*1024}\ns_lshl_b32 s13, {sB}, 13\ns_add_u32 s26, s26, s13\ns_and_b32 s13, {sG}, 1\ns_lshl_b32 s13, s13, 14\ns_add_u32 s26, s26, s13')
    A(f's_add_u32 s26, s26, {240*1024 + start}\ns_mov_b32 s19, {n}\nv_lshlrev_b32 v245, 7, v0')
    A.label(lbl)
    A(f'buffer_load_dword v239, v245, {SW2}, s26 offen\ns_add_u32 s26, s26, 32768\ns_sub_u32 s19, s19, 1\ns_cmp_lg_u32 s19, 0\ns_cbranch_scc1 {lbl}')
def mall_touch(which):
    srd_, per, nl = ((SW1, 5504, 43), (SW2, 5504, 43), (SWO, 2048, 16), (SWQ, 6144, 48))[which]
    A(f's_mul_i32 s13, s2, {per}\nv_lshlrev_b32 v245, 7, v0\ns_mov_b32 exec_lo, {hex(min((1 << nl) - 1, 0xffffffff))}\ns_mov_b32 exec_hi, {hex((1 << max(nl - 32, 0)) - 1)}')
    A(f'buffer_load_dword v239, v245, {srd_}, s13 offen\ns_mov_b64 exec, -1')
def mall_all(sreg):
    for w_ in range(3):
        lx = L(); A(f's_cmp_lg_u32 {sreg}, {w_+1}\ns_cbranch_scc1 {lx}'); mall_touch(w_); A.label(lx)
VWO = 'v243'
sTile, sTau, HRES = 's23', 's20', 248
def wo_setup(): A(f's_lshl_b32 s27, {sI}, 17\ns_lshl_b32 s13, {sSub}, 7\ns_add_u32 s27, s27, s13\ns_lshl_b32 s28, {sI}, 14\ns_add_u32 s28, s28, {RA}')
def wo_dma(e): A(f's_add_u32 s13, s27, {e*8192}\ns_add_u32 m0, s28, {e*1024}'); dma(VWO, SWO, 's13')
def att_setup():
    wo_voff(VWO)
    A(f's_lshl_b32 {sTile}, {sT}, 1\ns_add_u32 {sTile}, {sTile}, {sA}')
    A(f'v_and_b32 v4, 31, v0\nv_lshlrev_b32 v4, 10, v4\nv_lshrrev_b32 v5, 5, v0\nv_lshl_add_u32 v4, v5, 3, v4')
    A(f's_lshl_b32 s24, {sTile}, 15\ns_lshl_b32 s13, {sSub}, 7\ns_add_u32 s24, s24, s13\ns_lshl_b32 s13, {sB}, 6\ns_add_u32 s24, s24, s13')
    A('v_mov_b32 v244, v4')
    A(f's_lshr_b32 s13, {sW}, 2\ns_lshl_b32 s21, {sT}, 1\ns_add_u32 s21, s21, s13')
    A(f's_sub_u32 {sTau}, 8, s21\ns_max_i32 {sTau}, {sTau}, 0')
    A(f's_lshl_b32 s9, s13, 12\ns_lshl_b32 s12, {sI}, 10\ns_add_u32 s12, s12, s9\ns_add_u32 s12, s12, {L_K}')
    A(f'v_lshlrev_b32 v232, 4, v0\nv_add_u32 v233, s12, v232')
    A(f's_lshl_b32 s12, {sW}, 10\ns_add_u32 s12, s12, {L_Q}\nv_add_u32 v235, s12, v232')
    A(f's_mul_i32 s9, s13, {VT}\ns_mul_i32 s12, {sB}, {2*VI}\ns_add_u32 s12, s12, s9\ns_add_u32 s12, s12, {L_V}')
    A(f's_lshl_b32 s14, {sA}, 8\nv_or_b32 v236, s14, v232\nv_and_b32 v238, 11, v0\nv_cmp_eq_u32 vcc, 0, v238\nv_mov_b32 v237, 1040\nv_mov_b32 v238, 1024\nv_cndmask_b32 v237, v{237 if OPT["zrow"] else 238}, v238, vcc\nv_and_b32 v238, 16, v0\nv_cmp_eq_u32 vcc, 0, v238\nv_cndmask_b32 v236, v237, v236, vcc')
    A(f'v_add_u32 v236, s12, v236')
    A(f's_lshl_b32 s22, s21, 5\ns_lshl_b32 s13, {sSub}, 2\ns_add_u32 s22, s22, s13\ns_add_u32 s22, s22, {sI}')
    wo_setup()
    for ph in range(3):
        A(f'v_add_u32 v2, {64*ph}, v0\nv_mul_u32_u24 v3, 171, v2\nv_lshrrev_b32 v3, 11, v3\nv_mul_u32_u24 v4, 12, v3\nv_sub_u32 v4, v2, v4')
        A(f'v_mul_u32_u24 v3, 2752, v3\nv_lshl_add_u32 v{8+ph}, v4, 4, v3')
    A(f'v_lshlrev_b32 v245, 7, v0')
A(f's_cmp_ge_u32 s2, 256\ns_cbranch_scc1 Lexit')
if OPT['until'] or OPT['hold'] >= 0 or OPT['impure']: A('s_memtime s[84:85]')
A('s_load_dwordx4 s[16:19], s[0:1], 0\ns_load_dwordx8 s[20:27], s[0:1], 16\ns_load_dwordx8 s[28:35], s[0:1], 48\ns_load_dwordx2 s[36:37], s[0:1], 80')
A(f'v_lshrrev_b32 v1, 6, v0\nv_and_b32 v0, 63, v0\ns_lshr_b32 {sJ}, s2, 3\nv_readfirstlane_b32 {sW}, v1\ns_getpc_b64 s[10:11]')
A.label('Lpc')
A(f's_and_b32 s8, {sJ}, 7\ns_cmp_lg_u32 s8, {sW}\ns_cbranch_scc1 Lnopf')
A(f's_lshl_b32 s8, {sJ}, 10\ns_min_u32 s8, s8, Lcodeend-Lpc-1024\ns_add_u32 s10, s10, s8\ns_addc_u32 s11, s11, 0\ns_and_b32 s10, s10, -16\nv_lshlrev_b32 v2, 4, v0')
A('global_load_dwordx4 v[200:203], v2, s[10:11]')
A.label('Lnopf')
A(f's_and_b32 s8, s2, 7\ns_and_b32 {sM}, {sJ}, 15\ns_lshr_b32 s9, {sJ}, 3\ns_lshl_b32 {sT}, s8, 2\ns_add_u32 {sT}, {sT}, s9\ns_and_b32 {sSub}, {sJ}, 7\ns_and_b32 {sI}, {sW}, 3')
A(f's_cmp_lt_u32 {sW}, 4\ns_cbranch_scc1 Lcompute')
def srd(b, p, sz): A(f's_mov_b32 s{b}, s{p}\ns_and_b32 s{b+1}, s{p+1}, 0xffff\ns_mov_b32 s{b+2}, {sz}\ns_mov_b32 s{b+3}, 0x20000')
def more_ids(): A(f's_lshr_b32 {sG}, {sT}, 1\ns_and_b32 {sA}, {sW}, 1\ns_bfe_u32 {sB}, {sW}, 0x10001\ns_mov_b32 {sMode}, 0')
XF = lambda p: 64 + 4 * p
ONES = 'v138'
AX = lambda p: f'v{140+p}'
AW = 'v144'
RS, MRS = 148, 150
def other_srds():
    for (b, p, sz) in ((72, 36, 268435456), (76, 34, 256), (48, 20, 524288), (52, 24, 1409024), (56, 26, 2752), (60, 28, 1409024),
                       (64, 30, 1024), (68, 32, 2097152)): srd(b, p, sz)
    if OPT['stamps']:
        A(f's_lshl_b32 s97, s2, 3\ns_add_u32 s97, s97, {sW}\ns_lshl_b32 s97, s97, 7\ns_add_u32 s97, s97, {WS_STAMP}')
A.label('Lloader')
VX0, VX1, VWQ = 'v240', 'v241', 'v242'
A(f'v_lshrrev_b32 v2, 3, v0\nv_and_b32 v3, 7, v0\nv_lshrrev_b32 v4, 4, v0\nv_xor_b32 v4, v4, v3')
A(f's_lshl_b32 s13, {sI}, 14\nv_lshlrev_b32 v5, 10, v2\nv_add_u32 v5, s13, v5\nv_lshl_add_u32 {VX0}, v4, 4, v5')
A(f'v_xor_b32 v4, 4, v4\nv_add_u32 v5, 8192, v5\nv_lshl_add_u32 {VX1}, v4, 4, v5')
A(f'v_bfe_u32 v4, v0, 4, 1\nv_lshlrev_b32 v4, 2, v4\nv_xor_b32 v4, v4, v3\nv_lshlrev_b32 v4, 4, v4')
A(f's_mul_i32 s13, {sI}, {16*3072}\nv_mul_u32_u24 v5, 3072, v2\nv_add3_u32 {VWQ}, v5, v4, s13')
sXo, sWo, sLo = 's86', 's87', 's88'
A(f's_lshl_b32 {sXo}, {sT}, 16\ns_lshl_b32 {sWo}, {sSub}, 7\ns_lshl_b32 {sLo}, {sI}, 11')
phys = lambda i: (1 + (i + 3) % 5) * SL
sRot, sCw = 's89', 's91'
A(f's_and_b32 {sRot}, s2, 7' if OPT['rot'] else f's_mov_b32 {sRot}, 0')
def chunk_off(c):
    A(f's_add_u32 s14, {sRot}, {c}\ns_and_b32 s14, s14, 7\ns_mul_i32 {sCw}, s14, {64*3072}\ns_add_u32 {sCw}, {sCw}, {sWo}')
def issue_kv(c):
    chunk_off(c)
    A(f's_lshl_b32 s13, s14, 7\ns_add_u32 s13, s13, {sXo}\ns_add_u32 m0, {sLo}, {RA + c*8192}'); dma(VX0, SX, 's13')
    A(f's_add_u32 m0, {sLo}, {RA + c*8192 + 1024}'); dma(VX1, SX, 's13')
    for b in range(2):
        for e in range(2):
            A(f's_add_u32 s13, {sCw}, {(b+1)*1024 + e*24576}\ns_add_u32 m0, {sLo}, {phys(c) + b*8192 + e*1024}'); dma(VWQ, SWQ, 's13')
def issue_q(it):
    for hh in range(2):
        for e in range(2):
            c = (it - 8) * 2 + hh
            if e == 0: chunk_off(c)
            A(f's_add_u32 s13, {sCw}, {e*24576}\ns_add_u32 m0, {sLo}, {L_WQ + c*8192 + e*1024}'); dma(VWQ, SWQ, 's13')
A('s_waitcnt lgkmcnt(0)')
srd(40, 16, 2097152); srd(44, 18, 1572864)
issue_kv(0); issue_kv(1)
sSlow = 's92'
A(f's_lshr_b32 s8, s18, 7\ns_add_u32 s8, s8, {sSub}\ns_and_b32 s8, s8, 7\ns_cmp_eq_u32 s8, 3\ns_cselect_b32 {sSlow}, 1, 0')
def ifnorm(f):
    lx = L(); A(f's_cmp_lg_u32 {sSlow}, 0\ns_cbranch_scc1 {lx}'); f(); A.label(lx)
more_ids(); other_srds()
issue_kv(2)
A(f'v_lshrrev_b32 v2, 2, v0\nv_lshlrev_b32 v2, 7, v2\nv_and_b32 v3, 3, v0\nv_lshl_add_u32 v2, v3, 5, v2\ns_add_u32 s13, {sLo}, {RA}\nv_add_u32 v148, s13, v2')
for r in range(150, 154): A(f'v_mov_b32 v{r}, 0')
def xstats(c):
    A(f'ds_read_b128 v[8:11], v148 offset:{c*8192}\nds_read_b128 v[12:15], v148 offset:{c*8192+16}\ns_waitcnt lgkmcnt(1)')
    for j in range(8):
        if j == 4: A('s_waitcnt lgkmcnt(0)')
        A(f'v_lshlrev_b32 v2, 16, v{8+j}\nv_and_b32 v3, 0xffff0000, v{8+j}')
        A(f'v_add_f32 v150, v150, v2\nv_add_f32 v151, v151, v3\nv_fmac_f32 v152, v2, v2\nv_fmac_f32 v153, v3, v3')
later = {0: 12, 1: 12, 2: 12, 3: 12, 4: 12, 5: 12, 6: 10, 7: 8}
if OPT['qlate'] in (2, 3): later[6] = 6; later[7] = 0
for c in range(8):
    A(f's_waitcnt vmcnt({later[c]})')
    if OPT['qlate'] == 4 and c >= 6:
        lx = L(); A(f's_cmp_eq_u32 {sSlow}, 0\ns_cbranch_scc1 {lx}\ns_waitcnt vmcnt({6 if c == 6 else 0})'); A.label(lx)
    A('s_barrier')
    if c == 0: stamp('s1_c0')
    if c + 3 <= 7: issue_kv(c + 3)
    elif OPT['qlate'] == 4: ifnorm(lambda: [issue_q(it) for it in {5: [8], 6: [9], 7: [10, 11]}[c]])
    elif c == 5:
        if OPT['qlate'] < 2: issue_q(8)
    elif c == 6:
        if OPT['qlate'] < 2: issue_q(9)
    elif not OPT['qlate']: issue_q(10); issue_q(11)
    xstats(c)
A('v_add_f32 v150, v150, v151\nv_add_f32 v152, v152, v153')
for qp in ('[1,0,3,2]', '[2,3,0,1]'):
    A(f'v_add_f32_dpp v150, v150, v150 quad_perm:{qp} row_mask:0xf bank_mask:0xf\nv_add_f32_dpp v152, v152, v152 quad_perm:{qp} row_mask:0xf bank_mask:0xf')
A(f'v_mul_f32 v150, {f2u(1/512)}, v150\nv_mul_f32 v152, {f2u(1/512)}, v152\nv_fma_f32 v152, -v150, v150, v152\nv_max_f32 v152, 0, v152')
A(f'v_add_f32 v152, {f2u(1e-5)}, v152\nv_rsq_f32 v152, v152\nv_and_b32 v3, 3, v0\nv_cmp_eq_u32 vcc, 0, v3\nv_mul_f32 v150, v150, v152')
A(f'v_cndmask_b32 v150, v150, v152, vcc\nv_lshrrev_b32 v2, 2, v0\nv_lshlrev_b32 v2, 2, v2\nv_lshl_add_u32 v2, v3, 8, v2\ns_lshl_b32 s13, {sI}, 6\nv_add_u32 v2, s13, v2')
A(f's_mov_b32 exec_lo, 0x33333333\ns_mov_b32 exec_hi, 0x33333333\nds_write_b32 v2, v150 offset:{L_STAT}\ns_mov_b64 exec, -1')
stamp('ld_a')
A('s_waitcnt lgkmcnt(0)\ns_barrier')
if OPT['qlate'] == 1: issue_q(10); issue_q(11)
if OPT['qlate'] >= 2:
    lx = L()
    if OPT['qlate'] == 4: A(f's_cmp_eq_u32 {sSlow}, 0\ns_cbranch_scc1 {lx}')
    lds_wait(L_CNT + 28, 4, 'v2', 'v3')
    for it in range(8, 12): issue_q(it)
    A.label(lx)
aQ = 16
QW = lambda p: 80 + 4 * p
x_frag_addrs(AX)
tr_lane_addr(AW, 128, 8, 'v2', True, sB)
A(f'v_add_u32 {AW}, {L_WQ}, {AW}\nv_mov_b32 {ONES}, 0x3f803f80\nv_mov_b32 v128, 0\nv_mov_b32 v129, 0')
for r in range(16, 32): A(f'v_mov_b32 v{r}, 0')
A(f'v_mov_b32 v2, {L_CNT+8}\nds_read_b32 v3, v2\nv_and_b32 v9, 31, v0\nv_lshlrev_b32 v9, 2, v9\ns_lshl_b32 s13, {sA}, 7\nv_add_u32 v9, s13, v9')
A(f'ds_read_b32 v{RS}, v9 offset:{L_STAT}\nds_read_b32 v{MRS}, v9 offset:{L_STAT+256}\ns_waitcnt lgkmcnt(0)\nv_readfirstlane_b32 {sMode}, v3')
A(f'v_mul_f32 v{RS}, {f2u(CSC)}, v{RS}\nv_mul_f32 v{MRS}, {f2u(CSC)}, v{MRS}')
A('s_waitcnt vmcnt(0)')
lds_inc(L_CNT, 'v2', 'v3')
lds_wait(L_CNT, 4, 'v2', 'v3')
stamp('ld_b')
if OPT['mall'] == 2: mall_all(sI)
if OPT['pfa']:
    lx, ly = L(), L()
    A(f'v_lshlrev_b32 v245, 7, v0\ns_cmp_ge_u32 {sI}, 2\ns_cbranch_scc1 {lx}\ns_lshl_b32 s26, {sJ}, 14\ns_lshl_b32 s13, {sI}, 13\ns_add_u32 s26, s26, s13')
    touch(SWO, 's26', 1); A(f's_branch {ly}'); A.label(lx)
    if OPT['pfa'] == 2:
        p1touch_addr(); touch(SW2, 's26', 1)
    if OPT['dt']:
        A(f'v_lshrrev_b32 v2, 5, v0\nv_lshlrev_b32 v2, 15, v2\nv_and_b32 v3, 31, v0\nv_lshl_add_u32 v2, v3, 7, v2')
        A(f's_lshl_b32 s26, {sT}, 16\ns_lshl_b32 s13, {sSub}, 12\ns_add_u32 s26, s26, s13\ns_mul_i32 s13, {sA}, {WS_H - WS_O}\ns_add_u32 s26, s26, s13\ns_add_u32 s26, s26, {WS_O}')
        A(f'buffer_load_dword v239, v2, {SWS}, s26 offen')
    A.label(ly)
def q_reads(g, bank):
    out = []
    for p in range(4):
        out.append(f'ds_read_b128 {v(XF(p)+bank*32,4)}, {AX(p)} offset:{g*8192}')
        for i in range(2): out.append(trs(QW(p) + bank * 32 + 2 * i, AW, g * 8192 + p * 2048 + i * 512))
    return out
for x in q_reads(0, 0): A(x)
for g in range(8):
    bk = g & 1
    A('s_waitcnt lgkmcnt(0)')
    nx = q_reads(g + 1, 1 - bk) if g < 7 else []
    for p in range(4):
        mfma(aQ, QW(p) + bk * 32, XF(p) + bk * 32)
        for x in nx[3*p:3*p+3]: A(x)
    if g == 7: lds_inc(L_CNT + 4, 'v2', 'v3')
    for p in range(4):
        for j in range(4): A(f'v_dot2c_f32_bf16 v{128+(j&1)}, v{QW(p)+bk*32+j}, {ONES}')
A('v_add_f32 v128, v128, v129\nv_mov_b32 v129, v128')
half_sum2('v128', 'v129')
A(f's_lshl_b32 s13, {sW}, 8\ns_add_u32 s13, s13, {L_PR}\nv_lshlrev_b32 v6, 2, v0\nv_add_u32 v6, s13, v6\nds_write_b32 v6, v128')
A(f'v_lshrrev_b32 v7, 5, v0\nv_lshlrev_b32 v7, 4, v7\nv_add_u32 v7, s13, v7\ns_waitcnt lgkmcnt(0)')
for q in range(4): A(f'ds_read_b128 {v(64+4*q,4)}, v7 offset:{32*q}')
A(f's_lshl_b32 s13, {sA}, 12\ns_lshl_b32 s14, {sB}, 11\ns_add_u32 s13, s13, s14\ns_add_u32 s13, s13, {L_Q}\nv_lshlrev_b32 v14, 4, v0\nv_add_u32 v14, s13, v14')
A('s_waitcnt lgkmcnt(0)')
pk_norm(64, aQ, RS, MRS, 156)
A(f'ds_write_b128 v14, v[156:159]\nds_write_b128 v14, v[160:163] offset:1024')
att_masks(); att_setup()
A('s_mov_b32 s19, 0\ns_mov_b32 s29, 0\ns_mov_b32 s30, 0\nv_lshlrev_b32 v14, 4, v0\nv_mov_b32 v210, 0')
stamp('x2')
A('s_waitcnt lgkmcnt(0)')
A('s_branch Latt')

A.label('Lcompute')
A('s_waitcnt lgkmcnt(0)')
srd(40, 16, 2097152); srd(44, 18, 1572864); more_ids(); other_srds()
stamp('start')
aK_, aV = 16, 32
XF = lambda p: 64 + 4 * p
WF = lambda p, b: 80 + 8 * p + 4 * b
CK, CV_ = 128, 130
ONES = 'v138'
AX = lambda p: f'v{140+p}'
AW = 'v144'
A(f's_getreg_b32 s39, hwreg(HW_REG_XCC_ID)\ns_and_b32 s39, s39, 15\ns_or_b32 s39, s39, 0x80')
lpf, lgo = L(), L()
if OPT['r3']:
    A(f's_lshr_b32 s8, s18, 7\ns_sub_u32 s8, 3, s8\ns_and_b32 s8, s8, 7\ns_lshl_b32 s8, s8, 7\ns_lshl_b32 s9, {sJ}, 2\ns_add_u32 s9, s9, {sW}\ns_mul_i32 s9, s9, {4*3072}\ns_add_u32 s8, s8, s9')
    for k in range(4):
        for b in range(2):
            A(f's_add_u32 s9, s8, {k*3072 + (b+1)*1024}\ns_load_dword s90, s[18:19], s9')
            if OPT['r3'] >= 3: A(f's_add_u32 s9, s9, 64\ns_load_dword s90, s[18:19], s9')
    if OPT['r3'] in (2, 4):
        for k in range(4):
            A(f's_add_u32 s9, s8, {k*3072}\ns_load_dword s90, s[18:19], s9')
            if OPT['r3'] >= 3: A(f's_add_u32 s9, s9, 64\ns_load_dword s90, s[18:19], s9')
A(f's_cmp_lg_u32 {sW}, 0\ns_cbranch_scc1 {lpf}')
A(f's_lshl_b32 s8, {sT}, 5\ns_lshl_b32 s9, {sSub}, 2\ns_add_u32 s8, s8, s9\nv_mov_b32 v2, {F4 - 16}\nv_mov_b32 v3, {F3 - 12}\nv_cmp_gt_u32 vcc, 16, v0\nv_cndmask_b32 v2, v2, v3, vcc')
A(f's_add_u32 s9, s8, {F2 - 4}\nv_mov_b32 v3, s9\nv_cmp_gt_u32 vcc, 12, v0\nv_cndmask_b32 v2, v2, v3, vcc\nv_mov_b32 v3, {F1}\nv_cmp_gt_u32 vcc, 4, v0\nv_cndmask_b32 v2, v2, v3, vcc')
A(f'v_add3_u32 v2, v2, v0, s8\nv_lshlrev_b32 v2, 7, v2\nv_add_u32 v2, {WS_FL}, v2\nv_mov_b32 v3, 0')
A(f's_mov_b32 exec_lo, 0xfffff\ns_mov_b32 exec_hi, 0\nbuffer_store_dword v3, v2, {SWS}, 0 offen sc1')
A(f'v_lshlrev_b32 v4, 2, v0\nds_write_b32 v4, v3 offset:{L_CNT}')
A(f's_lshl_b32 s8, {sG}, 4\ns_and_b32 s9, {sM}, 12\ns_add_u32 s8, s8, s9\ns_and_b32 s9, {sM}, 3\ns_lshl_b32 s9, s9, 3\ns_lshl_b32 s9, s39, s9')
A(f'v_mov_b32 v2, s8\nv_mov_b32 v3, s9\ns_mov_b64 exec, 1\ns_waitcnt vmcnt(0)')
A(f'buffer_atomic_or v3, v2, {SDBG}, 0 offen sc1\ns_mov_b64 exec, -1\ns_branch {lgo}')
A.label(lpf)
A(f's_cmp_lg_u32 {sW}, 3\ns_cbranch_scc1 {lgo}')
if OPT['mallq']: mall_touch(3)
if OPT['tlb']:
    A(f's_lshl_b32 s9, {sT}, 16')
    A('s_load_dword s90, s[32:33], s9')
    for p in (20, 24, 26, 28, 30): A(f's_load_dword s90, s[{p}:{p+1}], 0')
    for pg in range(8): A(f's_mov_b32 s9, {pg*0x200000 + 0x100000}\ns_load_dword s90, s[36:37], s9')
A.label(lgo)
for r in list(range(16, 48)) + list(range(WF(2, 0), WF(4, 0))) + list(range(128, 132)): A(f'v_mov_b32 v{r}, 0')
A(f'v_mov_b32 {ONES}, 0x3f803f80')
A(f's_lshl_b32 s12, {sA}, 2')
x_frag_addrs(AX, 's12')
tr_lane_addr(AW, 128, 8, 'v2', True, sB)
AW1 = 'v145'
A(f's_lshl_b32 s13, {sA}, 12\ns_add_u32 s14, s13, {4*SL}\ns_xor_b32 s13, s13, 4096\ns_add_u32 s13, s13, {4*SL}')
A(f'v_add_u32 {AW1}, s13, {AW}\nv_add_u32 {AW}, s14, {AW}\ns_mov_b32 s15, 0\nv_lshlrev_b32 v146, 2, v0')
if OPT['mall'] == 1 and OPT['mallat'] < 0: mall_all(sW)
A(f's_lshl_b32 s13, {sW}, 8\ns_add_u32 s13, s13, {L_PR}\nv_add_u32 v6, s13, v146')
A(f's_lshl_b32 s13, {sB}, 9\ns_add_u32 s13, s13, {L_PR}')
A(f'v_lshrrev_b32 v7, 5, v0\nv_lshlrev_b32 v7, 4, v7\nv_add_u32 v8, s13, v7\nv_and_b32 v9, 31, v0\nv_lshlrev_b32 v9, 2, v9\nv_add_u32 v10, s13, v9')
A(f's_lshl_b32 s13, {sA}, 7\nv_add_u32 v7, s13, v7\nv_add_u32 v9, s13, v9')
A(f's_lshl_b32 s13, {sT}, 1\ns_add_u32 s13, s13, {sA}\ns_lshl_b32 s16, s13, 3\ns_add_u32 s16, s16, {sSub}\ns_lshl_b32 s16, s16, 13')
A(f's_lshl_b32 s14, {sB}, 11\ns_add_u32 s16, s16, s14\ns_add_u32 s17, s16, 4096')
A(f's_lshl_b32 s18, s13, 4\ns_lshl_b32 s14, {sSub}, 1\ns_add_u32 s18, s18, s14\ns_add_u32 s18, s18, {sB}\nv_lshlrev_b32 v14, 4, v0')
def p1_reads(p):
    out = [f'ds_read_b128 {v(XF(p),4)}, {AX(p)}']
    for b in range(2):
        for i in range(2): out.append(trs(WF(p, b) + 2 * i, AW if p < 2 else AW1, (p & 1) * 2048 + i * 512 + b * 8192))
    return out
def p1_mf(p): return [mfs(aK_, WF(p, 0), XF(p)), mfs(aV, XF(p), WF(p, 1))]
def p1_dots(ps):
    for p in ps:
        for j in range(4):
            A(f'v_dot2c_f32_bf16 v{CK+(j&1)}, v{WF(p,0)+j}, {ONES}\nv_dot2c_f32_bf16 v{CV_+(j&1)}, v{WF(p,1)+j}, {ONES}')
A.label('Ls1')
A('s_barrier')
for x in p1_reads(0) + p1_reads(1): A(x)
ldb = L()
A(f's_cmp_lg_u32 s15, 4\ns_cbranch_scc1 {ldb}\nbuffer_load_dword v147, v146, {SDBG}, 0 offen sc1')
A.label(ldb)
lnc = L()
A(f's_cmp_lg_u32 s15, 7\ns_cbranch_scc1 {lnc}')
lchk, lok = L(), L()
A('s_mov_b32 s8, 0')
A.label(lchk)
A(f's_waitcnt vmcnt(0)\nv_and_b32 v2, 0x80808080, v147\nv_cmp_ne_u32 vcc, 0x80808080, v2\ns_add_u32 s8, s8, 1')
A(f's_cbranch_vccz {lok}\ns_cmp_gt_u32 s8, {TIMEOUT}\ns_cbranch_scc1 {lok}')
A(f'buffer_load_dword v147, v146, {SDBG}, 0 offen sc1\ns_branch {lchk}')
A.label(lok)
A(f's_mul_i32 s9, s39, 0x01010101\nv_cmp_eq_u32 vcc, s9, v147\ns_lshl_b32 s9, {sG}, 2\ns_lshr_b64 s[10:11], vcc, s9\ns_and_b32 s10, s10, 15')
A(f's_cmp_eq_u32 s10, 15\ns_cselect_b32 {sMode}, 1, 0\nv_mov_b32 v2, {L_CNT+8}\nv_mov_b32 v3, {sMode}\nds_write_b32 v2, v3')
A.label(lnc)
if OPT['mall'] == 1 and OPT['mallat'] >= 0:
    lx = L(); A(f's_cmp_lg_u32 s15, {OPT["mallat"]}\ns_cbranch_scc1 {lx}'); mall_all(sW); A.label(lx)
p1_dots((2, 3))
A('s_waitcnt lgkmcnt(0)')
rd = p1_reads(2) + p1_reads(3); mm = p1_mf(0) + p1_mf(1); k = 0
for i, m in enumerate(mm):
    A(m); n = (3, 3, 2, 2)[i]
    for x in rd[k:k+n]: A(x)
    k += n
A(f's_mov_b32 s13, {SL}\ns_cmp_eq_u32 s15, 1\ns_cselect_b32 s13, {-4*SL}, s13\ns_cmp_eq_u32 s15, 6\ns_cselect_b32 s13, {-4*SL}, s13\ns_add_u32 s15, s15, 1')
A('s_waitcnt lgkmcnt(5)')
m2 = p1_mf(2)
A(m2[0]); A(f'v_add_u32 {AX(0)}, 8192, {AX(0)}\nv_add_u32 {AX(1)}, 8192, {AX(1)}\nv_add_u32 {AX(2)}, 8192, {AX(2)}')
A(m2[1]); A(f'v_add_u32 {AX(3)}, 8192, {AX(3)}\nv_add_u32 {AW}, s13, {AW}\nv_add_u32 {AW1}, s13, {AW1}')
A('s_waitcnt lgkmcnt(0)')
for m in p1_mf(3): A(m)
A('s_cmp_lt_u32 s15, 8\ns_cbranch_scc1 Ls1')
stamp('s1_loop_end')
p1_dots((2, 3))
CSV = 152
A(f'v_add_f32 v{CK}, v{CK}, v{CK+1}\nv_add_f32 v{CV_}, v{CV_}, v{CV_+1}')
half_sum2(f'v{CK}', f'v{CV_}')
A(f'ds_write_b32 v6, v{CK}')
tK, tRS, tMRS, tK2 = 64, 80, 96, 112
A('s_waitcnt lgkmcnt(0)\ns_barrier')
stamp('s1_bs1')
RS, MRS = 148, 150
A(f'ds_read_b32 v{RS}, v9 offset:{L_STAT}\nds_read_b32 v{MRS}, v9 offset:{L_STAT+256}')
for q in range(4): A(f'ds_read_b128 {v(tK+4*q,4)}, v8 offset:{32*q}')
for q in range(4): A(f'ds_read_b128 {v(tK2+4*q,4)}, v8 offset:{256+32*q}')
A(f'ds_read_b32 v{CSV}, v10 offset:128\nds_read_b32 v{CSV+1}, v10 offset:384')
A('s_waitcnt lgkmcnt(2)')
for q in range(4): A(f'ds_read_b128 {v(tMRS+4*q,4)}, v7 offset:{L_STAT+256+32*q}')
for q in range(4): A(f'ds_read_b128 {v(tRS+4*q,4)}, v7 offset:{L_STAT+32*q}')
KF, VF = 156, 164
for j in range(8): A(f'v_pk_add_f32 {v(tK+2*j,2)}, {v(tK+2*j,2)}, {v(tK2+2*j,2)}')
pk_norm(tK, aK_, RS, MRS, KF)
A(f'buffer_store_dwordx4 {v(KF,4)}, v14, {SWS}, s16 offen sc1\nbuffer_store_dwordx4 {v(KF+4,4)}, v14, {SWS}, s16 offen offset:1024 sc1')
A(f's_waitcnt lgkmcnt(0)\nv_add_f32 v{CSV}, v{CSV}, v{CSV+1}')
pk_norm(tMRS, aV, tRS, CSV, VF, True)
A(f'buffer_store_dwordx4 {v(VF,4)}, v14, {SWS}, s17 offen sc1\nbuffer_store_dwordx4 {v(VF+4,4)}, v14, {SWS}, s17 offen offset:1024 sc1')
if OPT['qlate'] in (2, 4): lds_inc(L_CNT + 28, 'v2', 'v3')
stamp('s1_stored')
if OPT['kvf']:
    A('s_waitcnt vmcnt(2)'); set_flag('s18', 'v2', 'v3', slow=True); stamp('x6')
    A(f's_add_u32 s18, s18, {F4 + 1024}')
att_masks(); att_setup()
A(f's_lshl_b32 s13, {sA}, 12\ns_lshl_b32 s14, {sB}, 11\ns_add_u32 s13, s13, s14\ns_add_u32 s13, s13, {L_K + 8*4096}\nv_add_u32 v15, s13, v14')
A(f's_mul_i32 s13, {sA}, {VT}\ns_mul_i32 s14, {sB}, {2*VI}\ns_add_u32 s13, s13, s14\ns_add_u32 s13, s13, {L_V + 8*VT}\nv_add_u32 v146, s13, v14')
A(f'v_lshrrev_b32 v208, 2, v0\nv_mul_u32_u24 v208, {VT}, v208\nv_and_b32 v209, 3, v0\nv_mul_u32_u24 v209, {VI}, v209\nv_add_u32 v208, v208, v209')
for r in range(204, 208): A(f'v_mov_b32 v{r}, 0x3f803f80\nv_mov_b32 v{r+8}, 0')
A('s_waitcnt vmcnt(0)')
set_flag('s18', 'v2', 'v3', slow=True)
if OPT['qlate'] == 3: lds_inc(L_CNT + 28, 'v2', 'v3')
stamp('s1_flag')
lnh, lnh2 = L(), L()
A('s_mov_b32 s16, 0\nv_mov_b32 v210, 0')
A(f's_add_u32 s19, {sT}, {sI}\ns_cmp_lt_u32 s19, 4\ns_cbranch_scc1 {lnh}')
A(f's_sub_u32 s13, s19, 4\ns_lshl_b32 s13, s13, 1')
A(f's_lshl_b32 s14, s13, 4\ns_lshl_b32 s15, {sSub}, 1\ns_add_u32 s14, s14, s15')
A(f'v_lshrrev_b32 v2, 1, v0\nv_lshlrev_b32 v2, 4, v2\nv_and_b32 v3, 1, v0\nv_add3_u32 v2, v2, v3, s14\nv_lshlrev_b32 v2, 7, v2\nv_add_u32 v2, {WS_FL + F1*128}, v2')
A(f's_lshl_b32 s16, s13, 3\ns_add_u32 s16, s16, {sSub}\ns_lshl_b32 s16, s16, 13')
A(f'v_add_u32 v210, {(F4 + 1024) * 128}, v2')
poll('v2', 'v3', 4)
A.label(lnh)
stamp('x0')
lds_wait(L_CNT + 4, 4, 'v2', 'v3')
stamp('x1')
A(f's_cmp_lt_u32 s19, 4\ns_cbranch_scc1 {lnh2}')
A(f's_lshl_b32 s17, {sI}, 13\ns_add_u32 s17, s17, {L_K}')
for t in range(2):
    for i in range(4):
        A(f's_add_u32 s13, s16, {t*65536 + i*1024}\ns_add_u32 m0, s17, {t*4096 + i*1024}'); dma('v14', SWS, 's13', ' sc1')
def vhalo(n):
    t, i = n // 4, n % 4
    A(f's_add_u32 s13, s29, {t*65536 + 4096 + i*1024}\ns_add_u32 m0, s30, {t*VT + i*VI}'); dma('v14', SWS, 's13', ' sc1')
A.label(lnh2)
A(f's_mov_b32 s29, s16\ns_mul_i32 s30, {sI}, {2*VT}\ns_add_u32 s30, s30, {L_V}')
if OPT['vpos'] == 0:
    lx = L(); A(f's_cmp_lt_u32 s19, 4\ns_cbranch_scc1 {lx}')
    for n in range(8): vhalo(n)
    A.label(lx)
if OPT['wol'] == 1: lds_inc(L_CNT + 24, 'v2', 'v3')
A(f'ds_write_b128 v15, {v(KF,4)}\nds_write_b128 v15, {v(KF+4,4)} offset:1024\nds_write_b128 v146, {v(VF,4)}\nds_write_b128 v146, {v(VF+4,4)} offset:{VI}')
A(f's_mov_b32 exec_hi, 0xff\nds_write_b128 v208, v[204:207] offset:{L_V + 1024}\nds_write_b128 v208, v[212:215] offset:{L_V + 1040}\ns_mov_b32 exec_hi, -1')
A('s_waitcnt lgkmcnt(0)')

A.label('Latt')
KFa = lambda t: 16 + 4 * t
QFa, CL, CF = 52, 56, 72
S1 = lambda t: 88 + 16 * t
sTau = 's20'
sFb = 's31'
A(f's_mov_b32 {sFb}, 0')
A('s_barrier')
stamp('kv_ready')
NM, OA = 136, 152
SB_ = lambda t: 88 + 16 * (t % 3)
PB = lambda t: 168 + 8 * (t % 2)
VB = lambda t: 184 + 8 * (t % 3)
M0_, M1_ = 'v238', 'v237'
def vread(t): A(f'ds_read_b128 {v(VB(t),4)}, v236 offset:{t*VT}\nds_read_b128 {v(VB(t)+4,4)}, v236 offset:{t*VT+VI}')
def smf(t, dst, cmid):
    c = CL if t == 8 else (CF if t == 0 else cmid)
    mfma(dst, KFa(t), QFa, c)
def maxs(base):
    for j in range(8):
        m = M0_ if j % 2 == 0 else M1_
        A(f'v_max3_f32 {m}, v{base+2*j}, v{base+2*j+1}, {m}')
def maxfin(): A(f'v_max_f32 {M0_}, {M0_}, {M1_}\nv_mov_b32 {M1_}, {M0_}\nv_permlane32_swap_b32 {M0_}, {M1_}\nv_max_f32 {M0_}, {M0_}, {M1_}')
def pv(t, a, first): mfma(OA, VB(t) + 4 * a, PB(t) + 4 * a, '0' if first else None)
A(f'ds_read_b128 {v(QFa,4)}, v235\nds_read_b128 {v(KFa(8),4)}, v233 offset:{8*4096}')
if OPT['prio']:
    lx = L(); A(f's_cmp_lt_u32 {sW}, 4\ns_cbranch_scc{1 if OPT["prio"] == 1 else 0} {lx}\ns_setprio 1'); A.label(lx)
if OPT['vpos'] == 1:
    lx = L(); A(f's_cmp_lt_u32 s19, 4\ns_cbranch_scc1 {lx}')
    if OPT['kvf']:
        poll('v210', 'v211', 4)
        lds_inc(L_CNT + 24, 'v2', 'v3')
    for n in range(8): vhalo(n)
    A.label(lx)
A(f'v_mov_b32 {M0_}, 0xff800000\nv_mov_b32 {M1_}, 0xff800000\ns_waitcnt lgkmcnt(0)')
smf(8, SB_(8), None)
maxs(SB_(8)); maxfin()
A.label('Lp2')
vread(8)
for r in range(16): A(f'v_sub_f32 v{SB_(8)+r}, v{SB_(8)+r}, {M0_}')
for r in range(16): A(f'v_exp_f32 v{SB_(8)+r}, v{SB_(8)+r}\nv_sub_f32 v{NM+r}, 0, {M0_}')
for j in range(8): A(f'v_cvt_pk_bf16_f32 v{PB(8)+j}, v{SB_(8)+2*j}, v{SB_(8)+2*j+1}')
for r in range(16): A(f'v_sub_f32 v{CF+r}, v{CF+r}, {M0_}')
lk2, lk1 = L(), L()
A(f's_waitcnt lgkmcnt(0)\ns_cmp_lg_u32 {sFb}, 0\ns_cbranch_scc1 {lk2}')
A(f's_cmp_ge_u32 {sW}, 4\ns_cbranch_scc1 {lk1}')
if OPT['kvf']: A(f's_cmp_ge_u32 s19, 4\ns_cbranch_scc1 {lk1}')
A('s_waitcnt vmcnt(8)')
lds_inc(L_CNT + 24, 'v2', 'v3')
A.label(lk1)
lds_wait(L_CNT + 24, 4, 'v2', 'v3')
stamp('att_p1')
for t in range(7, -1, -1): A(f'ds_read_b128 {v(KFa(t),4)}, v233 offset:{t*4096}')
A.label(lk2)
A('s_waitcnt lgkmcnt(6)')
smf(7, SB_(7), NM); smf(6, SB_(6), NM)
def duties():
    lnd, lnw, lend = L(), L(), L()
    A(f's_waitcnt lgkmcnt(0)\ns_cmp_lg_u32 {sFb}, 0\ns_cbranch_scc1 {lend}')
    lds_inc(L_CNT + 12, 'v2', 'v3')
    A(f's_cmp_ge_u32 {sW}, 4\ns_cbranch_scc1 {lnd}\ns_waitcnt vmcnt(0)')
    lds_inc(L_CNT + 20, 'v2', 'v3')
    if OPT['noduty']: A(f's_branch {lnd}'); A.label('Lduty2')
    for q in range(4): A(f'buffer_load_dwordx2 {v(HRES+2*q,2)}, v244, {SX}, s24 offen offset:{16*q}')
    for e in range(16): wo_dma(e)
    if OPT['m15a']:
        lx = L(); A(f's_cmp_lg_u32 {sM}, 15\ns_cbranch_scc1 {lx}'); p2touch(OPT['m15a'], 0, L()); A(f's_branch {lnw}'); A.label(lx)
    else: A(f's_cmp_eq_u32 {sM}, 15\ns_cbranch_scc1 {lnw}')
    lds_wait(L_CNT + 12, 8, 'v2', 'v3')
    A(f's_mul_i32 s16, {sI}, {16*2752}\ns_mul_i32 s13, {sM}, 192\ns_add_u32 s16, s16, s13\ns_mul_i32 s18, {sI}, 3072\ns_add_u32 s18, s18, {RB + 6144}')
    for gi in range(4):
        if gi == 3: A(f's_cmp_eq_u32 {sI}, 3\ns_cbranch_scc1 {lnw}')
        for ph in range(3):
            A(f's_add_u32 s13, s16, {gi*64*2752}\ns_add_u32 m0, s18, {gi*12288 + ph*1024}'); dma(f'v{8+ph}', SW1, 's13')
    A.label(lnw)
    A(f's_cmp_eq_u32 {sI}, 3\ns_cbranch_scc1 {lnd}\ns_mul_i32 s26, {sJ}, 23392\ns_lshl_b32 s13, {sI}, 13\ns_add_u32 s26, s26, s13\ns_add_u32 s26, s26, 660480')
    touch(SW1, 's26', 1)
    A.label(lnd)
    if OPT['noduty']: A(f's_cmp_eq_u32 {sFb}, 2\ns_cbranch_scc1 Lduty3')
    if OPT['p1t']:
        lx = L(); A(f's_lshr_b32 s13, {sW}, 1\ns_cmp_lg_u32 s13, 2\ns_cbranch_scc1 {lx}')
        p1touch_addr(); touch(SW2, 's26', 1); A.label(lx)
    lds_wait(L_CNT + 20, 4, 'v2', 'v3')
    stamp('x4')
    A.label(lend)
order = list(range(7, -1, -1))
tails = {}
for t in order:
    tails[t] = L('Ltail')
    ex = [f'v_exp_f32 v{SB_(t)+r}, v{SB_(t)+r}' for r in range(16)]
    cv = [f'v_cvt_pk_bf16_f32 v{PB(t)+j}, v{SB_(t)+2*j}, v{SB_(t)+2*j+1}' for j in range(8)]
    seq = ex[0:4] + ['PV0'] + ex[4:6] + cv[0:2] + ex[6:8] + ['PV1'] + ex[8:10] + cv[2:4] + ex[10:12] + ['SM'] + ex[12:16] + cv[4:8]
    if t == 7:
        lx7 = L(); A(f's_cmp_gt_u32 {sTau}, 7\ns_cbranch_scc1 {lx7}')
    else: A(f's_cmp_gt_u32 {sTau}, {t}\ns_cbranch_scc1 {tails[t]}')
    for x in seq:
        if x == 'PV0':
            if t < 7: A('s_waitcnt lgkmcnt(2)')
            pv(t + 1, 0, t + 1 == 8)
        elif x == 'PV1':
            pv(t + 1, 1, False)
            if t == 7:
                A.label(lx7); duties()
                A(f's_cmp_gt_u32 {sTau}, 7\ns_cbranch_scc1 {tails[7]}'); vread(7)
            if t - 1 >= 0: vread(t - 1)
        elif x == 'SM':
            if t - 2 >= 0: smf(t - 2, SB_(t - 2), NM)
        else: A(x)
ldone = L('Lattdone')
A('s_waitcnt lgkmcnt(0)')
pv(0, 0, False); pv(0, 1, False)
for t in range(7, -1, -1):
    A(f's_branch {ldone}')
    A.label(tails[t])
    A('s_waitcnt lgkmcnt(0)')
    pv(t + 1, 0, t + 1 == 8); pv(t + 1, 1, False)
A(f's_branch {ldone}')
A.label('Lfb')
A(f's_mov_b32 {sFb}, 1\nv_mov_b32 v210, v232\nv_mov_b32 v211, v233')
att_masks()
A(f'v_mov_b32 v232, v210\nv_mov_b32 v233, v211\nv_mov_b32 {M0_}, 0xff800000\nv_mov_b32 {M1_}, 0xff800000')
for t in range(9):
    sk = L()
    if t < 8: A(f's_cmp_gt_u32 {sTau}, {t}\ns_cbranch_scc1 {sk}')
    smf(t, SB_(8), '0'); maxs(SB_(8))
    if t < 8: A.label(sk)
maxfin()
A('s_branch Lp2')
A.label(ldone)
stamp('x5')
A(f'v_mov_b32 v237, {hex(OPT["thr"])}\nv_cmp_nlt_f32 vcc, v{OA+8}, v237\ns_cmp_lg_u32 {sFb}, 0\ns_cselect_b64 vcc, 0, vcc\ns_cbranch_vccnz Lfb')
A(f's_lshl_b32 s13, s22, 10\ns_add_u32 s13, s13, {WS_O}\ns_add_u32 s22, s22, {F2}')
A(f'v_rcp_f32 v238, v{OA+8}')
for j in range(4): A(f'v_pk_mul_f32 {v(OA+2*j,2)}, {v(OA+2*j,2)}, v[238:239] op_sel_hi:[1,0]')
for j in range(4): A(f'v_cvt_pk_bf16_f32 v{168+j}, v{OA+2*j}, v{OA+2*j+1}')
dual([f'buffer_store_dwordx4 v[168:171], v232, {SWS}, s13 offen'], OPT['osc'])
A('s_waitcnt vmcnt(0)')
set_flag('s22', 'v6', 'v7')
if OPT['prio']: A('s_setprio 0')
stamp('att_end')
A(f's_cmp_ge_u32 {sW}, 4\ns_cbranch_scc1 Lloader2')
if OPT['noduty']:
    A(f's_mov_b32 {sFb}, 2\ns_branch Lduty2'); A.label('Lduty3'); A('s_waitcnt vmcnt(0)')
lds_inc(L_CNT + 16, 'v2', 'v3')
lds_wait(L_CNT + 16, 4, 'v2', 'v3')

A.label('Ls3')
AK, AS = 16, 32
OF = lambda i: 48 + 4 * i
WOF = lambda i, c: 112 + 8 * i + 4 * c
tr_lane_addr('v2', 128, 4, 'v4', True, sB)
A(f's_lshl_b32 s13, {sB}, 15\ns_add_u32 s13, s13, {RA}\nv_add_u32 v2, s13, v2\nv_xor_b32 v3, 64, v2')
for i in range(16):
    for c in range(2):
        for ii in range(2): trd(WOF(i, c) + 2 * ii, 'v2' if c == 0 else 'v3', i * 2048 + ii * 1024)
A(f's_lshl_b32 s13, {sTile}, 5\ns_lshl_b32 s14, {sB}, 4\ns_add_u32 s13, s13, s14\nv_add_u32 v5, s13, v0\nv_lshlrev_b32 v5, 7, v5\nv_add_u32 v5, {WS_FL + F2*128}, v5')
A(f's_lshl_b32 s16, s13, 10\ns_add_u32 s16, s16, {WS_O}\nv_lshlrev_b32 v244, 4, v0')
for q in range(4):
    for j in range(2):
        A(f'v_lshlrev_b32 v{AK+4*q+2*j}, 16, v{HRES+2*q+j}\nv_and_b32 v{AK+4*q+2*j+1}, 0xffff0000, v{HRES+2*q+j}')
A(f's_lshl_b32 s13, {sW}, 12\ns_add_u32 s13, s13, {A_SCR3}\nv_add_u32 v12, s13, v244\ns_xor_b32 s13, {sW}, 2\ns_lshl_b32 s13, s13, 12\ns_add_u32 s13, s13, {A_SCR3}\nv_add_u32 v13, s13, v244')
A(f's_lshl_b32 s13, {sSub}, 1\ns_add_u32 s13, s13, {sB}\ns_lshl_b32 s14, {sTile}, 4\ns_add_u32 s14, s14, s13')
A(f's_lshl_b32 s19, s14, 11\ns_add_u32 s19, s19, {WS_H}\ns_lshl_b32 s17, s14, 8\ns_add_u32 s17, s17, {WS_ST}\ns_add_u32 s18, s14, {F3}\nv_lshlrev_b32 v14, 2, v0')
A(f'v_mov_b32 v15, 0x3f803f80\nv_mov_b32 v8, 0\nv_mov_b32 v9, 0\nv_mov_b32 v10, 0\nv_mov_b32 v11, 0')
A('s_waitcnt lgkmcnt(0)\ns_barrier')
poll('v5', 'v6', 16)
stamp('s3_polled')
def oload(i):
    if i % 4 == 0 and i: A('s_add_u32 s16, s16, 4096')
    A(f'buffer_load_dwordx4 {v(OF(i),4)}, v244, {SWS}, s16 offen offset:{(i%4)*1024} sc1')
issued = OPT['la3']
for i in range(issued): oload(i)
for i in range(16):
    A(f's_waitcnt vmcnt({issued-1-i})')
    mfma(AS, WOF(i, 1), OF(i), '0' if i == 0 else None)
    if issued < 16: oload(issued); issued += 1
    mfma(AK, WOF(i, 0), OF(i))
stamp('s3_mfma')
for q in range(4): A(f'ds_write_b128 v12, {v(AS+4*q,4)} offset:{q*1024}')
A('s_waitcnt lgkmcnt(0)\ns_barrier')
for q in range(4): A(f'ds_read_b128 {v(AS+4*q,4)}, v13 offset:{q*1024}')
for q in range(4):
    A(f's_waitcnt lgkmcnt({3-q})')
    for j in range(2): A(f'v_pk_add_f32 {v(AK+4*q+2*j,2)}, {v(AK+4*q+2*j,2)}, {v(AS+4*q+2*j,2)}')
    for j in range(2): A(f'v_cvt_pk_bf16_f32 v{HRES+2*q+j}, v{AK+4*q+2*j}, v{AK+4*q+2*j+1}')
dual([f'buffer_store_dwordx4 {v(HRES,4)}, v244, {SWS}, s19 offen', f'buffer_store_dwordx4 {v(HRES+4,4)}, v244, {SWS}, s19 offen offset:1024'], OPT['hsc'])
for j in range(8): A(f'v_dot2c_f32_bf16 v{8+(j&1)}, v{HRES+j}, v15\nv_dot2c_f32_bf16 v{10+(j&1)}, v{HRES+j}, v{HRES+j}')
A('v_add_f32 v8, v8, v9\nv_add_f32 v10, v10, v11')
half_sum2('v8', 'v10')
dual([f'buffer_store_dword v8, v14, {SWS}, s17 offen'], OPT['hsc'])
AC = lambda b: 16 + 16 * b
HF = lambda k: 64 + 4 * k
BF = lambda s, b: 192 + 8 * (s % 3) + 4 * b
STT = 216
APF = lambda b: 232 + 4 * b
BP, RS4 = 8, 14
sT4 = 's25'
A(f's_lshl_b32 {sT4}, {sG}, 2\ns_add_u32 {sT4}, {sT4}, {sW}')
A(f's_lshl_b32 s13, {sT4}, 4\nv_add_u32 v5, s13, v0\nv_lshlrev_b32 v5, 7, v5\nv_add_u32 v5, {WS_FL + F3*128}, v5')
tr_lane_addr('v2', 192, 4, 'v4', False)
A(f'v_add_u32 v3, 49152, v2\nv_add_u32 v4, {A_AP}, v244')
def w1rd(ks, b, dst):
    kp = (ks + 2) % 32
    a = 'v2' if kp < 16 else 'v3'
    for ii in range(2): trd(dst + 2 * ii, a, (kp % 16) * 3072 + ii * 1536 + b * 64)
for s_ in range(2):
    for b in range(2): w1rd(s_, b, BF(s_, b))
for r in range(12): A(f'v_mov_b32 v{APF(0)+r}, 0')
A(f's_lshl_b32 s16, {sT4}, 15\ns_add_u32 s16, s16, {WS_H}\ns_lshl_b32 s29, {sT4}, 12\ns_add_u32 s29, s29, {WS_ST}')
A(f's_mul_i32 s17, {sT4}, 86\ns_mul_i32 s13, {sM}, 6\ns_add_u32 s17, s17, s13\ns_lshl_b32 s17, s17, 10\ns_add_u32 s17, s17, {WS_H1}\ns_add_u32 s19, s17, 4096')
A(f's_lshl_b32 s30, {sT4}, 4\ns_add_u32 s30, s30, {sM}\ns_add_u32 s30, s30, {F4}')
A('s_waitcnt vmcnt(0)')
set_flag('s18', 'v6', 'v7')
stamp('s3_flag')
if OPT['bpat'] < 0: A('s_barrier')
A(f's_cmp_eq_u32 {sM}, 15\ns_cbranch_scc1 Ls4skip')
A('v_lshlrev_b32 v7, 2, v0')
poll('v5', 'v6', 16)
stamp('s4_polled')
vq = []
def hload(k):
    if k % 4 == 0 and k: A('s_add_u32 s16, s16, 4096')
    A(f'buffer_load_dwordx4 {v(HF(k),4)}, v244, {SWS}, s16 offen offset:{(k%4)*1024} sc1'); vq.append(('h', k))
for k in range(4): hload(k)
for i in range(16): A(f'buffer_load_dword v{STT+i}, v7, {SWS}, s29 offen offset:{i*256} sc1'); vq.append(('s', i))
issued = OPT['la4']
for k in range(4, issued): hload(k)
T0, T1 = 12, 13
sv = []
for st in (8, 4, 2, 1):
    for i in range(st): sv.append(f'v_add_f32 v{STT+i}, v{STT+i}, v{STT+i+st}')
sv += [f'v_mov_b32 v{STT+1}, v{STT}', f'v_permlane32_swap_b32 v{STT}, v{STT+1}',
       f'v_mul_f32 v{STT}, {f2u(1/512)}, v{STT}', f'v_mul_f32 v{STT+1}, {f2u(1/512)}, v{STT+1}',
       f'v_fma_f32 v{STT+1}, -v{STT}, v{STT}, v{STT+1}', f'v_max_f32 v{STT+1}, 0, v{STT+1}', f'v_add_f32 v{STT+1}, {f2u(1e-5)}, v{STT+1}',
       f'v_rsq_f32 v{RS4}, v{STT+1}', f'v_sqrt_f32 v{STT+1}, v{STT+1}', f'v_mov_b32 v{BP+3}, 0',
       f'v_cvt_pk_bf16_f32 v{T0}, v{STT+1}, v{STT}',
       f'v_lshlrev_b32 v{STT+2}, 16, v{T0}', f'v_and_b32 v{STT+3}, 0xffff0000, v{T0}',
       f'v_sub_f32 v{STT+2}, v{STT+1}, v{STT+2}', f'v_sub_f32 v{STT+3}, v{STT}, v{STT+3}',
       f'v_cvt_pk_bf16_f32 v{T1}, v{STT+2}, v{STT+3}',
       f'v_and_b32 v{BP}, 0xffff, v{T0}', f'v_lshrrev_b32 v{BP+2}, 16, v{T0}',
       f'v_lshl_or_b32 v{BP}, v{T1}, 16, v{BP}', f'v_and_b32 v{T1}, 0xffff0000, v{T1}', f'v_or_b32 v{BP+1}, v{BP+2}, v{T1}']
pos = 0
for ks in range(32):
    A(f's_waitcnt vmcnt({len(vq) - 1 - vq.index(("h", ks))}) lgkmcnt({4 if ks > 0 else 0})')
    if ks == OPT['bpat']: A('s_barrier')
    mfma(AC(0), BF(ks, 0), HF(ks), '0' if ks == 0 else None)
    if ks + 2 < 32: w1rd(ks + 2, 0, BF(ks + 2, 0))
    else: w1rd(2 * (ks - 30), 2, 216 + 8 * (ks - 30))
    if issued < 32:
        hload(issued); issued += 1
        if issued == 32: A('s_barrier')
    elif ks >= 5:
        for x in sv[pos:pos+2]: A(x)
        pos += 2
    mfma(AC(1), BF(ks, 1), HF(ks), '0' if ks == 0 else None)
    if ks + 2 < 32: w1rd(ks + 2, 1, BF(ks + 2, 1))
    else: w1rd(2 * (ks - 30) + 1, 2, 220 + 8 * (ks - 30))
    if ks >= 5:
        for x in sv[pos:pos+1]: A(x)
        pos += 1
    if ks == 27:
        assert pos >= len(sv), (pos, len(sv))
        A('s_mov_b32 exec_hi, 0')
        for b in range(3): A(f'ds_read_b128 {v(APF(b),4)}, v4 offset:{b*512}')
        A('s_mov_b32 exec_hi, -1')
mfma(AC(0), APF(0), BP); mfma(AC(1), APF(1), BP); mfma(AC(2), APF(2), BP, '0')
stamp('s4_phA')
BF2 = lambda s: 216 + 4 * (s % 4)
def epi_ops(b, dst):
    ops = []
    for j in range(8):
        r0, r1 = AC(b) + 2 * j, AC(b) + 2 * j + 1
        ops += [f'v_max_f32 v{r0}, 0, v{r0}', f'v_max_f32 v{r1}, 0, v{r1}', f'v_mul_f32 v{r0}, v{RS4}, v{r0}', f'v_mul_f32 v{r1}, v{RS4}, v{r1}',
                f'v_mul_f32 v{r0}, v{r0}, v{r0}', f'v_mul_f32 v{r1}, v{r1}, v{r1}', f'v_cvt_pk_bf16_f32 v{dst+j}, v{r0}, v{r1}']
    ops.append(('st', b, dst))
    return ops
def h1store(b, src):
    sk = None
    if b > 0:
        sk = L(); A(f's_cmp_eq_u32 {sM}, 14\ns_cbranch_scc1 {sk}')
    sb = 's17' if b < 2 else 's19'; off = (2 * b % 4) * 1024
    dual([f'buffer_store_dwordx4 {v(src,4)}, v244, {SWS}, {sb} offen offset:{off}', f'buffer_store_dwordx4 {v(src+4,4)}, v244, {SWS}, {sb} offen offset:{off+1024}'], OPT['h1sc'])
    if sk: A.label(sk)
ep = epi_ops(0, 192) + epi_ops(1, 200)
pos = 0
for ks in range(32):
    A(f's_waitcnt lgkmcnt({min(6, 2*(31-ks))})')
    mfma(AC(2), BF2(ks), HF(ks))
    if ks + 4 < 32: w1rd(ks + 4, 2, BF2(ks + 4))
    if ks >= 1:
        for x in ep[pos:pos+4]:
            if isinstance(x, tuple): h1store(x[1], x[2])
            else: A(x)
        pos += 4
assert pos >= len(ep)
stamp('s4_phB')
A('s_barrier')
for j in range(16): A(f'v_max_f32 v{AC(2)+j}, 0, v{AC(2)+j}')
for j in range(8): A(f'v_pk_mul_f32 {v(AC(2)+2*j,2)}, {v(AC(2)+2*j,2)}, {v(RS4,2)} op_sel_hi:[1,0]')
for j in range(8): A(f'v_pk_mul_f32 {v(AC(2)+2*j,2)}, {v(AC(2)+2*j,2)}, {v(AC(2)+2*j,2)}')
for j in range(8): A(f'v_cvt_pk_bf16_f32 v{208+j}, v{AC(2)+2*j}, v{AC(2)+2*j+1}')
h1store(2, 208)
A('s_branch Ls5')
A.label('Ls4skip')
if OPT['bpat'] >= 0: A('s_barrier')
A('s_barrier')
A('s_barrier')
A.label('Ls5')
NW = 40
GF = lambda s: 48 + 4 * (s % NW)
B5 = lambda s, c: 208 + 8 * (s % 3) + 4 * c
A(f'v_lshrrev_b32 v4, 5, v0\nv_lshlrev_b32 v4, 4, v4\ns_lshl_b32 s13, {sB}, 7\ns_add_u32 s13, s13, {A_B2F}\nv_add_u32 v4, s13, v4')
for q in range(4): A(f'ds_read_b128 {v(AK+4*q,4)}, v4 offset:{32*q}')
A(f's_lshl_b32 s13, {sTile}, 4\ns_mul_i32 s14, {sB}, 7\ns_add_u32 s13, s13, s14\nv_add_u32 v5, s13, v0\nv_lshlrev_b32 v5, 7, v5\nv_add_u32 v5, {WS_FL + F4*128}, v5')
A(f's_mul_i32 s16, {sTile}, 86\ns_mul_i32 s13, {sB}, 43\ns_add_u32 s16, s16, s13\ns_lshl_b32 s16, s16, 10\ns_add_u32 s16, s16, {WS_H1}')
tr_lane_addr('v2', 128, 4, 'v4', True, sB)
A(f's_mul_i32 s13, {sB}, 49152\ns_add_u32 s13, s13, {RB}\nv_add_u32 v234, s13, v2\nv_xor_b32 v235, 64, v234')
A(f's_mul_i32 s13, {sB}, 30720\ns_add_u32 s13, s13, {A_W2}\nv_add_u32 v232, s13, v2\nv_xor_b32 v233, 64, v232')
A(f's_lshl_b32 s14, {sA}, 12\ns_add_u32 s13, s13, s14\ns_add_u32 s13, s13, 8192\nv_add_u32 v236, s13, v244')
A(f's_xor_b32 s15, {sB}, 1\ns_mul_i32 s13, s15, 30720\ns_add_u32 s13, s13, s14\ns_add_u32 s13, s13, {A_W2 + 8192}\nv_add_u32 v237, s13, v244')
def w2rd(s):
    for c in range(2):
        if s < 15: a, off = ('v232', 'v233')[c], s * 2048
        elif s < 39: a, off = ('v234', 'v235')[c], (s - 15) * 2048
        else: a, off = ('v232', 'v233')[c], (s - 39) * 2048
        for ii in range(2): trd(B5(s, c) + 2 * ii, a, off + ii * 1024)
A('s_waitcnt lgkmcnt(0)')
for j in range(8):
    A(f'v_lshlrev_b32 v6, 16, v{HRES+j}\nv_and_b32 v7, 0xffff0000, v{HRES+j}')
    A(f'v_add_f32 v{AK+2*j}, v{AK+2*j}, v6\nv_add_f32 v{AK+2*j+1}, v{AK+2*j+1}, v7')
lx = L()
A(f's_cmp_eq_u32 {sM}, 15\ns_cbranch_scc1 {lx}\ns_waitcnt vmcnt(0)')
set_flag('s30', 'v6', 'v7')
A.label(lx)
stamp('s4_flag')
w2rd(0); w2rd(1)
poll('v5', 'v6', 8)
stamp('s5_polled')
def gload(s):
    if s % 4 == 0 and s: A('s_add_u32 s16, s16, 4096')
    A(f'buffer_load_dwordx4 {v(GF(s),4)}, v244, {SWS}, s16 offen offset:{(s%4)*1024} sc1')
for s in range(OPT['la5']): gload(s)
A(f'v_and_b32 v4, 31, v0\nv_lshlrev_b32 v4, 10, v4\nv_lshrrev_b32 v5, 5, v0\nv_lshl_add_u32 v4, v5, 4, v4')
issued = OPT['la5']
def w2rd1(s, c):
    if s < 15: a, off = ('v232', 'v233')[c], s * 2048
    elif s < 39: a, off = ('v234', 'v235')[c], (s - 15) * 2048
    else: a, off = ('v232', 'v233')[c], (s - 39) * 2048
    for ii in range(2): trd(B5(s, c) + 2 * ii, a, off + ii * 1024)
for s in range(43):
    A(f's_waitcnt vmcnt({issued-1-s}) lgkmcnt({4 if s < 42 else 0})')
    if s == 2: A('s_waitcnt lgkmcnt(0)\ns_barrier')
    if s == 36: A('s_barrier')
    mfma(AS, B5(s, 1), GF(s), '0' if s == 0 else None)
    if s + 2 < 43: w2rd1(s + 2, 0)
    mfma(AK, B5(s, 0), GF(s))
    if s + 2 < 43: w2rd1(s + 2, 1)
    if issued < 43: gload(issued); issued += 1
stamp('s5_mfma')
for q in range(4): A(f'ds_write_b128 v236, {v(AS+4*q,4)} offset:{q*1024}')
A('s_waitcnt lgkmcnt(0)\ns_barrier')
for q in range(4): A(f'ds_read_b128 {v(AS+4*q,4)}, v237 offset:{q*1024}')
for q in range(4):
    A(f's_waitcnt lgkmcnt({3-q})')
    for j in range(2): A(f'v_pk_add_f32 {v(AK+4*q+2*j,2)}, {v(AK+4*q+2*j,2)}, {v(AS+4*q+2*j,2)}')
    for j in range(2): A(f'v_cvt_pk_bf16_f32 v{8+2*q+j}, v{AK+4*q+2*j}, v{AK+4*q+2*j+1}')
    if q % 2:
        b = 8 + 2 * q - 2
        A(f'v_permlane32_swap_b32 v{b}, v{b+2}\nv_permlane32_swap_b32 v{b+1}, v{b+3}')
        A(f'buffer_store_dwordx4 {v(b,4)}, v4, {SOUT}, s24 offen offset:{(q//2)*32}' + (' sc1' if OPT['outsc'] == 1 else (' nt' if OPT['outsc'] == 2 else '')))
stamp('end')
if OPT['impure']:
    A(f's_cmp_lg_u32 {sMode}, 0\ns_cbranch_scc1 Lexit')
    OPT['until'] = 150000
if OPT['until']:
    A.label('Lspin')
    A(f's_memtime s[88:89]\ns_waitcnt lgkmcnt(0)\ns_sub_u32 s88, s88, s84\ns_cmp_lt_u32 s88, {OPT["until"]}\ns_cbranch_scc1 Lspin')
A('s_endpgm')

def wb(level):
    if OPT['wbl2'] == 1 and level == 2:
        lx = L(); A(f's_cmp_lg_u32 {sI}, 0\ns_cbranch_scc1 {lx}\nbuffer_wbl2 sc1'); A.label(lx)
    if (OPT['wbl2'] == 2 and level == 2) or OPT['wbl2'] == 3:
        lx = L(); A(f's_cmp_lg_u32 {sJ}, 15\ns_cbranch_scc1 {lx}\ns_cmp_lg_u32 {sI}, 0\ns_cbranch_scc1 {lx}\nbuffer_wbl2 sc1'); A.label(lx)
def ctouch(lab_from, nm):
    if not OPT['ctouch']: return
    A(f's_getpc_b64 s[10:11]'); A.label(nm)
    A(f's_mov_b32 s13, {nm}-{lab_from}\ns_cmp_eq_u32 {sI}, 1\ns_cselect_b32 s13, {nm}-Lcodeend+8192, s13\ns_sub_u32 s10, s10, s13\ns_subb_u32 s11, s11, 0')
    A(f'global_load_dword v239, v245, s[10:11]')
def w2base(s0):
    A(f's_mul_i32 s16, {sB}, {43*16*1024}\ns_lshl_b32 s13, {sA}, 13\ns_add_u32 s16, s16, s13\ns_lshl_b32 s13, {sSub}, 7\ns_add_u32 s16, s16, s13\ns_add_u32 s16, s16, {s0*16384}')
def w2loop(n, ldsbase, khstride):
    A(f's_mul_i32 s18, {sB}, {khstride}\ns_lshl_b32 s13, {sA}, 10\ns_add_u32 s18, s18, s13\ns_add_u32 s18, s18, {ldsbase}\ns_mov_b32 s19, {n}')
    lp = L(); A.label(lp)
    A('s_mov_b32 m0, s18'); dma(VWO, SW2, 's16')
    A(f's_add_u32 s16, s16, 16384\ns_add_u32 s18, s18, 2048\ns_sub_u32 s19, s19, 1\ns_cmp_lg_u32 s19, 0\ns_cbranch_scc1 {lp}')
def w2lo():
    w2base(0); w2loop(8, A_W2, 30720)
def p1_rest():
    if OPT['p1a']:
        lx = L(); A(f's_cmp_lg_u32 {sB}, 0\ns_cbranch_scc1 {lx}'); w2lo(); A.label(lx)
    else:
        w2base(0); w2loop(15, A_W2, 30720)
A.label('Lloader2')
lct = L(); A(f's_cmp_ge_u32 {sI}, 2\ns_cbranch_scc1 {lct}'); ctouch('Ls3', 'Lct1'); A.label(lct)
A('s_barrier')
lsk1 = L()
A(f's_cmp_eq_u32 {sM}, 15\ns_cbranch_scc1 {lsk1}')
A(f's_mul_i32 s16, {sI}, {16*2752}\ns_mul_i32 s13, {sM}, 192\ns_add_u32 s16, s16, s13\ns_mul_i32 s18, {sI}, 3072')
for gi in range(3):
    for ph in range(3):
        A(f's_add_u32 s13, s16, {(15+4*gi)*16*2752}\ns_add_u32 m0, s18, {RB + (17+4*gi)*3072 + ph*1024}'); dma(f'v{8+ph}', SW1, 's13')
A(f's_add_u32 s14, {sI}, 29\ns_and_b32 s14, s14, 31\ns_mul_i32 s14, s14, 3072')
for ph in range(3):
    A(f's_add_u32 s13, s16, {27*16*2752}\ns_add_u32 m0, s14, {RB + ph*1024}'); dma(f'v{8+ph}', SW1, 's13')
A(f's_cmp_lg_u32 {sI}, 0\ns_cbranch_scc1 {lsk1}')
for ph in range(3):
    A(f's_add_u32 s13, s16, {31*16*2752}\ns_mov_b32 m0, {RB + 3072 + ph*1024}'); dma(f'v{8+ph}', SW1, 's13')
A.label(lsk1)
A(f's_mul_i32 s13, {sM}, 192\nv_lshlrev_b32 v2, 1, v0\nbuffer_load_ushort v12, v2, {SB1}, s13 offen\nbuffer_load_ushort v13, v2, {SB1}, s13 offen offset:128')
A(f's_lshl_b32 s13, {sSub}, 7\nbuffer_load_ushort v14, v2, {SB2}, s13 offen')
A(f'v_mov_b32 v2, 0\nv_mov_b32 v3, {RA + 3072}\nds_write_b32 v3, v2')
if OPT['p1a']:
    w2base(8); w2loop(7, A_W2 + 8 * 2048, 30720)
    lx = L(); A(f's_cmp_eq_u32 {sB}, 0\ns_cbranch_scc1 {lx}'); w2lo(); A.label(lx)
tr_lane_addr('v2', 192, 4, 'v4', False)
A(f's_mul_i32 s13, {sI}, {128*192}\nv_add_u32 v2, s13, v2\nv_mov_b32 v3, 0x3f803f80')
for r in range(16, 22): A(f'v_mov_b32 v{r}, 0')
A('s_waitcnt lgkmcnt(0)\ns_barrier')
A('s_waitcnt vmcnt(0)')
A(f'v_lshlrev_b32 v4, 2, v0\nv_add_u32 v4, {RA}, v4\nv_lshlrev_b32 v14, 16, v14\nds_write_b32 v4, v14 offset:{A_B2F-RA}')
A(f's_cmp_eq_u32 {sM}, 15\ns_cbranch_scc1 Lnocs')
lds_inc(RA + 3072, 'v6', 'v7')
lds_wait(RA + 3072, 4, 'v6', 'v7')
stamp('ld_c')
for half in range(2):
    for s in range(4):
        for b in range(3):
            for ii in range(2): trd(32 + 12 * s + 4 * b + 2 * ii, 'v2', (4 * half + s) * 3072 + ii * 1536 + b * 64)
    A('s_waitcnt lgkmcnt(0)')
    for s in range(4):
        for j in range(4):
            for b in range(3): A(f'v_dot2c_f32_bf16 v{16+2*b+(j&1)}, v{32+12*s+4*b+j}, v3')
A('v_add_f32 v16, v16, v17\nv_add_f32 v18, v18, v19\nv_add_f32 v20, v20, v21\nv_mov_b32 v21, v20')
half_sum2('v16', 'v18'); half_sum2('v20', 'v21')
A(f's_mul_i32 s13, {sI}, 384\ns_add_u32 s13, s13, {A_PART}\nv_lshlrev_b32 v4, 2, v0\nv_add_u32 v5, s13, v4')
A('ds_write_b32 v5, v16\ns_mov_b32 exec_hi, 0\nds_write_b32 v5, v20 offset:256\ns_mov_b32 exec_hi, -1')
A('s_waitcnt lgkmcnt(0)')
lds_inc(RA + 3072, 'v6', 'v7')
lds_wait(RA + 3072, 8, 'v6', 'v7')
A(f'v_add_u32 v4, {RA}, v4')
for i in range(4): A(f'ds_read_b32 v{16+i}, v4 offset:{i*384}\nds_read_b32 v{20+i}, v4 offset:{i*384+256}')
A('s_waitcnt lgkmcnt(0)')
A('v_add_f32 v16, v16, v17\nv_add_f32 v18, v18, v19\nv_add_f32 v20, v20, v21\nv_add_f32 v22, v22, v23\nv_add_f32 v16, v16, v18\nv_add_f32 v20, v20, v22')
A(f'v_lshlrev_b32 v5, 4, v0\nv_add_u32 v5, {A_AP}, v5')
for (cs, b1r, d, off) in ((16, 12, 24, 0), (20, 13, 28, 1024)):
    A(f'v_lshl_or_b32 v{d}, v{b1r}, 16, v{b1r}\nv_cvt_pk_bf16_f32 v{d+1}, -v{cs}, -v{cs}\nv_lshlrev_b32 v{d+2}, 16, v{d+1}\nv_mov_b32 v{d+3}, 0')
    A(f'v_sub_f32 v{d+2}, -v{cs}, v{d+2}\nv_cvt_pk_bf16_f32 v{d+2}, v{d+2}, v{d+3}')
A('ds_write_b128 v5, v[24:27]\ns_mov_b32 exec_hi, 0\nds_write_b128 v5, v[28:31] offset:1024\ns_mov_b32 exec_hi, -1')
A.label('Lnocs')
A('s_waitcnt lgkmcnt(0)\ns_barrier')
if OPT['p1pos'] == 0: p1_rest()
if OPT['pfc']:
    lx = L(); A(f's_cmp_lg_u32 {sM}, 15\ns_cbranch_scc1 {lx}'); p2touch((9 if OPT['pfd'] else 14) - OPT['m15a'], OPT['m15a'] * 32768, L()); A.label(lx)
wb(1)
A('s_barrier')
if OPT['pfd']:
    lx = L(); A(f's_cmp_lg_u32 {sM}, 14\ns_cbranch_scc1 {lx}'); p2touch(5, 9*32768, L()); A.label(lx)
if OPT['p1pos'] == 1: p1_rest()
A('s_waitcnt vmcnt(0)\ns_barrier')
w2base(15); w2loop(24, RB, 49152)
A('s_waitcnt vmcnt(0)')
stamp('ld_d')
A('s_barrier')
w2loop(4, A_W2, 30720)
wb(2)
A('s_waitcnt vmcnt(0)\ns_barrier')
A('s_barrier')
A.label('Lexit')
A('s_endpgm')
A.label('Lcodeend')

n = A.fix_hazards()
assert check_async(A, frozenset({'v239', 's90'})) == 0
hdr = open('cdna_kernels/' + NAME + '.s.ref').read().split('; Override')[0]
out = hdr + f'; @launch grid=(256,1,1) block=(512,1,1) lds=163840\n.amdgcn_target "amdgcn-amd-amdhsa--gfx950"\n.text\n.globl {NAME}_kernel\n.p2align 8\n.type {NAME}_kernel,@function\n{NAME}_kernel:\n'
out += A.text()
out += f'''.fill 64, 4, 0xbf800000
.section .rodata,"a"
.p2align 6
.amdhsa_kernel {NAME}_kernel
  .amdhsa_next_free_vgpr 256
  .amdhsa_next_free_sgpr 102
  .amdhsa_accum_offset 256
  .amdhsa_group_segment_fixed_size 0
  .amdhsa_kernarg_size 88
  .amdhsa_user_sgpr_count 2
  .amdhsa_user_sgpr_kernarg_segment_ptr 1
  .amdhsa_system_sgpr_workgroup_id_x 1
  .amdhsa_float_denorm_mode_32 3
.end_amdhsa_kernel
'''
open(sys.argv[1], 'w').write(out)
print('nops inserted:', n, 'instructions:', len(A.ins))
```
